```python
import torch

def _softmax(x, axis=-1):
    return torch.softmax(x, dim=axis)
def _gelu(x):
    return torch.nn.functional.gelu(x, approximate="tanh")
def _silu(x):
    return torch.nn.functional.silu(x)
def _sigmoid(x):
    return torch.sigmoid(x)
def _layernorm(x, axis=-1, eps=1e-5):
    m = x.mean(dim=axis, keepdim=True)
    v = x.var(dim=axis, keepdim=True, unbiased=False)
    return (x - m) / torch.sqrt(v + eps)
def _scatter_add(tgt, idx, src, axis=0):
    return tgt.clone().index_add_(axis, idx, src)
def _segment_sum(src, seg, n):
    out = torch.zeros((n,) + src.shape[1:], dtype=src.dtype)
    return out.index_add_(0, seg, src)
def _pad(x, pw):
    flat = tuple(v for pair in reversed(pw) for v in pair)
    return torch.nn.functional.pad(x, flat)

kernel_name = 'parallel_sum__gqa_block_cached__glu_gated_swiglu__decode'

def setup_inputs():

    _w = (lambda a: (lambda t: t.to(torch.bfloat16) if t.is_floating_point() else t)(torch.as_tensor(a)))
    def _A_setup():
        B, Sq, D = 2, 1, 448
        Hq, Hkv, Sk, Dh = 16, 8, 32768, 256
        assert Hq % Hkv == 0, (Hq, Hkv)
        return {
            "x": _w((lambda *s: torch.randn(*s, dtype=torch.bfloat16) * 0.05)(B, Sq, D)),
            "k_cache": _w((lambda *s: torch.randn(*s, dtype=torch.bfloat16) * 3.2)(B, Hkv, Sk, Dh)),
            "v_cache": _w((lambda *s: torch.randn(*s, dtype=torch.bfloat16) * 1.6)(B, Hkv, Sk, Dh)),
            "wq": _w((lambda *s: torch.randn(*s, dtype=torch.bfloat16) * 3.2)(D, Hq * Dh) * (D ** -0.5)),
            "wo": _w((lambda *s: torch.randn(*s, dtype=torch.bfloat16) * 1.6)(Hq * Dh, D) * ((Hq * Dh) ** -0.5)),
        }
    _A_in = _A_setup()

    def _B_setup():
        B, S, D, F = 2, 1, 448, 1792
        return {
            "x": _w((lambda *s: torch.randn(*s, dtype=torch.bfloat16) * 0.05)(B, S, D)),
            "w1": _w((lambda *s: torch.randn(*s, dtype=torch.bfloat16) * 1.6)(D, F) * (2.0 / D) ** 0.5),
            "w3": _w((lambda *s: torch.randn(*s, dtype=torch.bfloat16) * 1.6)(D, F) * (2.0 / D) ** 0.5),
            "w2": _w((lambda *s: torch.randn(*s, dtype=torch.bfloat16) * 1.6)(F, D) * (2.0 / F) ** 0.5),
        }
    _B_in = _B_setup()

    return {
        "A_x": _A_in["x"],
        "A_k_cache": _A_in["k_cache"],
        "A_v_cache": _A_in["v_cache"],
        "A_wq": _A_in["wq"],
        "A_wo": _A_in["wo"],
        "B_x": _B_in["x"],
        "B_w1": _B_in["w1"],
        "B_w3": _B_in["w3"],
        "B_w2": _B_in["w2"],
    }

def reference(A_x, A_k_cache, A_v_cache, A_wq, A_wo, B_x, B_w1, B_w3, B_w2):
    def _A_ref(x, k_cache, v_cache, wq, wo):
        B, Sq, D = x.shape
        Hq, Dh = 16, 256
        Hkv = k_cache.shape[1]
        rep = Hq // Hkv
        q = (lambda x, *d: x.permute(*d))((x @ wq).reshape(B, Sq, Hq, Dh), 0, 2, 1, 3)
        k = (lambda x, n, axis: torch.repeat_interleave(x, n, dim=axis))(k_cache, rep, axis=1)
        v = (lambda x, n, axis: torch.repeat_interleave(x, n, dim=axis))(v_cache, rep, axis=1)
        scores = torch.einsum("bhqd,bhkd->bhqk", q, k) * (Dh ** -0.5)
        p = _softmax(scores, axis=-1)
        o = torch.einsum("bhqk,bhkd->bhqd", p, v)
        return (lambda x, *d: x.permute(*d))(o, 0, 2, 1, 3).reshape(B, Sq, Hq * Dh) @ wo

    def _B_ref(x, w1, w3, w2):
        gate = torch.einsum("bsd,df->bsf", x, w1)
        up = torch.einsum("bsd,df->bsf", x, w3)
        h = _silu(gate) * up
        out = torch.einsum("bsf,fd->bsd", h, w2)
        return out

    x = A_x
    xn = _layernorm(x, axis=-1)
    return x + _A_ref(xn, A_k_cache, A_v_cache, A_wq, A_wo) + _B_ref(xn, B_w1, B_w3, B_w2)
```

```python
import re
TRANS = ("v_exp_f32","v_rcp_f32","v_sqrt_f32","v_rsq_f32","v_log_f32","v_sin_f32","v_cos_f32")
REG = re.compile(r"\b([vsa])\[(\d+):(\d+)\]|\b([vsa])(\d+)\b|\b(vcc|exec|m0)\b")
def regs(tok):
    out=set()
    for m in REG.finditer(tok):
        if m.group(1):
            for i in range(int(m.group(2)),int(m.group(3))+1): out.add(m.group(1)+str(i))
        elif m.group(4): out.add(m.group(4)+m.group(5))
        else: out.add(m.group(6))
    return out
def split_ops(s):
    ops=[];d=0;cur=""
    for ch in s:
        if ch=='[': d+=1
        if ch==']': d-=1
        if ch==',' and d==0: ops.append(cur.strip());cur=""
        else: cur+=ch
    if cur.strip(): ops.append(cur.strip())
    return ops
class Asm:
    def __init__(self):
        self.lines=[]; self.pos=0; self.pend=[]
    def raw(self,s): self.lines.append(s)
    def comment(self,s): self.lines.append("    ; "+s)
    def label(self,l):
        self.lines.append(l+":")
    def flush(self):
        need=0
        W={'valu':2,'valus':5,'trans':1,'mfma':8,'mfmaC':3,'wstore':2,'saluM0':1}
        for k,r,p in self.pend:
            need=max(need, W[k]-(self.pos-p-1))
        self.nop(need)
        self.pend=[]
    def nop(self,n):
        while n>0:
            k=min(n,16); self.lines.append(f"    s_nop {k-1}"); self.pos+=k; n-=k
    def __call__(self,text):
        for ln in text.strip().split("\n"):
            ln=ln.strip()
            if not ln: continue
            self.ins(ln)
    def ins(self,ln):
        code=ln.split(";")[0].strip()
        mn,_,rest=code.partition(" ")
        rest=rest.strip()
        ops=split_ops(rest)
        isdpp = ("quad_perm" in code or "row_" in code)
        W=set();R=set()
        kind=None
        if mn.startswith("v_mfma"):
            kind='mfma'; W=regs(ops[0]); A=regs(ops[1])|regs(ops[2]); Cc=regs(ops[3]); R=A|Cc
        elif mn.startswith("v_"):
            kind='valu'
            if mn.startswith("v_permlane") :
                W=regs(ops[0])|regs(ops[1]); R=set(W)
            elif mn.startswith("v_cmp"):
                W=regs(ops[0]); R=set().union(*[regs(o) for o in ops[1:]])
            elif mn in("v_add_co_u32","v_addc_co_u32","v_sub_co_u32"):
                W=regs(ops[0])|regs(ops[1]); R=set().union(*[regs(o) for o in ops[2:]])
            else:
                W=regs(ops[0]); R=set().union(*[regs(o.split(" ")[0]) for o in ops[1:]]) if len(ops)>1 else set()
                if mn.startswith("v_fmac") or mn.startswith("v_dot2c") or isdpp or mn.startswith("v_writelane"): R|=W
        elif mn.startswith("buffer_load") or mn.startswith("global_load") or mn.startswith("ds_read"):
            kind='mem'
            if " lds" in code: R=set().union(*[regs(o.split(" ")[0]) for o in ops])|{"m0"}
            else:
                W=regs(ops[0]); R=set().union(*[regs(o.split(" ")[0]) for o in ops[1:]])
        elif mn.startswith("buffer_") or mn.startswith("global_") or mn.startswith("ds_"):
            kind='mem'; R=set().union(*[regs(o.split(" ")[0]) for o in ops]) if ops else set()
            if "atomic" in mn and " sc0" in code: W=regs(ops[0])
        elif mn.startswith("s_"):
            kind='salu'
            if mn in("s_cbranch_scc0","s_cbranch_scc1","s_cbranch_vccz","s_cbranch_vccnz","s_cbranch_execz","s_cbranch_execnz","s_branch","s_endpgm","s_barrier"):
                if mn!="s_endpgm": self.flush()
            elif mn=="s_nop":
                n=int(rest)+1; self.lines.append("    "+ln); self.pos+=n; return
            elif ops and not mn.startswith("s_cmp") and not mn.startswith("s_waitcnt") and mn not in("s_sleep","s_setprio"):
                W=regs(ops[0])
        need=0
        for k,r,p in self.pend:
            d=self.pos-p-1; req=0
            if k=='valu':
                if kind=='mfma' and (R&r): req=2
                if kind=='valu' and isdpp and (regs(ops[1].split(" ")[0])&r): req=2
                if kind=='valu' and mn.startswith("v_permlane") and (R&r): req=2
                if kind=='valu' and (mn.startswith("v_readlane") or mn.startswith("v_readfirstlane")) and (R&r): req=1
            elif k=='valus':
                if kind=='valu' and (R&r): req=4 if ("lane" in mn) else 2
                if kind=='mem' and (R&r): req=5
            elif k=='trans':
                if kind in('valu','mfma') and (R&r) : req=1
                if kind=='mem' and (R&r): req=1
            elif k=='mfma':
                if kind=='mfma':
                    if A&r: req=8
                    if Cc&r: req=max(req,0 if (Cc==r and W==r) else 6)
                    if (W&r) and not (W==r and Cc==r): req=max(req,8)
                elif kind in('valu','mem') and ((R|W)&r): req=8
            elif k=='mfmaC':
                if kind=='valu' and (W&r): req=3
            elif k=='wstore':
                if kind in('valu','mem','mfma') and (W&r): req=2
            elif k=='saluM0':
                if "m0" in R: req=1
            need=max(need,req-d)
        self.nop(need)
        self.lines.append("    "+ln)
        p=self.pos; self.pos+=1
        self.pend=[x for x in self.pend if self.pos-x[2]-1<8]
        if kind=='valu':
            wv={x for x in W if x[0]=='v' and x!='vcc'}; ws=W-wv
            if wv: self.pend.append(('valu',wv,p))
            if wv and mn.replace("_e32","").replace("_e64","") in TRANS: self.pend.append(('trans',wv,p))
            if ws: self.pend.append(('valus',ws,p))
        elif kind=='mfma':
            self.pend.append(('mfma',W,p))
            if Cc: self.pend.append(('mfmaC',Cc,p))
        elif kind=='mem' and ("store" in mn) and ("x4" in mn or "x3" in mn):
            self.pend.append(('wstore',regs(ops[0]) if mn.startswith("buffer") else regs(ops[1]),p))
        elif kind=='salu' and "m0" in W:
            self.pend.append(('saluM0',{"m0"},p))
    def text(self): return "\n".join(self.lines)+"\n"
```

```python
import struct, sys, math
from asmlib import Asm
NAME="parallel_sum__gqa_block_cached__glu_gated_swiglu__decode"
def f32(x): return "0x%08x"%struct.unpack("<I",struct.pack("<f",x))[0]

def gen(NB=3, round_scores=True, wq_nt=False, kname=None, skip_q=False, skip_tail=False, spin_max=1<<22):
    a=Asm()
    K=kname or NAME+"_kernel"
    L=lambda s: f"L_{K[-12:]}_{s}" if kname else f"L_{s}"
    CEXP=math.log2(math.e)/16.0
    XN=0
    QP=3584
    OP=QP+8192
    ML=OP+8192
    HB=ML+64
    LDS=HB+512
    INB=8192
    H1ML=2048; H2=4096; H3=6144
    NIT=32
    a.raw(f".globl {K}\n.p2align 8\n.type {K},@function\n{K}:")
    a(f"""
    s_cmp_ge_u32 s2, 256
    s_cbranch_scc1 {L('end')}
    s_load_dwordx16 s[16:31], s[0:1], 0
    s_load_dwordx8 s[32:39], s[0:1], 64
    v_lshrrev_b32 v1, 6, v0
    v_and_b32 v0, 63, v0
    v_readfirstlane_b32 s3, v1
    s_and_b32 s4, s2, 15
    s_lshr_b32 s5, s2, 4
    s_cmp_ge_u32 s3, 4
    s_cbranch_scc1 {L('helper')}
    """)
    KO=[1,2]; VO=[3,4]; vM=5; vL=6; T=list(range(7,16))
    MASK=16; Q=20; O=28; DS=36; A=[52,56]; S=60; RING=64
    Kr=lambda nb,j: RING+nb*64+j*4
    Vr=lambda nb,j: RING+nb*64+32+j*4
    a(f"""
    v_and_b32 v1, 3, v0
    v_lshlrev_b32 v1, 4, v1
    v_lshrrev_b32 v7, 4, v0
    v_lshl_add_u32 v1, v7, 6, v1
    v_bfe_u32 v8, v0, 2, 2
    v_lshl_add_u32 v1, v8, 9, v1
    v_add_u32 v2, 0x1000, v1
    v_and_b32 v3, 15, v0
    v_lshlrev_b32 v3, 4, v3
    v_lshl_add_u32 v3, v7, 9, v3
    v_add_u32 v4, 0x1000, v3
    s_lshl_b32 s6, s4, 24
    s_lshl_b32 s7, s5, 2
    s_add_u32 s7, s7, s3
    s_lshl_b32 s7, s7, 13
    s_add_u32 s6, s6, s7
    s_mov_b32 s42, 0x10000000
    s_mov_b32 s43, 0x20000
    s_mov_b32 s46, 0x10000000
    s_mov_b32 s47, 0x20000
    s_waitcnt lgkmcnt(0)
    s_mov_b32 s40, s18
    s_mov_b32 s41, s19
    s_mov_b32 s44, s20
    s_mov_b32 s45, s21
    """)
    def ldK(nb,j):
        kk,h=j>>1,j&1; r=Kr(nb,j)
        a(f"buffer_load_dwordx4 v[{r}:{r+3}], v{KO[kk>>1]}, s[40:43], s6 offen offset:{(kk&1)*2048+h*256} nt")
    def ldV(nb,j):
        kk,h=j>>1,j&1; r=Vr(nb,j)
        a(f"buffer_load_dwordx4 v[{r}:{r+3}], v{VO[kk>>1]}, s[44:47], s6 offen offset:{(kk&1)*2048+h*256} nt")
    for nb in range(NB):
        for j in range(8): ldK(nb,j)
        for j in range(8): ldV(nb,j)
        a("s_add_u32 s6, s6, 0x80000")
    def masks():
        a(f"""
        v_and_b32 v7, 1, v0
        v_cmp_eq_u32 vcc, 1, v7
        v_mov_b32 v8, 0xffff
        v_mov_b32 v9, 0xffff0000
        v_cndmask_b32 v8, v8, v9, vcc
        v_bfe_u32 v7, v0, 1, 2
        """)
        for r in range(4):
            a(f"v_cmp_eq_u32 vcc, {r}, v7\nv_cndmask_b32 v{MASK+r}, 0, v8, vcc")
    masks()
    a(f"""
    v_lshrrev_b32 v7, 2, v0
    v_xor_b32 v7, v7, v0
    v_and_b32 v7, 8, v7
    v_cmp_ne_u32 s[8:9], 0, v7
    s_mov_b32 s10, {f32(CEXP)}
    s_mov_b32 s11, 0
    v_mov_b32 v{vM}, 0xff7fffff
    v_mov_b32 v{vL}, 0
    """)
    a(f"""
    v_bfe_u32 v7, v0, 3, 1
    v_lshlrev_b32 v7, 10, v7
    v_lshrrev_b32 v8, 4, v0
    v_lshl_add_u32 v7, v8, 7, v7
    v_and_b32 v8, 3, v0
    v_lshl_add_u32 v7, v8, 5, v7
    s_barrier
    """)
    tmp=[DS,DS+8,A[0],O]
    for half in range(2):
        for v in range(4):
            off=QP+v*2048+half*512
            a(f"ds_read_b128 v[{tmp[v]}:{tmp[v]+3}], v7 offset:{off}")
            a(f"ds_read_b128 v[{tmp[v]+4}:{tmp[v]+7}], v7 offset:{off+16}")
        a("s_waitcnt lgkmcnt(0)")
        for e in range(8):
            a(f"v_add_f32 v{tmp[0]+e}, v{tmp[0]+e}, v{tmp[1]+e}")
            a(f"v_add_f32 v{tmp[2]+e}, v{tmp[2]+e}, v{tmp[3]+e}")
            a(f"v_add_f32 v{tmp[0]+e}, v{tmp[0]+e}, v{tmp[2]+e}")
        for e in range(4):
            a(f"v_cvt_pk_bf16_f32 v{Q+half*4+e}, v{tmp[0]+2*e}, v{tmp[0]+2*e+1}")
    for i in range(8): a(f"v_mov_b32 v{O+i}, 0")
    W=16*NB-1
    a.flush()
    a.label(L('loop'))
    for nb in range(NB):
        a.comment(f"---- sub-iteration {nb}: K tile")
        for j in range(8):
            kk,h=j>>1,j&1; r=Kr(nb,j); d=DS+kk*4
            a(f"s_waitcnt vmcnt({W})")
            c="0" if h==0 else f"v[{d}:{d+3}]"
            a(f"v_mfma_f32_16x16x32_bf16 v[{d}:{d+3}], v[{r}:{r+3}], v[{Q+h*4}:{Q+h*4+3}], {c}")
            ldK(nb,j)
        for kk in range(4):
            d=DS+kk*4; s=S+kk
            a(f"v_mov_b32_dpp v{s}, v{d} quad_perm:[0,0,0,0] row_mask:0xf bank_mask:0xf")
            for r in range(1,4):
                a(f"v_add_f32_dpp v{s}, v{d+r}, v{s} quad_perm:[{r},{r},{r},{r}] row_mask:0xf bank_mask:0xf")
        if round_scores:
            a(f"""
            v_cvt_pk_bf16_f32 v7, v{S}, v{S+1}
            v_cvt_pk_bf16_f32 v8, v{S+2}, v{S+3}
            v_lshlrev_b32 v{S}, 16, v7
            v_and_b32 v{S+1}, 0xffff0000, v7
            v_lshlrev_b32 v{S+2}, 16, v8
            v_and_b32 v{S+3}, 0xffff0000, v8
            """)
        a(f"""
        v_max3_f32 v7, v{S}, v{S+1}, v{S+2}
        v_max3_f32 v7, v7, v{S+3}, v{vM}
        v_mov_b32 v8, v7
        v_permlane16_swap_b32 v8, v7
        v_max_f32 v7, v7, v8
        v_mov_b32 v8, v7
        v_permlane32_swap_b32 v8, v7
        v_max_f32 v7, v7, v8
        v_sub_f32 v8, v{vM}, v7
        v_mul_f32 v8, s10, v8
        v_exp_f32 v8, v8
        v_mov_b32 v{vM}, v7
        v_mul_f32 v9, s10, v7
        v_mov_b32_dpp v10, v8 row_ror:8 row_mask:0xf bank_mask:0xf
        v_mul_f32 v{vL}, v{vL}, v8
        v_cndmask_b32 v10, v8, v10, s[8:9]
        """)
        for i in range(8): a(f"v_mul_f32 v{O+i}, v{O+i}, v10")
        for kk in range(4):
            a(f"v_fma_f32 v{S+kk}, v{S+kk}, s10, -v9")
        for kk in range(4):
            a(f"v_exp_f32 v{S+kk}, v{S+kk}")
        for kk in range(4):
            Ar=A[kk&1]
            a(f"v_cvt_pk_bf16_f32 v11, v{S+kk}, v{S+kk}")
            a(f"v_add_f32 v{vL}, v{vL}, v{S+kk}")
            for r in range(4): a(f"v_and_b32 v{Ar+r}, v11, v{MASK+r}")
            for h in range(2):
                j=kk*2+h; r=Vr(nb,j); o=O+h*4
                a(f"s_waitcnt vmcnt({W})")
                a(f"v_mfma_f32_16x16x32_bf16 v[{o}:{o+3}], v[{Ar}:{Ar+3}], v[{r}:{r+3}], v[{o}:{o+3}]")
                ldV(nb,j)
        a(f"""
        s_add_u32 s6, s6, 0x80000
        s_add_u32 s11, s11, 1
        s_cmp_eq_u32 s11, {NIT-NB}
        s_cselect_b32 s42, 0, s42
        s_cselect_b32 s46, 0, s46
        s_cmp_eq_u32 s11, {NIT}
        """)
        if nb<NB-1: a(f"s_cbranch_scc1 {L('sdone')}")
        else: a(f"s_cbranch_scc0 {L('loop')}")
    a.label(L('sdone'))
    a(f"""
    v_mov_b32 v8, v{vL}
    v_permlane16_swap_b32 v8, v{vL}
    v_add_f32 v{vL}, v{vL}, v8
    v_mov_b32 v8, v{vL}
    v_permlane32_swap_b32 v8, v{vL}
    v_add_f32 v{vL}, v{vL}, v8
    v_lshrrev_b32 v7, 5, v0
    v_lshlrev_b32 v7, 10, v7
    v_and_b32 v8, 15, v0
    v_lshl_add_u32 v7, v8, 5, v7
    v_bfe_u32 v8, v0, 4, 1
    v_lshl_add_u32 v7, v8, 4, v7
    s_lshl_b32 s7, s3, 11
    v_add_u32 v7, s7, v7
    ds_write_b128 v7, v[{O}:{O+3}] offset:{OP}
    ds_write_b128 v7, v[{O+4}:{O+7}] offset:{OP+512}
    v_bfe_u32 v8, v0, 3, 1
    v_lshlrev_b32 v8, 5, v8
    s_lshl_b32 s7, s3, 2
    v_add_u32 v8, s7, v8
    ds_write_b32 v8, v{vM} offset:{ML}
    ds_write_b32 v8, v{vL} offset:{ML+16}
    s_waitcnt lgkmcnt(0)
    s_barrier
    s_cmp_ge_u32 s3, 2
    s_cbranch_scc1 {L('end')}
    """)
    if skip_tail: a(f"s_branch {L('end')}")
    a(f"""
    s_lshl_b32 s7, s3, 10
    v_lshlrev_b32 v7, 4, v0
    v_add_u32 v7, s7, v7
    s_lshl_b32 s7, s3, 5
    v_mov_b32 v8, s7
    ds_read_b128 v[{Q}:{Q+3}], v8 offset:{ML}
    ds_read_b128 v[{Q+4}:{Q+7}], v8 offset:{ML+16}
    """)
    for w in range(4): a(f"ds_read_b128 v[{DS+4*w}:{DS+4*w+3}], v7 offset:{OP+w*2048}")
    a(f"""
    s_mov_b32 s48, s38
    s_mov_b32 s49, s39
    s_mov_b32 s50, {256*INB}
    s_mov_b32 s51, 0x20000
    s_lshl_b32 s7, s4, 4
    s_lshl_b32 s12, s3, 3
    s_add_u32 s7, s7, s12
    s_lshl_b32 s7, s7, 13
    v_lshrrev_b32 v9, 3, v0
    v_lshlrev_b32 v9, 13, v9
    s_lshl_b32 s12, s5, 7
    s_add_u32 s12, s12, s7
    v_and_b32 v10, 7, v0
    v_lshl_add_u32 v11, v10, 4, v9
    s_lshl_b32 s13, s5, 3
    s_add_u32 s13, s13, s7
    v_cmp_eq_u32 vcc, 0, v10
    s_waitcnt lgkmcnt(4)
    v_max3_f32 v12, v{Q}, v{Q+1}, v{Q+2}
    v_max_f32 v12, v12, v{Q+3}
    """)
    for w in range(4): a(f"v_sub_f32 v{Q+w}, v{Q+w}, v12")
    for w in range(4): a(f"v_mul_f32 v{Q+w}, s10, v{Q+w}")
    for w in range(4): a(f"v_exp_f32 v{Q+w}, v{Q+w}")
    a(f"v_mul_f32 v13, v{Q}, v{Q+4}")
    for w in range(1,4): a(f"v_fmac_f32 v13, v{Q+w}, v{Q+4+w}")
    a("s_waitcnt lgkmcnt(0)")
    for e in range(4):
        a(f"v_mul_f32 v{O+e}, v{Q}, v{DS+e}")
        for w in range(1,4): a(f"v_fmac_f32 v{O+e}, v{Q+w}, v{DS+4*w+e}")
    for e in range(4): a(f"v_min_u32 v{O+e}, -2, v{O+e}")
    a(f"""
    v_min_u32 v12, -2, v12
    v_min_u32 v13, -2, v13
    buffer_store_dwordx4 v[{O}:{O+3}], v11, s[48:51], s12 offen sc1
    s_and_saveexec_b64 s[14:15], vcc
    buffer_store_dwordx2 v[12:13], v9, s[48:51], s13 offen offset:{H1ML} sc1
    s_endpgm
    """)
    HA=[20,24]; ACC=28; COEF=44; HR=64; NR=48
    a.label(L('helper'))
    a(f"""
    s_sub_u32 s3, s3, 4
    s_and_b32 s6, s4, 7
    s_lshr_b32 s7, s4, 3
    v_and_b32 v1, 31, v0
    v_lshlrev_b32 v1, 2, v1
    v_lshrrev_b32 v2, 5, v0
    v_mul_u32_u24 v2, 896, v2
    v_add_u32 v1, v1, v2
    v_lshrrev_b32 v2, 4, v0
    v_mul_u32_u24 v2, {28*8192}, v2
    v_and_b32 v3, 15, v0
    v_lshl_add_u32 v2, v3, 4, v2
    s_mul_i32 s8, s3, {112*8192}
    s_lshl_b32 s9, s6, 10
    s_add_u32 s8, s8, s9
    s_mov_b32 s42, 1792
    s_mov_b32 s43, 0x20000
    s_mov_b32 s46, {448*8192}
    s_mov_b32 s47, 0x20000
    s_mov_b32 s10, {f32(CEXP)}
    s_waitcnt lgkmcnt(0)
    s_mov_b32 s40, s16
    s_mov_b32 s41, s17
    s_mov_b32 s44, s22
    s_mov_b32 s45, s23
    """)
    XD=ACC
    for i in range(7): a(f"buffer_load_dword v{XD+i}, v1, s[40:43], 0 offen offset:{i*128}")
    wqf=" nt" if wq_nt else ""
    def ldQ(kk,sg):
        r=HR+((kk*4+sg)%NR)*4
        a(f"buffer_load_dwordx4 v[{r}:{r+3}], v2, s[44:47], s8 offen offset:{sg*256}{wqf}")
        if sg==3: a("s_add_u32 s8, s8, 0x2000")
    PRE=NR//4
    if not skip_q:
        for kk in range(PRE):
            for sg in range(4): ldQ(kk,sg)
    masks()
    a(f"s_waitcnt vmcnt({0 if skip_q else NR})")
    XF=COEF
    for i in range(7):
        a(f"v_lshlrev_b32 v{XF+2*i}, 16, v{XD+i}")
        a(f"v_and_b32 v{XF+2*i+1}, 0xffff0000, v{XD+i}")
    def red32(r,t,op="v_add_f32"):
        for m in ("quad_perm:[1,0,3,2]","quad_perm:[2,3,0,1]","row_half_mirror","row_mirror"):
            a(f"{op}_dpp v{r}, v{r}, v{r} {m} row_mask:0xf bank_mask:0xf")
        a(f"v_mov_b32 v{t}, v{r}\nv_permlane16_swap_b32 v{t}, v{r}\n{op} v{r}, v{r}, v{t}")
    def div448(r,t):
        a(f"""
        v_mul_f32 v{t}, {f32(1/448)}, v{r}
        v_fma_f32 v{r}, v{t}, s11, v{r}
        v_fmac_f32 v{t}, {f32(1/448)}, v{r}
        v_mov_b32 v{r}, v{t}
        """)
    a(f"s_mov_b32 s11, {f32(-448.0)}")
    a(f"v_add_f32 v4, v{XF}, v{XF+1}")
    for i in range(2,14): a(f"v_add_f32 v4, v4, v{XF+i}")
    red32(4,5)
    div448(4,5)
    a(f"v_sub_f32 v6, v{XF}, v4\nv_mul_f32 v5, v6, v6")
    for i in range(1,14): a(f"v_sub_f32 v6, v{XF+i}, v4\nv_fmac_f32 v5, v6, v6")
    red32(5,6)
    div448(5,6)
    a(f"""
    v_cvt_pk_bf16_f32 v4, v4, v5
    v_and_b32 v5, 0xffff0000, v4
    v_lshlrev_b32 v4, 16, v4
    v_add_f32 v5, {f32(1e-5)}, v5
    v_cvt_pk_bf16_f32 v5, v5, v5
    v_lshlrev_b32 v5, 16, v5
    v_sqrt_f32 v5, v5
    v_cvt_pk_bf16_f32 v5, v5, v5
    v_lshlrev_b32 v5, 16, v5
    v_rcp_f32 v5, v5
    """)
    for i in range(14): a(f"v_sub_f32 v{XF+i}, v{XF+i}, v4")
    for i in range(7):
        a(f"v_cvt_pk_bf16_f32 v{XD+i}, v{XF+2*i}, v{XF+2*i+1}")
    for i in range(7):
        a(f"v_lshlrev_b32 v{XF+2*i}, 16, v{XD+i}")
        a(f"v_and_b32 v{XF+2*i+1}, 0xffff0000, v{XD+i}")
    for i in range(14): a(f"v_mul_f32 v{XF+i}, v{XF+i}, v5")
    for i in range(14): a(f"v_cvt_pk_bf16_f32 v{XF+i}, v{XF+i}, v{XF+i}")
    a(f"""
    v_lshlrev_b32 v1, 1, v1
    """)
    for i in range(7): a(f"ds_write_b64 v1, v[{XF+2*i}:{XF+2*i+1}] offset:{XN+i*256}")
    a(f"""
    v_lshrrev_b32 v4, 4, v0
    v_mul_u32_u24 v4, 112, v4
    s_mul_i32 s11, s7, 1792
    s_mul_i32 s12, s3, 448
    s_add_u32 s11, s11, s12
    v_add_u32 v4, s11, v4
    s_waitcnt lgkmcnt(0)
    """)
    for i in range(4): a(f"ds_read_b128 v[{COEF+4*i}:{COEF+4*i+3}], v4 offset:{XN+16*i}")
    a("s_waitcnt lgkmcnt(0)")
    if not skip_q:
        issued=NR;
        for kk in range(28):
            Ar=HA[kk&1]
            if kk==16: a("s_waitcnt lgkmcnt(0)")
            for r in range(4): a(f"v_and_b32 v{Ar+r}, v{COEF+(kk%16)}, v{MASK+r}")
            if kk==15:
                for i in range(3): a(f"ds_read_b128 v[{COEF+4*i}:{COEF+4*i+3}], v4 offset:{XN+64+16*i}")
            for sg in range(4):
                idx=kk*4+sg; r=HR+(idx%NR)*4; d=ACC+sg*4
                a(f"s_waitcnt vmcnt({issued-idx-1})")
                c="0" if kk==0 else f"v[{d}:{d+3}]"
                a(f"v_mfma_f32_16x16x32_bf16 v[{d}:{d+3}], v[{Ar}:{Ar+3}], v[{r}:{r+3}], {c}")
                if kk+PRE<28:
                    ldQ(kk+PRE,sg); issued+=1
    else:
        for i in range(16): a(f"v_mov_b32 v{ACC+i}, 1.0")
    a(f"""
    v_and_b32 v5, 15, v0
    v_lshlrev_b32 v5, 5, v5
    v_bfe_u32 v6, v0, 4, 1
    v_lshl_add_u32 v5, v6, 4, v5
    s_lshl_b32 s11, s3, 11
    v_add_u32 v5, s11, v5
    """)
    for sg in range(4): a(f"ds_write_b128 v5, v[{ACC+4*sg}:{ACC+4*sg+3}] offset:{QP+sg*512}")
    a(f"""
    s_waitcnt lgkmcnt(0)
    s_barrier
    s_mov_b32 s48, s38
    s_mov_b32 s49, s39
    s_mov_b32 s50, {256*INB}
    s_mov_b32 s51, 0x20000
    s_mov_b32 s64, s36
    s_mov_b32 s65, s37
    s_mov_b32 s66, 256
    s_mov_b32 s67, 0x20000
    s_lshl_b32 s68, s4, 4
    s_add_u32 s68, s68, s5
    s_and_b32 s69, s68, 127
    s_lshl_b32 s68, s68, 13
    s_cmp_eq_u32 s3, 3
    s_cbranch_scc1 {L('h3')}
    s_cmp_lg_u32 s3, 0
    s_cbranch_scc1 {L('wo')}
    s_cmp_ge_u32 s2, 28
    s_cbranch_scc1 {L('wo')}
    """)
    def wait_counter(tag):
        a(f"s_mov_b32 s70, 0")
        a.label(L('wc'+tag))
        a(f"""
        buffer_load_dword v5, off, s[64:67], 0 sc1
        s_waitcnt vmcnt(0)
        v_readfirstlane_b32 s71, v5
        s_add_u32 s70, s70, 1
        s_cmp_ge_u32 s70, {spin_max}
        s_cbranch_scc1 {L('wd'+tag)}
        s_cmp_ge_u32 s71, 256
        s_cbranch_scc1 {L('wd'+tag)}
        s_sleep 8
        s_branch {L('wc'+tag)}
        """)
        a.label(L('wd'+tag))
    a(f"""
    v_lshrrev_b32 v4, 4, v0
    v_mul_u32_u24 v5, {112*3584}, v4
    v_and_b32 v6, 7, v0
    v_lshl_add_u32 v5, v6, 4, v5
    s_lshl_b32 s11, s2, 7
    v_add_u32 v5, s11, v5
    v_and_b32 v6, 8, v0
    v_cmp_ne_u32 vcc, 0, v6
    v_mov_b32 v6, s28
    v_mov_b32 v7, s30
    v_cndmask_b32 v6, v6, v7, vcc
    v_mov_b32 v7, s29
    v_mov_b32 v8, s31
    v_cndmask_b32 v7, v7, v8, vcc
    v_add_co_u32 v6, vcc, v6, v5
    v_addc_co_u32 v7, vcc, 0, v7, vcc
    v_bfe_u32 v8, v0, 3, 1
    v_mul_u32_u24 v8, 1792, v8
    v_mul_u32_u24 v9, 448, v4
    v_add_u32 v8, v8, v9
    s_mov_b32 s11, 0
    v_mov_b32 v{ACC}, 0
    v_mov_b32 v{ACC+1}, 0
    v_mov_b32 v{ACC+2}, 0
    v_mov_b32 v{ACC+3}, 0
    """)
    FC=HR+28*4
    a.flush()
    a.label(L('ffn1'))
    for i in range(28):
        r=HR+i*4
        a(f"global_load_dwordx4 v[{r}:{r+3}], v[6:7], off{' offset:3584' if i&1 else ''} nt")
        if i&1: a("v_add_co_u32 v6, vcc, 0x1c00, v6\nv_addc_co_u32 v7, vcc, 0, v7, vcc")
    for i in range(7): a(f"ds_read_b128 v[{FC+4*i}:{FC+4*i+3}], v8 offset:{XN+16*i}")
    a("v_add_u32 v8, 112, v8\ns_waitcnt lgkmcnt(0)")
    for i in range(28):
        Ar=HA[i&1]; r=HR+i*4
        for q in range(4): a(f"v_and_b32 v{Ar+q}, v{FC+i}, v{MASK+q}")
        a(f"s_waitcnt vmcnt({27-i})")
        a(f"v_mfma_f32_16x16x32_bf16 v[{ACC}:{ACC+3}], v[{Ar}:{Ar+3}], v[{r}:{r+3}], v[{ACC}:{ACC+3}]")
    a(f"""
    s_add_u32 s11, s11, 1
    s_cmp_lt_u32 s11, 4
    s_cbranch_scc1 {L('ffn1')}
    """)
    a(f"""
    s_mov_b32 s56, s32
    s_mov_b32 s57, s33
    s_mov_b32 s58, {1792*896}
    s_mov_b32 s59, 0x20000
    v_mul_u32_u24 v5, {16*896}, v4
    v_and_b32 v6, 15, v0
    v_lshl_add_u32 v5, v6, 4, v5
    s_mul_i32 s11, s2, {64*896}
    """)
    def ldW2(i):
        kk,sg=i>>2,i&3; r=HR+(i%32)*4
        a(f"buffer_load_dwordx4 v[{r}:{r+3}], v5, s[56:59], s11 offen offset:{(kk&3)*896+sg*256} nt")
        if (i&15)==15: a(f"s_add_u32 s11, s11, {4*896}")
    for i in range(32): ldW2(i)
    G=ACC+4; U=ACC+8
    for q in range(4):
        a(f"v_mov_b32_dpp v{U+q}, v{ACC+q} row_ror:8 row_mask:0xf bank_mask:0xf")
    for q in range(4):
        a(f"""
        v_cvt_pk_bf16_f32 v{G+q}, v{ACC+q}, v{U+q}
        v_and_b32 v{U+q}, 0xffff0000, v{G+q}
        v_lshlrev_b32 v{G+q}, 16, v{G+q}
        v_mul_f32 v9, {f32(-math.log2(math.e))}, v{G+q}
        v_exp_f32 v9, v9
        v_add_f32 v9, 1.0, v9
        v_rcp_f32 v9, v9
        v_mul_f32 v9, v9, v{G+q}
        v_cvt_pk_bf16_f32 v9, v9, v9
        v_lshlrev_b32 v9, 16, v9
        v_mul_f32 v9, v9, v{U+q}
        v_cvt_pk_bf16_f32 v{G+q}, v9, v9
        """)
    a(f"""
    v_lshrrev_b32 v9, 5, v0
    v_lshlrev_b32 v9, 8, v9
    v_and_b32 v10, 7, v0
    v_lshl_add_u32 v9, v10, 5, v9
    v_bfe_u32 v10, v0, 4, 1
    v_lshl_add_u32 v9, v10, 4, v9
    v_and_b32 v10, 8, v0
    v_cmp_eq_u32 vcc, 0, v10
    s_and_saveexec_b64 s[14:15], vcc
    ds_write_b128 v9, v[{G}:{G+3}] offset:{HB}
    s_mov_b64 exec, s[14:15]
    v_bfe_u32 v9, v0, 3, 1
    v_lshlrev_b32 v9, 8, v9
    v_lshl_add_u32 v9, v4, 6, v9
    s_waitcnt lgkmcnt(0)
    """)
    for i in range(4): a(f"ds_read_b128 v[{COEF+4*i}:{COEF+4*i+3}], v9 offset:{HB+16*i}")
    a("s_waitcnt lgkmcnt(0)")
    issued=32
    for kk in range(16):
        Ar=HA[kk&1]
        for q in range(4): a(f"v_and_b32 v{Ar+q}, v{COEF+kk}, v{MASK+q}")
        for sg in range(4):
            i=kk*4+sg; r=HR+(i%32)*4; d=ACC+sg*4
            a(f"s_waitcnt vmcnt({issued-i-1})")
            c="0" if kk==0 else f"v[{d}:{d+3}]"
            a(f"v_mfma_f32_16x16x32_bf16 v[{d}:{d+3}], v[{Ar}:{Ar+3}], v[{r}:{r+3}], {c}")
            if i+32<64: ldW2(i+32); issued+=1
    wait_counter('f')
    a(f"""
    v_lshrrev_b32 v9, 5, v0
    v_lshlrev_b32 v9, 7, v9
    v_and_b32 v10, 15, v0
    v_lshl_add_u32 v9, v10, 1, v9
    v_bfe_u32 v11, v0, 4, 1
    v_add_u32 v9, v9, v11
    v_lshlrev_b32 v9, 13, v9
    s_lshl_b32 s11, s2, 4
    s_add_u32 s11, s11, {H3}
    v_cmp_gt_u32 vcc, 8, v10
    """)
    for i in range(16): a(f"v_min_u32 v{ACC+i}, -2, v{ACC+i}")
    for sg in range(4):
        if sg==3: a("s_and_saveexec_b64 s[14:15], vcc")
        a(f"buffer_store_dwordx4 v[{ACC+4*sg}:{ACC+4*sg+3}], v9, s[48:51], s11 offen sc1")
        if sg<3: a(f"s_add_u32 s11, s11, {32*INB}")
    a(f"s_mov_b64 exec, s[14:15]\ns_branch {L('wo')}")
    a.label(L('h3'))
    a(f"""
    v_mov_b32 v4, -1
    v_mov_b32 v5, -1
    v_mov_b32 v6, -1
    v_mov_b32 v7, -1
    v_lshlrev_b32 v8, 4, v0
    v_add_u32 v9, 0x1000, v8
    """)
    for i in range(7):
        a(f"buffer_store_dwordx4 v[4:7], v{8+(i>>2)}, s[48:51], s68 offen offset:{(i&3)*1024} sc1")
    a(f"""
    v_mov_b32 v10, 1
    s_waitcnt vmcnt(0)
    s_mov_b64 s[14:15], exec
    s_mov_b64 exec, 1
    buffer_atomic_add v10, off, s[64:67], 0
    s_mov_b64 exec, s[14:15]
    """)
    wait_counter('3')
    BF=56
    a(f"""
    s_cmp_ge_u32 s69, 112
    s_cbranch_scc1 {L('wo')}
    s_lshl_b32 s11, s69, 3
    s_mul_i32 s12, s7, 896
    s_add_u32 s11, s11, s12
    buffer_load_dwordx2 v[12:13], off, s[40:43], s11
    v_mov_b32 v{BF}, 0
    v_mov_b32 v{BF+1}, 0
    v_mov_b32 v{BF+2}, 0
    v_mov_b32 v{BF+3}, 0
    v_cmp_gt_u32 vcc, 28, v0
    s_and_saveexec_b64 s[14:15], vcc
    s_mov_b32 s70, 0
    """)
    a.flush()
    a.label(L('p3'))
    a(f"""
    buffer_load_dwordx4 v[{BF}:{BF+3}], v9, s[48:51], s68 offen offset:{H3-4096} sc1
    s_waitcnt vmcnt(0)
    v_max3_u32 v10, v{BF}, v{BF+1}, v{BF+2}
    v_max_u32 v10, v10, v{BF+3}
    v_cmp_eq_u32 vcc, -1, v10
    s_add_u32 s70, s70, 1
    s_cmp_ge_u32 s70, {spin_max}
    s_cbranch_scc1 {L('p3d')}
    s_cbranch_vccz {L('p3d')}
    s_sleep 32
    s_branch {L('p3')}
    """)
    a.label(L('p3d'))
    a("s_mov_b64 exec, s[14:15]")
    def red64(base,t):
        for m in ("quad_perm:[1,0,3,2]","quad_perm:[2,3,0,1]","row_half_mirror","row_mirror"):
            for q in range(4): a(f"v_add_f32_dpp v{base+q}, v{base+q}, v{base+q} {m} row_mask:0xf bank_mask:0xf")
        for sw in ("v_permlane16_swap_b32","v_permlane32_swap_b32"):
            for q in range(4): a(f"v_mov_b32 v{t+q}, v{base+q}")
            for q in range(4): a(f"{sw} v{t+q}, v{base+q}")
            for q in range(4): a(f"v_add_f32 v{base+q}, v{base+q}, v{t+q}")
    red64(BF,4)
    a(f"""
    v_cvt_pk_bf16_f32 v4, v{BF}, v{BF+1}
    v_cvt_pk_bf16_f32 v5, v{BF+2}, v{BF+3}
    v_lshlrev_b32 v{BF}, 16, v4
    v_and_b32 v{BF+1}, 0xffff0000, v4
    v_lshlrev_b32 v{BF+2}, 16, v5
    v_and_b32 v{BF+3}, 0xffff0000, v5
    v_lshlrev_b32 v{BF+4}, 16, v12
    v_and_b32 v{BF+5}, 0xffff0000, v12
    v_lshlrev_b32 v{BF+6}, 16, v13
    v_and_b32 v{BF+7}, 0xffff0000, v13
    """)
    a.label(L('wo'))
    WO=HR
    a(f"""
    s_mov_b32 s52, s24
    s_mov_b32 s53, s25
    s_mov_b32 s54, {4096*896}
    s_mov_b32 s55, 0x20000
    v_lshrrev_b32 v4, 4, v0
    v_mul_u32_u24 v5, {8*896}, v4
    v_and_b32 v6, 15, v0
    v_lshl_add_u32 v5, v6, 4, v5
    s_lshl_b32 s11, s6, 4
    s_add_u32 s11, s11, s5
    s_mul_i32 s11, s11, {32*896}
    s_lshl_b32 s12, s3, 8
    s_add_u32 s11, s11, s12
    s_add_u32 s12, s11, {4*896}
    """)
    for kk in range(8):
        r=WO+kk*4
        a(f"buffer_load_dwordx4 v[{r}:{r+3}], v5, s[52:55], s{11+(kk>>2)} offen offset:{(kk&3)*896} nt")
    a(f"""
    v_lshlrev_b32 v7, 7, v6
    v_lshl_add_u32 v7, v4, 5, v7
    v_lshlrev_b32 v8, 3, v6
    v_bfe_u32 v9, v0, 4, 1
    v_lshl_add_u32 v9, v6, 1, v9
    s_lshl_b32 s11, s3, 5
    v_add_u32 v9, s11, v9
    v_cmp_gt_u32 vcc, 112, v9
    v_cmp_gt_u32 s[72:73], 32, v0
    s_and_b64 s[72:73], s[72:73], vcc
    s_lshl_b32 s11, s7, 7
    v_add_u32 v9, s11, v9
    v_lshlrev_b32 v9, 13, v9
    s_lshl_b32 s74, s69, 4
    s_add_u32 s74, s74, {H2}
    v_lshlrev_b32 v14, 4, v0
    v_add_u32 v14, 0x1000, v14
    s_waitcnt vmcnt(0)
    s_barrier
    s_mov_b32 s70, 0
    """)
    if skip_tail: a(f"s_branch {L('end')}")
    PO=ACC
    a.flush()
    a.label(L('p1'))
    a(f"""
    buffer_load_dwordx4 v[{PO}:{PO+3}], v7, s[48:51], s68 offen sc1
    buffer_load_dwordx4 v[{PO+4}:{PO+7}], v7, s[48:51], s68 offen offset:16 sc1
    buffer_load_dwordx2 v[10:11], v8, s[48:51], s68 offen offset:{H1ML} sc1
    s_waitcnt vmcnt(0)
    v_max3_u32 v12, v{PO}, v{PO+1}, v{PO+2}
    v_max3_u32 v12, v12, v{PO+3}, v{PO+4}
    v_max3_u32 v12, v12, v{PO+5}, v{PO+6}
    v_max3_u32 v12, v12, v{PO+7}, v10
    v_max_u32 v12, v12, v11
    v_cmp_eq_u32 vcc, -1, v12
    s_add_u32 s70, s70, 1
    s_cmp_ge_u32 s70, {spin_max}
    s_cbranch_scc1 {L('p1d')}
    s_cbranch_vccnz {L('p1')}
    """)
    a.label(L('p1d'))
    R16=("quad_perm:[1,0,3,2]","quad_perm:[2,3,0,1]","row_half_mirror","row_mirror")
    a("v_mov_b32 v12, v10")
    for m in R16: a(f"v_max_f32_dpp v12, v12, v12 {m} row_mask:0xf bank_mask:0xf")
    a(f"""
    v_sub_f32 v10, v10, v12
    v_mul_f32 v10, s10, v10
    v_exp_f32 v10, v10
    v_mul_f32 v11, v11, v10
    """)
    for q in range(8): a(f"v_mul_f32 v{PO+q}, v{PO+q}, v10")
    for m in R16:
        a(f"v_add_f32_dpp v11, v11, v11 {m} row_mask:0xf bank_mask:0xf")
        for q in range(8): a(f"v_add_f32_dpp v{PO+q}, v{PO+q}, v{PO+q} {m} row_mask:0xf bank_mask:0xf")
    a("v_rcp_f32 v11, v11")
    for q in range(8): a(f"v_mul_f32 v{PO+q}, v{PO+q}, v11")
    for q in range(8): a(f"v_cvt_pk_bf16_f32 v{PO+q}, v{PO+q}, v{PO+q}")
    D=ACC+8
    for kk in range(8):
        Ar=HA[kk&1]; r=WO+kk*4
        for q in range(4): a(f"v_and_b32 v{Ar+q}, v{PO+kk}, v{MASK+q}")
        c="0" if kk==0 else f"v[{D}:{D+3}]"
        a(f"v_mfma_f32_16x16x32_bf16 v[{D}:{D+3}], v[{Ar}:{Ar+3}], v[{r}:{r+3}], {c}")
    for q in range(4): a(f"v_min_u32 v{D+q}, -2, v{D+q}")
    a(f"""
    s_mov_b64 s[14:15], exec
    s_mov_b64 exec, s[72:73]
    buffer_store_dwordx4 v[{D}:{D+3}], v9, s[48:51], s74 offen sc1
    s_mov_b64 exec, s[14:15]
    s_cmp_lg_u32 s3, 3
    s_cbranch_scc1 {L('end')}
    s_cmp_ge_u32 s69, 112
    s_cbranch_scc1 {L('end')}
    s_mov_b32 s60, s34
    s_mov_b32 s61, s35
    s_mov_b32 s62, 1792
    s_mov_b32 s63, 0x20000
    s_lshl_b32 s11, s69, 3
    s_mul_i32 s12, s7, 896
    s_add_u32 s11, s11, s12
    s_mov_b32 s70, 0
    """)
    P2=COEF
    a.flush()
    a.label(L('p2'))
    a(f"""
    buffer_load_dwordx4 v[{P2}:{P2+3}], v14, s[48:51], s68 offen sc1
    buffer_load_dwordx4 v[{P2+4}:{P2+7}], v14, s[48:51], s68 offen offset:1024 sc1
    s_waitcnt vmcnt(0)
    v_max3_u32 v12, v{P2}, v{P2+1}, v{P2+2}
    v_max3_u32 v12, v12, v{P2+3}, v{P2+4}
    v_max3_u32 v12, v12, v{P2+5}, v{P2+6}
    v_max_u32 v12, v12, v{P2+7}
    v_cmp_eq_u32 vcc, -1, v12
    s_add_u32 s70, s70, 1
    s_cmp_ge_u32 s70, {spin_max}
    s_cbranch_scc1 {L('p2d')}
    s_cbranch_vccnz {L('p2')}
    """)
    a.label(L('p2d'))
    for q in range(4): a(f"v_add_f32 v{P2+q}, v{P2+q}, v{P2+4+q}")
    red64(P2,4)
    a(f"""
    v_cvt_pk_bf16_f32 v4, v{P2}, v{P2+1}
    v_cvt_pk_bf16_f32 v5, v{P2+2}, v{P2+3}
    v_lshlrev_b32 v{P2}, 16, v4
    v_and_b32 v{P2+1}, 0xffff0000, v4
    v_lshlrev_b32 v{P2+2}, 16, v5
    v_and_b32 v{P2+3}, 0xffff0000, v5
    """)
    for q in range(4): a(f"v_add_f32 v{P2+q}, v{P2+q}, v{BF+4+q}")
    a(f"""
    v_cvt_pk_bf16_f32 v4, v{P2}, v{P2+1}
    v_cvt_pk_bf16_f32 v5, v{P2+2}, v{P2+3}
    v_lshlrev_b32 v{P2}, 16, v4
    v_and_b32 v{P2+1}, 0xffff0000, v4
    v_lshlrev_b32 v{P2+2}, 16, v5
    v_and_b32 v{P2+3}, 0xffff0000, v5
    """)
    for q in range(4): a(f"v_add_f32 v{P2+q}, v{P2+q}, v{BF+q}")
    a(f"""
    v_cvt_pk_bf16_f32 v4, v{P2}, v{P2+1}
    v_cvt_pk_bf16_f32 v5, v{P2+2}, v{P2+3}
    s_mov_b64 exec, 1
    buffer_store_dwordx2 v[4:5], off, s[60:63], s11
    """)
    a.label(L('end'))
    a("s_endpgm")
    kd=f""".p2align 6
.amdhsa_kernel {K}
  .amdhsa_next_free_vgpr 256
  .amdhsa_next_free_sgpr 80
  .amdhsa_accum_offset 256
  .amdhsa_group_segment_fixed_size 0
  .amdhsa_kernarg_size 96
  .amdhsa_user_sgpr_count 2
  .amdhsa_user_sgpr_kernarg_segment_ptr 1
  .amdhsa_system_sgpr_workgroup_id_x 1
  .amdhsa_float_denorm_mode_32 3
.end_amdhsa_kernel
"""
    return a.text(), kd, LDS

HDR=open("cdna_kernels/"+NAME+".s.ref").read().split("; @launch")[0]
def write_main(path, **kw):
    t,kd,lds=gen(**kw)
    s=HDR+f"; @launch grid=(256,1,1) block=(512,1,1) lds={lds}\n"
    s+='.amdgcn_target "amdgcn-amd-amdhsa--gfx950"\n.text\n'+t+'.section .rodata,"a"\n'+kd
    open(path,"w").write(s)
if __name__=="__main__":
    write_main("cdna_kernels/"+NAME+".s")
```

```python
import struct, sys, math
from asmlib import Asm
NAME="parallel_sum__gqa_block_cached__glu_gated_swiglu__decode"
def f32(x): return "0x%08x"%struct.unpack("<I",struct.pack("<f",x))[0]

def gen(NB=3, round_scores=True, wq_nt=False, kname=None, skip_q=False, skip_tail=False, spin_max=1<<22):
    a=Asm()
    K=kname or NAME+"_kernel"
    L=lambda s: f"L_{K[-12:]}_{s}" if kname else f"L_{s}"
    CEXP=math.log2(math.e)/16.0
    XN=0
    QP=3584
    OP=QP+8192
    ML=OP+8192
    HB=ML+64
    LDS=HB+512
    INB=8192
    H1ML=2048; H2=4096; H3=6144
    NIT=32
    def stamp(i):
        if stamps: a(f"s_memrealtime s[{80+2*i}:{81+2*i}]\ns_waitcnt lgkmcnt(0)")
    a.raw(f".globl {K}\n.p2align 8\n.type {K},@function\n{K}:")
    a(f"""
    s_cmp_ge_u32 s2, 256
    s_cbranch_scc1 {L('end')}
    s_load_dwordx16 s[16:31], s[0:1], 0
    s_load_dwordx8 s[32:39], s[0:1], 64
    v_lshrrev_b32 v1, 6, v0
    v_and_b32 v0, 63, v0
    v_readfirstlane_b32 s3, v1
    s_and_b32 s4, s2, 15
    s_lshr_b32 s5, s2, 4
    """)
    if stamps:
        for i in range(80,96): a(f"s_mov_b32 s{i}, 0")
        a("s_mov_b32 s96, s3")
    stamp(0)
    a(f"""
    s_cmp_ge_u32 s3, 4
    s_cbranch_scc1 {L('helper')}
    """)
    KO=[1,2]; VO=[3,4]; vM=5; vL=6; T=list(range(7,16))
    MASK=16; Q=20; O=28; DS=36; A=[52,56]; S=60; RING=64
    Kr=lambda nb,j: RING+nb*64+j*4
    Vr=lambda nb,j: RING+nb*64+32+j*4
    a(f"""
    v_and_b32 v1, 3, v0
    v_lshlrev_b32 v1, 4, v1
    v_lshrrev_b32 v7, 4, v0
    v_lshl_add_u32 v1, v7, 6, v1
    v_bfe_u32 v8, v0, 2, 2
    v_lshl_add_u32 v1, v8, 9, v1
    v_add_u32 v2, 0x1000, v1
    v_and_b32 v3, 15, v0
    v_lshlrev_b32 v3, 4, v3
    v_lshl_add_u32 v3, v7, 9, v3
    v_add_u32 v4, 0x1000, v3
    s_lshl_b32 s6, s4, 24
    s_lshl_b32 s7, s5, 2
    s_add_u32 s7, s7, s3
    s_lshl_b32 s7, s7, 13
    s_add_u32 s6, s6, s7
    s_mov_b32 s42, 0x10000000
    s_mov_b32 s43, 0x20000
    s_mov_b32 s46, 0x10000000
    s_mov_b32 s47, 0x20000
    s_waitcnt lgkmcnt(0)
    s_mov_b32 s40, s18
    s_mov_b32 s41, s19
    s_mov_b32 s44, s20
    s_mov_b32 s45, s21
    """)
    def ldK(nb,j):
        kk,h=j>>1,j&1; r=Kr(nb,j)
        a(f"buffer_load_dwordx4 v[{r}:{r+3}], v{KO[kk>>1]}, s[40:43], s6 offen offset:{(kk&1)*2048+h*256} nt")
    def ldV(nb,j):
        kk,h=j>>1,j&1; r=Vr(nb,j)
        a(f"buffer_load_dwordx4 v[{r}:{r+3}], v{VO[kk>>1]}, s[44:47], s6 offen offset:{(kk&1)*2048+h*256} nt")
    for nb in range(NB):
        for j in range(8): ldK(nb,j)
        for j in range(8): ldV(nb,j)
        a("s_add_u32 s6, s6, 0x80000")
    def masks():
        a(f"""
        v_and_b32 v7, 1, v0
        v_cmp_eq_u32 vcc, 1, v7
        v_mov_b32 v8, 0xffff
        v_mov_b32 v9, 0xffff0000
        v_cndmask_b32 v8, v8, v9, vcc
        v_bfe_u32 v7, v0, 1, 2
        """)
        for r in range(4):
            a(f"v_cmp_eq_u32 vcc, {r}, v7\nv_cndmask_b32 v{MASK+r}, 0, v8, vcc")
    masks()
    a(f"""
    v_lshrrev_b32 v7, 2, v0
    v_xor_b32 v7, v7, v0
    v_and_b32 v7, 8, v7
    v_cmp_ne_u32 s[8:9], 0, v7
    s_mov_b32 s10, {f32(CEXP)}
    s_mov_b32 s11, 0
    v_mov_b32 v{vM}, 0xff7fffff
    v_mov_b32 v{vL}, 0
    """)
    a(f"""
    v_bfe_u32 v7, v0, 3, 1
    v_lshlrev_b32 v7, 10, v7
    v_lshrrev_b32 v8, 4, v0
    v_lshl_add_u32 v7, v8, 7, v7
    v_and_b32 v8, 3, v0
    v_lshl_add_u32 v7, v8, 5, v7
    s_barrier
    """)
    stamp(1)
    tmp=[DS,DS+8,A[0],O]
    for half in range(2):
        for v in range(4):
            off=QP+v*2048+half*512
            a(f"ds_read_b128 v[{tmp[v]}:{tmp[v]+3}], v7 offset:{off}")
            a(f"ds_read_b128 v[{tmp[v]+4}:{tmp[v]+7}], v7 offset:{off+16}")
        a("s_waitcnt lgkmcnt(0)")
        for e in range(8):
            a(f"v_add_f32 v{tmp[0]+e}, v{tmp[0]+e}, v{tmp[1]+e}")
            a(f"v_add_f32 v{tmp[2]+e}, v{tmp[2]+e}, v{tmp[3]+e}")
            a(f"v_add_f32 v{tmp[0]+e}, v{tmp[0]+e}, v{tmp[2]+e}")
        for e in range(4):
            a(f"v_cvt_pk_bf16_f32 v{Q+half*4+e}, v{tmp[0]+2*e}, v{tmp[0]+2*e+1}")
    for i in range(8): a(f"v_mov_b32 v{O+i}, 0")
    W=16*NB-1
    a.flush()
    a.label(L('loop'))
    for nb in range(NB):
        a.comment(f"---- sub-iteration {nb}: K tile")
        for j in range(8):
            kk,h=j>>1,j&1; r=Kr(nb,j); d=DS+kk*4
            a(f"s_waitcnt vmcnt({W})")
            c="0" if h==0 else f"v[{d}:{d+3}]"
            a(f"v_mfma_f32_16x16x32_bf16 v[{d}:{d+3}], v[{r}:{r+3}], v[{Q+h*4}:{Q+h*4+3}], {c}")
            ldK(nb,j)
        for kk in range(4 if not no_compute else 0):
            d=DS+kk*4; s=S+kk
            a(f"v_mov_b32_dpp v{s}, v{d} quad_perm:[0,0,0,0] row_mask:0xf bank_mask:0xf")
            for r in range(1,4):
                a(f"v_add_f32_dpp v{s}, v{d+r}, v{s} quad_perm:[{r},{r},{r},{r}] row_mask:0xf bank_mask:0xf")
        if round_scores and not no_compute:
            a(f"""
            v_cvt_pk_bf16_f32 v7, v{S}, v{S+1}
            v_cvt_pk_bf16_f32 v8, v{S+2}, v{S+3}
            v_lshlrev_b32 v{S}, 16, v7
            v_and_b32 v{S+1}, 0xffff0000, v7
            v_lshlrev_b32 v{S+2}, 16, v8
            v_and_b32 v{S+3}, 0xffff0000, v8
            """)
        if not no_compute: a(f"""
        v_max3_f32 v7, v{S}, v{S+1}, v{S+2}
        v_max3_f32 v7, v7, v{S+3}, v{vM}
        v_mov_b32 v8, v7
        v_permlane16_swap_b32 v8, v7
        v_max_f32 v7, v7, v8
        v_mov_b32 v8, v7
        v_permlane32_swap_b32 v8, v7
        v_max_f32 v7, v7, v8
        v_sub_f32 v8, v{vM}, v7
        v_mul_f32 v8, s10, v8
        v_exp_f32 v8, v8
        v_mov_b32 v{vM}, v7
        v_mul_f32 v9, s10, v7
        v_mov_b32_dpp v10, v8 row_ror:8 row_mask:0xf bank_mask:0xf
        v_mul_f32 v{vL}, v{vL}, v8
        v_cndmask_b32 v10, v8, v10, s[8:9]
        """)
        for i in range(8 if not no_compute else 0): a(f"v_mul_f32 v{O+i}, v{O+i}, v10")
        for kk in range(4 if not no_compute else 0):
            a(f"v_fma_f32 v{S+kk}, v{S+kk}, s10, -v9")
        for kk in range(4 if not no_compute else 0):
            a(f"v_exp_f32 v{S+kk}, v{S+kk}")
        for kk in range(4):
            Ar=A[kk&1]
            a(f"v_cvt_pk_bf16_f32 v11, v{S+kk}, v{S+kk}")
            a(f"v_add_f32 v{vL}, v{vL}, v{S+kk}")
            for r in range(4): a(f"v_and_b32 v{Ar+r}, v11, v{MASK+r}")
            for h in range(2):
                j=kk*2+h; r=Vr(nb,j); o=O+h*4
                a(f"s_waitcnt vmcnt({W})")
                a(f"v_mfma_f32_16x16x32_bf16 v[{o}:{o+3}], v[{Ar}:{Ar+3}], v[{r}:{r+3}], v[{o}:{o+3}]")
                ldV(nb,j)
        a(f"""
        s_add_u32 s6, s6, 0x80000
        s_add_u32 s11, s11, 1
        s_cmp_eq_u32 s11, {NIT-NB}
        s_cselect_b32 s42, 0, s42
        s_cselect_b32 s46, 0, s46
        s_cmp_eq_u32 s11, {NIT}
        """)
        if nb<NB-1: a(f"s_cbranch_scc1 {L('sdone')}")
        else: a(f"s_cbranch_scc0 {L('loop')}")
    a.label(L('sdone'))
    stamp(2)
    a(f"""
    v_mov_b32 v8, v{vL}
    v_permlane16_swap_b32 v8, v{vL}
    v_add_f32 v{vL}, v{vL}, v8
    v_mov_b32 v8, v{vL}
    v_permlane32_swap_b32 v8, v{vL}
    v_add_f32 v{vL}, v{vL}, v8
    v_lshrrev_b32 v7, 5, v0
    v_lshlrev_b32 v7, 10, v7
    v_and_b32 v8, 15, v0
    v_lshl_add_u32 v7, v8, 5, v7
    v_bfe_u32 v8, v0, 4, 1
    v_lshl_add_u32 v7, v8, 4, v7
    s_lshl_b32 s7, s3, 11
    v_add_u32 v7, s7, v7
    ds_write_b128 v7, v[{O}:{O+3}] offset:{OP}
    ds_write_b128 v7, v[{O+4}:{O+7}] offset:{OP+512}
    v_bfe_u32 v8, v0, 3, 1
    v_lshlrev_b32 v8, 5, v8
    s_lshl_b32 s7, s3, 2
    v_add_u32 v8, s7, v8
    ds_write_b32 v8, v{vM} offset:{ML}
    ds_write_b32 v8, v{vL} offset:{ML+16}
    s_waitcnt lgkmcnt(0)
    s_barrier
    s_cmp_ge_u32 s3, 2
    s_cbranch_scc1 {L('end')}
    """)
    stamp(3)
    if skip_tail: a(f"s_branch {L('end')}")
    a(f"""
    s_lshl_b32 s7, s3, 10
    v_lshlrev_b32 v7, 4, v0
    v_add_u32 v7, s7, v7
    s_lshl_b32 s7, s3, 5
    v_mov_b32 v8, s7
    ds_read_b128 v[{Q}:{Q+3}], v8 offset:{ML}
    ds_read_b128 v[{Q+4}:{Q+7}], v8 offset:{ML+16}
    """)
    for w in range(4): a(f"ds_read_b128 v[{DS+4*w}:{DS+4*w+3}], v7 offset:{OP+w*2048}")
    a(f"""
    s_mov_b32 s48, s38
    s_mov_b32 s49, s39
    s_mov_b32 s50, {256*INB}
    s_mov_b32 s51, 0x20000
    s_lshl_b32 s7, s4, 4
    s_lshl_b32 s12, s3, 3
    s_add_u32 s7, s7, s12
    s_lshl_b32 s7, s7, 13
    v_lshrrev_b32 v9, 3, v0
    v_lshlrev_b32 v9, 13, v9
    s_lshl_b32 s12, s5, 7
    s_add_u32 s12, s12, s7
    v_and_b32 v10, 7, v0
    v_lshl_add_u32 v11, v10, 4, v9
    s_lshl_b32 s13, s5, 3
    s_add_u32 s13, s13, s7
    v_cmp_eq_u32 vcc, 0, v10
    s_waitcnt lgkmcnt(4)
    v_max3_f32 v12, v{Q}, v{Q+1}, v{Q+2}
    v_max_f32 v12, v12, v{Q+3}
    """)
    for w in range(4): a(f"v_sub_f32 v{Q+w}, v{Q+w}, v12")
    for w in range(4): a(f"v_mul_f32 v{Q+w}, s10, v{Q+w}")
    for w in range(4): a(f"v_exp_f32 v{Q+w}, v{Q+w}")
    a(f"v_mul_f32 v13, v{Q}, v{Q+4}")
    for w in range(1,4): a(f"v_fmac_f32 v13, v{Q+w}, v{Q+4+w}")
    a("s_waitcnt lgkmcnt(0)")
    for e in range(4):
        a(f"v_mul_f32 v{O+e}, v{Q}, v{DS+e}")
        for w in range(1,4): a(f"v_fmac_f32 v{O+e}, v{Q+w}, v{DS+4*w+e}")
    for e in range(4): a(f"v_min_u32 v{O+e}, -2, v{O+e}")
    a(f"""
    v_min_u32 v12, -2, v12
    v_min_u32 v13, -2, v13
    buffer_store_dwordx4 v[{O}:{O+3}], v11, s[48:51], s12 offen sc1
    s_and_saveexec_b64 s[14:15], vcc
    buffer_store_dwordx2 v[12:13], v9, s[48:51], s13 offen offset:{H1ML} sc1
    """)
    if stamps:
        a("s_waitcnt vmcnt(0)")
        stamp(4)
        a(f"s_branch {L('end')}")
    else: a("s_endpgm")
    HA=[20,24]; ACC=28; COEF=44; HR=64; NR=48
    a.label(L('helper'))
    a(f"""
    s_sub_u32 s3, s3, 4
    s_and_b32 s6, s4, 7
    s_lshr_b32 s7, s4, 3
    v_and_b32 v1, 31, v0
    v_lshlrev_b32 v1, 2, v1
    v_lshrrev_b32 v2, 5, v0
    v_mul_u32_u24 v2, 896, v2
    v_add_u32 v1, v1, v2
    v_lshrrev_b32 v2, 4, v0
    v_mul_u32_u24 v2, {28*8192}, v2
    v_and_b32 v3, 15, v0
    v_lshl_add_u32 v2, v3, 4, v2
    s_mul_i32 s8, s3, {112*8192}
    s_lshl_b32 s9, s6, 10
    s_add_u32 s8, s8, s9
    s_mov_b32 s42, 1792
    s_mov_b32 s43, 0x20000
    s_mov_b32 s46, {448*8192}
    s_mov_b32 s47, 0x20000
    s_mov_b32 s10, {f32(CEXP)}
    s_waitcnt lgkmcnt(0)
    s_mov_b32 s40, s16
    s_mov_b32 s41, s17
    s_mov_b32 s44, s22
    s_mov_b32 s45, s23
    """)
    XD=ACC
    for i in range(7): a(f"buffer_load_dword v{XD+i}, v1, s[40:43], 0 offen offset:{i*128}")
    wqf=" nt" if wq_nt else ""
    def ldQ(kk,sg):
        r=HR+((kk*4+sg)%NR)*4
        a(f"buffer_load_dwordx4 v[{r}:{r+3}], v2, s[44:47], s8 offen offset:{sg*256}{wqf}")
        if sg==3: a("s_add_u32 s8, s8, 0x2000")
    PRE=NR//4
    if not skip_q:
        for kk in range(PRE):
            for sg in range(4): ldQ(kk,sg)
    masks()
    a(f"s_waitcnt vmcnt({0 if skip_q else NR})")
    stamp(1)
    XF=COEF
    for i in range(7):
        a(f"v_lshlrev_b32 v{XF+2*i}, 16, v{XD+i}")
        a(f"v_and_b32 v{XF+2*i+1}, 0xffff0000, v{XD+i}")
    def red32(r,t,op="v_add_f32"):
        for m in ("quad_perm:[1,0,3,2]","quad_perm:[2,3,0,1]","row_half_mirror","row_mirror"):
            a(f"{op}_dpp v{r}, v{r}, v{r} {m} row_mask:0xf bank_mask:0xf")
        a(f"v_mov_b32 v{t}, v{r}\nv_permlane16_swap_b32 v{t}, v{r}\n{op} v{r}, v{r}, v{t}")
    def div448(r,t):
        a(f"""
        v_mul_f32 v{t}, {f32(1/448)}, v{r}
        v_fma_f32 v{r}, v{t}, s11, v{r}
        v_fmac_f32 v{t}, {f32(1/448)}, v{r}
        v_mov_b32 v{r}, v{t}
        """)
    a(f"s_mov_b32 s11, {f32(-448.0)}")
    a(f"v_add_f32 v4, v{XF}, v{XF+1}")
    for i in range(2,14): a(f"v_add_f32 v4, v4, v{XF+i}")
    red32(4,5)
    div448(4,5)
    a(f"v_sub_f32 v6, v{XF}, v4\nv_mul_f32 v5, v6, v6")
    for i in range(1,14): a(f"v_sub_f32 v6, v{XF+i}, v4\nv_fmac_f32 v5, v6, v6")
    red32(5,6)
    div448(5,6)
    a(f"""
    v_cvt_pk_bf16_f32 v4, v4, v5
    v_and_b32 v5, 0xffff0000, v4
    v_lshlrev_b32 v4, 16, v4
    v_add_f32 v5, {f32(1e-5)}, v5
    v_cvt_pk_bf16_f32 v5, v5, v5
    v_lshlrev_b32 v5, 16, v5
    v_sqrt_f32 v5, v5
    v_cvt_pk_bf16_f32 v5, v5, v5
    v_lshlrev_b32 v5, 16, v5
    v_rcp_f32 v5, v5
    """)
    for i in range(14): a(f"v_sub_f32 v{XF+i}, v{XF+i}, v4")
    for i in range(7):
        a(f"v_cvt_pk_bf16_f32 v{XD+i}, v{XF+2*i}, v{XF+2*i+1}")
    for i in range(7):
        a(f"v_lshlrev_b32 v{XF+2*i}, 16, v{XD+i}")
        a(f"v_and_b32 v{XF+2*i+1}, 0xffff0000, v{XD+i}")
    for i in range(14): a(f"v_mul_f32 v{XF+i}, v{XF+i}, v5")
    for i in range(14): a(f"v_cvt_pk_bf16_f32 v{XF+i}, v{XF+i}, v{XF+i}")
    a(f"""
    v_lshlrev_b32 v1, 1, v1
    """)
    for i in range(7): a(f"ds_write_b64 v1, v[{XF+2*i}:{XF+2*i+1}] offset:{XN+i*256}")
    a(f"""
    v_lshrrev_b32 v4, 4, v0
    v_mul_u32_u24 v4, 112, v4
    s_mul_i32 s11, s7, 1792
    s_mul_i32 s12, s3, 448
    s_add_u32 s11, s11, s12
    v_add_u32 v4, s11, v4
    s_waitcnt lgkmcnt(0)
    """)
    for i in range(4): a(f"ds_read_b128 v[{COEF+4*i}:{COEF+4*i+3}], v4 offset:{XN+16*i}")
    a("s_waitcnt lgkmcnt(0)")
    if not skip_q:
        issued=NR;
        for kk in range(28):
            Ar=HA[kk&1]
            if kk==16: a("s_waitcnt lgkmcnt(0)")
            for r in range(4): a(f"v_and_b32 v{Ar+r}, v{COEF+(kk%16)}, v{MASK+r}")
            if kk==15:
                for i in range(3): a(f"ds_read_b128 v[{COEF+4*i}:{COEF+4*i+3}], v4 offset:{XN+64+16*i}")
            for sg in range(4):
                idx=kk*4+sg; r=HR+(idx%NR)*4; d=ACC+sg*4
                a(f"s_waitcnt vmcnt({issued-idx-1})")
                c="0" if kk==0 else f"v[{d}:{d+3}]"
                a(f"v_mfma_f32_16x16x32_bf16 v[{d}:{d+3}], v[{Ar}:{Ar+3}], v[{r}:{r+3}], {c}")
                if kk+PRE<28:
                    ldQ(kk+PRE,sg); issued+=1
    else:
        for i in range(16): a(f"v_mov_b32 v{ACC+i}, 1.0")
    stamp(2)
    a(f"""
    v_and_b32 v5, 15, v0
    v_lshlrev_b32 v5, 5, v5
    v_bfe_u32 v6, v0, 4, 1
    v_lshl_add_u32 v5, v6, 4, v5
    s_lshl_b32 s11, s3, 11
    v_add_u32 v5, s11, v5
    """)
    for sg in range(4): a(f"ds_write_b128 v5, v[{ACC+4*sg}:{ACC+4*sg+3}] offset:{QP+sg*512}")
    a(f"""
    s_waitcnt lgkmcnt(0)
    s_barrier
    s_mov_b32 s48, s38
    s_mov_b32 s49, s39
    s_mov_b32 s50, {256*INB}
    s_mov_b32 s51, 0x20000
    s_mov_b32 s64, s36
    s_mov_b32 s65, s37
    s_mov_b32 s66, 256
    s_mov_b32 s67, 0x20000
    s_lshl_b32 s68, s4, 4
    s_add_u32 s68, s68, s5
    s_and_b32 s69, s68, 127
    s_lshl_b32 s68, s68, 13
    s_cmp_eq_u32 s3, {9 if idle_helpers else 3}
    s_cbranch_scc1 {L('h3')}
    s_cmp_lg_u32 s3, 0
    s_cbranch_scc1 {L('wo')}
    s_cmp_ge_u32 s2, {0 if skip_ffn else 28}
    s_cbranch_scc1 {L('wo')}
    """)
    def wait_counter(tag):
        a(f"s_mov_b32 s70, 0")
        a.label(L('wc'+tag))
        a(f"""
        buffer_load_dword v5, off, s[64:67], 0 sc1
        s_waitcnt vmcnt(0)
        v_readfirstlane_b32 s71, v5
        s_add_u32 s70, s70, 1
        s_cmp_ge_u32 s70, {spin_max}
        s_cbranch_scc1 {L('wd'+tag)}
        s_cmp_ge_u32 s71, 256
        s_cbranch_scc1 {L('wd'+tag)}
        s_sleep 8
        s_branch {L('wc'+tag)}
        """)
        a.label(L('wd'+tag))
    a(f"""
    v_lshrrev_b32 v4, 4, v0
    v_mul_u32_u24 v5, {112*3584}, v4
    v_and_b32 v6, 7, v0
    v_lshl_add_u32 v5, v6, 4, v5
    s_lshl_b32 s11, s2, 7
    v_add_u32 v5, s11, v5
    v_and_b32 v6, 8, v0
    v_cmp_ne_u32 vcc, 0, v6
    v_mov_b32 v6, s28
    v_mov_b32 v7, s30
    v_cndmask_b32 v6, v6, v7, vcc
    v_mov_b32 v7, s29
    v_mov_b32 v8, s31
    v_cndmask_b32 v7, v7, v8, vcc
    v_add_co_u32 v6, vcc, v6, v5
    v_addc_co_u32 v7, vcc, 0, v7, vcc
    v_bfe_u32 v8, v0, 3, 1
    v_mul_u32_u24 v8, 1792, v8
    v_mul_u32_u24 v9, 448, v4
    v_add_u32 v8, v8, v9
    s_mov_b32 s11, 0
    v_mov_b32 v{ACC}, 0
    v_mov_b32 v{ACC+1}, 0
    v_mov_b32 v{ACC+2}, 0
    v_mov_b32 v{ACC+3}, 0
    """)
    FC=HR+28*4
    a.flush()
    a.label(L('ffn1'))
    for i in range(28):
        r=HR+i*4
        a(f"global_load_dwordx4 v[{r}:{r+3}], v[6:7], off{' offset:3584' if i&1 else ''} nt")
        if i&1: a("v_add_co_u32 v6, vcc, 0x1c00, v6\nv_addc_co_u32 v7, vcc, 0, v7, vcc")
    for i in range(7): a(f"ds_read_b128 v[{FC+4*i}:{FC+4*i+3}], v8 offset:{XN+16*i}")
    a("v_add_u32 v8, 112, v8\ns_waitcnt lgkmcnt(0)")
    for i in range(28):
        Ar=HA[i&1]; r=HR+i*4
        for q in range(4): a(f"v_and_b32 v{Ar+q}, v{FC+i}, v{MASK+q}")
        a(f"s_waitcnt vmcnt({27-i})")
        a(f"v_mfma_f32_16x16x32_bf16 v[{ACC}:{ACC+3}], v[{Ar}:{Ar+3}], v[{r}:{r+3}], v[{ACC}:{ACC+3}]")
    a(f"""
    s_add_u32 s11, s11, 1
    s_cmp_lt_u32 s11, 4
    s_cbranch_scc1 {L('ffn1')}
    """)
    a(f"""
    s_mov_b32 s56, s32
    s_mov_b32 s57, s33
    s_mov_b32 s58, {1792*896}
    s_mov_b32 s59, 0x20000
    v_mul_u32_u24 v5, {16*896}, v4
    v_and_b32 v6, 15, v0
    v_lshl_add_u32 v5, v6, 4, v5
    s_mul_i32 s11, s2, {64*896}
    """)
    def ldW2(i):
        kk,sg=i>>2,i&3; r=HR+(i%32)*4
        a(f"buffer_load_dwordx4 v[{r}:{r+3}], v5, s[56:59], s11 offen offset:{(kk&3)*896+sg*256} nt")
        if (i&15)==15: a(f"s_add_u32 s11, s11, {4*896}")
    for i in range(32): ldW2(i)
    G=ACC+4; U=ACC+8
    for q in range(4):
        a(f"v_mov_b32_dpp v{U+q}, v{ACC+q} row_ror:8 row_mask:0xf bank_mask:0xf")
    for q in range(4):
        a(f"""
        v_cvt_pk_bf16_f32 v{G+q}, v{ACC+q}, v{U+q}
        v_and_b32 v{U+q}, 0xffff0000, v{G+q}
        v_lshlrev_b32 v{G+q}, 16, v{G+q}
        v_mul_f32 v9, {f32(-math.log2(math.e))}, v{G+q}
        v_exp_f32 v9, v9
        v_add_f32 v9, 1.0, v9
        v_rcp_f32 v9, v9
        v_mul_f32 v9, v9, v{G+q}
        v_cvt_pk_bf16_f32 v9, v9, v9
        v_lshlrev_b32 v9, 16, v9
        v_mul_f32 v9, v9, v{U+q}
        v_cvt_pk_bf16_f32 v{G+q}, v9, v9
        """)
    a(f"""
    v_lshrrev_b32 v9, 5, v0
    v_lshlrev_b32 v9, 8, v9
    v_and_b32 v10, 7, v0
    v_lshl_add_u32 v9, v10, 5, v9
    v_bfe_u32 v10, v0, 4, 1
    v_lshl_add_u32 v9, v10, 4, v9
    v_and_b32 v10, 8, v0
    v_cmp_eq_u32 vcc, 0, v10
    s_and_saveexec_b64 s[14:15], vcc
    ds_write_b128 v9, v[{G}:{G+3}] offset:{HB}
    s_mov_b64 exec, s[14:15]
    v_bfe_u32 v9, v0, 3, 1
    v_lshlrev_b32 v9, 8, v9
    v_lshl_add_u32 v9, v4, 6, v9
    s_waitcnt lgkmcnt(0)
    """)
    for i in range(4): a(f"ds_read_b128 v[{COEF+4*i}:{COEF+4*i+3}], v9 offset:{HB+16*i}")
    a("s_waitcnt lgkmcnt(0)")
    issued=32
    for kk in range(16):
        Ar=HA[kk&1]
        for q in range(4): a(f"v_and_b32 v{Ar+q}, v{COEF+kk}, v{MASK+q}")
        for sg in range(4):
            i=kk*4+sg; r=HR+(i%32)*4; d=ACC+sg*4
            a(f"s_waitcnt vmcnt({issued-i-1})")
            c="0" if kk==0 else f"v[{d}:{d+3}]"
            a(f"v_mfma_f32_16x16x32_bf16 v[{d}:{d+3}], v[{Ar}:{Ar+3}], v[{r}:{r+3}], {c}")
            if i+32<64: ldW2(i+32); issued+=1
    wait_counter('f')
    a(f"""
    v_lshrrev_b32 v9, 5, v0
    v_lshlrev_b32 v9, 7, v9
    v_and_b32 v10, 15, v0
    v_lshl_add_u32 v9, v10, 1, v9
    v_bfe_u32 v11, v0, 4, 1
    v_add_u32 v9, v9, v11
    v_lshlrev_b32 v9, 13, v9
    s_lshl_b32 s11, s2, 4
    s_add_u32 s11, s11, {H3}
    v_cmp_gt_u32 vcc, 8, v10
    """)
    for i in range(16): a(f"v_min_u32 v{ACC+i}, -2, v{ACC+i}")
    for sg in range(4):
        if sg==3: a("s_and_saveexec_b64 s[14:15], vcc")
        a(f"buffer_store_dwordx4 v[{ACC+4*sg}:{ACC+4*sg+3}], v9, s[48:51], s11 offen sc1")
        if sg<3: a(f"s_add_u32 s11, s11, {32*INB}")
    a(f"s_mov_b64 exec, s[14:15]\ns_branch {L('wo')}")
    a.label(L('h3'))
    a(f"""
    v_mov_b32 v4, -1
    v_mov_b32 v5, -1
    v_mov_b32 v6, -1
    v_mov_b32 v7, -1
    v_lshlrev_b32 v8, 4, v0
    v_add_u32 v9, 0x1000, v8
    """)
    for i in range(7):
        a(f"buffer_store_dwordx4 v[4:7], v{8+(i>>2)}, s[48:51], s68 offen offset:{(i&3)*1024} sc1")
    a(f"""
    v_mov_b32 v10, 1
    s_waitcnt vmcnt(0)
    s_mov_b64 s[14:15], exec
    s_mov_b64 exec, 1
    buffer_atomic_add v10, off, s[64:67], 0
    s_mov_b64 exec, s[14:15]
    """)
    wait_counter('3')
    BF=56
    a(f"""
    s_cmp_ge_u32 s69, {0 if skip_ffn else 112}
    s_cbranch_scc1 {L('wo')}
    s_lshl_b32 s11, s69, 3
    s_mul_i32 s12, s7, 896
    s_add_u32 s11, s11, s12
    buffer_load_dwordx2 v[12:13], off, s[40:43], s11
    v_mov_b32 v{BF}, 0
    v_mov_b32 v{BF+1}, 0
    v_mov_b32 v{BF+2}, 0
    v_mov_b32 v{BF+3}, 0
    v_cmp_gt_u32 vcc, 28, v0
    s_and_saveexec_b64 s[14:15], vcc
    s_mov_b32 s70, 0
    """)
    a.flush()
    a.label(L('p3'))
    a(f"""
    buffer_load_dwordx4 v[{BF}:{BF+3}], v9, s[48:51], s68 offen offset:{H3-4096} sc1
    s_waitcnt vmcnt(0)
    v_max3_u32 v10, v{BF}, v{BF+1}, v{BF+2}
    v_max_u32 v10, v10, v{BF+3}
    v_cmp_eq_u32 vcc, -1, v10
    s_add_u32 s70, s70, 1
    s_cmp_ge_u32 s70, {spin_max}
    s_cbranch_scc1 {L('p3d')}
    s_cbranch_vccz {L('p3d')}
    s_sleep 32
    s_branch {L('p3')}
    """)
    a.label(L('p3d'))
    a("s_mov_b64 exec, s[14:15]")
    def red64(base,t):
        for m in ("quad_perm:[1,0,3,2]","quad_perm:[2,3,0,1]","row_half_mirror","row_mirror"):
            for q in range(4): a(f"v_add_f32_dpp v{base+q}, v{base+q}, v{base+q} {m} row_mask:0xf bank_mask:0xf")
        for sw in ("v_permlane16_swap_b32","v_permlane32_swap_b32"):
            for q in range(4): a(f"v_mov_b32 v{t+q}, v{base+q}")
            for q in range(4): a(f"{sw} v{t+q}, v{base+q}")
            for q in range(4): a(f"v_add_f32 v{base+q}, v{base+q}, v{t+q}")
    red64(BF,4)
    a(f"""
    v_cvt_pk_bf16_f32 v4, v{BF}, v{BF+1}
    v_cvt_pk_bf16_f32 v5, v{BF+2}, v{BF+3}
    v_lshlrev_b32 v{BF}, 16, v4
    v_and_b32 v{BF+1}, 0xffff0000, v4
    v_lshlrev_b32 v{BF+2}, 16, v5
    v_and_b32 v{BF+3}, 0xffff0000, v5
    v_lshlrev_b32 v{BF+4}, 16, v12
    v_and_b32 v{BF+5}, 0xffff0000, v12
    v_lshlrev_b32 v{BF+6}, 16, v13
    v_and_b32 v{BF+7}, 0xffff0000, v13
    """)
    a.label(L('wo'))
    stamp(3)
    WO=HR
    a(f"""
    s_mov_b32 s52, s24
    s_mov_b32 s53, s25
    s_mov_b32 s54, {4096*896}
    s_mov_b32 s55, 0x20000
    v_lshrrev_b32 v4, 4, v0
    v_mul_u32_u24 v5, {8*896}, v4
    v_and_b32 v6, 15, v0
    v_lshl_add_u32 v5, v6, 4, v5
    s_lshl_b32 s11, s6, 4
    s_add_u32 s11, s11, s5
    s_mul_i32 s11, s11, {32*896}
    s_lshl_b32 s12, s3, 8
    s_add_u32 s11, s11, s12
    s_add_u32 s12, s11, {4*896}
    """)
    for kk in range(8):
        r=WO+kk*4
        a(f"buffer_load_dwordx4 v[{r}:{r+3}], v5, s[52:55], s{11+(kk>>2)} offen offset:{(kk&3)*896} nt")
    a(f"""
    v_lshlrev_b32 v7, 7, v6
    v_lshl_add_u32 v7, v4, 5, v7
    v_lshlrev_b32 v8, 3, v6
    v_bfe_u32 v9, v0, 4, 1
    v_lshl_add_u32 v9, v6, 1, v9
    s_lshl_b32 s11, s3, 5
    v_add_u32 v9, s11, v9
    v_cmp_gt_u32 vcc, 112, v9
    v_cmp_gt_u32 s[72:73], 32, v0
    s_and_b64 s[72:73], s[72:73], vcc
    s_lshl_b32 s11, s7, 7
    v_add_u32 v9, s11, v9
    v_lshlrev_b32 v9, 13, v9
    s_lshl_b32 s74, s69, 4
    s_add_u32 s74, s74, {H2}
    v_lshlrev_b32 v14, 4, v0
    v_add_u32 v14, 0x1000, v14
    s_waitcnt vmcnt(0)
    """)
    stamp(4)
    a("""
    s_barrier
    s_mov_b32 s70, 0
    """)
    if skip_tail: a(f"s_branch {L('end')}")
    PO=ACC
    a.flush()
    a.label(L('p1'))
    a(f"""
    buffer_load_dwordx4 v[{PO}:{PO+3}], v7, s[48:51], s68 offen sc1
    buffer_load_dwordx4 v[{PO+4}:{PO+7}], v7, s[48:51], s68 offen offset:16 sc1
    buffer_load_dwordx2 v[10:11], v8, s[48:51], s68 offen offset:{H1ML} sc1
    s_waitcnt vmcnt(0)
    v_max3_u32 v12, v{PO}, v{PO+1}, v{PO+2}
    v_max3_u32 v12, v12, v{PO+3}, v{PO+4}
    v_max3_u32 v12, v12, v{PO+5}, v{PO+6}
    v_max3_u32 v12, v12, v{PO+7}, v10
    v_max_u32 v12, v12, v11
    v_cmp_eq_u32 vcc, -1, v12
    s_add_u32 s70, s70, 1
    s_cmp_ge_u32 s70, {spin_max}
    s_cbranch_scc1 {L('p1d')}
    s_cbranch_vccnz {L('p1')}
    """)
    a.label(L('p1d'))
    stamp(5)
    R16=("quad_perm:[1,0,3,2]","quad_perm:[2,3,0,1]","row_half_mirror","row_mirror")
    a("v_mov_b32 v12, v10")
    for m in R16: a(f"v_max_f32_dpp v12, v12, v12 {m} row_mask:0xf bank_mask:0xf")
    a(f"""
    v_sub_f32 v10, v10, v12
    v_mul_f32 v10, s10, v10
    v_exp_f32 v10, v10
    v_mul_f32 v11, v11, v10
    """)
    for q in range(8): a(f"v_mul_f32 v{PO+q}, v{PO+q}, v10")
    for m in R16:
        a(f"v_add_f32_dpp v11, v11, v11 {m} row_mask:0xf bank_mask:0xf")
        for q in range(8): a(f"v_add_f32_dpp v{PO+q}, v{PO+q}, v{PO+q} {m} row_mask:0xf bank_mask:0xf")
    a("v_rcp_f32 v11, v11")
    for q in range(8): a(f"v_mul_f32 v{PO+q}, v{PO+q}, v11")
    for q in range(8): a(f"v_cvt_pk_bf16_f32 v{PO+q}, v{PO+q}, v{PO+q}")
    D=ACC+8
    for kk in range(8):
        Ar=HA[kk&1]; r=WO+kk*4
        for q in range(4): a(f"v_and_b32 v{Ar+q}, v{PO+kk}, v{MASK+q}")
        c="0" if kk==0 else f"v[{D}:{D+3}]"
        a(f"v_mfma_f32_16x16x32_bf16 v[{D}:{D+3}], v[{Ar}:{Ar+3}], v[{r}:{r+3}], {c}")
    for q in range(4): a(f"v_min_u32 v{D+q}, -2, v{D+q}")
    a(f"""
    s_mov_b64 s[14:15], exec
    s_mov_b64 exec, s[72:73]
    buffer_store_dwordx4 v[{D}:{D+3}], v9, s[48:51], s74 offen sc1
    s_mov_b64 exec, s[14:15]
    s_cmp_lg_u32 s3, 3
    s_cbranch_scc1 {L('end')}
    s_cmp_ge_u32 s69, 112
    s_cbranch_scc1 {L('end')}
    s_mov_b32 s60, s34
    s_mov_b32 s61, s35
    s_mov_b32 s62, 1792
    s_mov_b32 s63, 0x20000
    s_lshl_b32 s11, s69, 3
    s_mul_i32 s12, s7, 896
    s_add_u32 s11, s11, s12
    s_mov_b32 s70, 0
    """)
    P2=COEF
    a.flush()
    a.label(L('p2'))
    a(f"""
    buffer_load_dwordx4 v[{P2}:{P2+3}], v14, s[48:51], s68 offen sc1
    buffer_load_dwordx4 v[{P2+4}:{P2+7}], v14, s[48:51], s68 offen offset:1024 sc1
    s_waitcnt vmcnt(0)
    v_max3_u32 v12, v{P2}, v{P2+1}, v{P2+2}
    v_max3_u32 v12, v12, v{P2+3}, v{P2+4}
    v_max3_u32 v12, v12, v{P2+5}, v{P2+6}
    v_max_u32 v12, v12, v{P2+7}
    v_cmp_eq_u32 vcc, -1, v12
    s_add_u32 s70, s70, 1
    s_cmp_ge_u32 s70, {spin_max}
    s_cbranch_scc1 {L('p2d')}
    s_cbranch_vccnz {L('p2')}
    """)
    a.label(L('p2d'))
    stamp(6)
    for q in range(4): a(f"v_add_f32 v{P2+q}, v{P2+q}, v{P2+4+q}")
    red64(P2,4)
    a(f"""
    v_cvt_pk_bf16_f32 v4, v{P2}, v{P2+1}
    v_cvt_pk_bf16_f32 v5, v{P2+2}, v{P2+3}
    v_lshlrev_b32 v{P2}, 16, v4
    v_and_b32 v{P2+1}, 0xffff0000, v4
    v_lshlrev_b32 v{P2+2}, 16, v5
    v_and_b32 v{P2+3}, 0xffff0000, v5
    """)
    for q in range(4): a(f"v_add_f32 v{P2+q}, v{P2+q}, v{BF+4+q}")
    a(f"""
    v_cvt_pk_bf16_f32 v4, v{P2}, v{P2+1}
    v_cvt_pk_bf16_f32 v5, v{P2+2}, v{P2+3}
    v_lshlrev_b32 v{P2}, 16, v4
    v_and_b32 v{P2+1}, 0xffff0000, v4
    v_lshlrev_b32 v{P2+2}, 16, v5
    v_and_b32 v{P2+3}, 0xffff0000, v5
    """)
    for q in range(4): a(f"v_add_f32 v{P2+q}, v{P2+q}, v{BF+q}")
    a(f"""
    v_cvt_pk_bf16_f32 v4, v{P2}, v{P2+1}
    v_cvt_pk_bf16_f32 v5, v{P2+2}, v{P2+3}
    s_mov_b64 exec, 1
    buffer_store_dwordx2 v[4:5], off, s[60:63], s11
    """)
    a.label(L('end'))
    if stamps:
        a(f"s_cmp_ge_u32 s2, 256\ns_cbranch_scc1 {L('end2')}")
        a("s_waitcnt vmcnt(0)")
        stamp(7)
        a("""
        s_mov_b64 exec, 1
        s_mov_b32 s48, s38
        s_mov_b32 s49, s39
        s_mov_b32 s50, 0x1000000
        s_mov_b32 s51, 0x20000
        s_lshl_b32 s11, s2, 3
        s_add_u32 s11, s11, s96
        s_lshl_b32 s11, s11, 6
        s_add_u32 s11, s11, 0x400000
        """)
        for i in range(4):
            for q in range(4): a(f"v_mov_b32 v{4+q}, s{80+4*i+q}")
            a(f"buffer_store_dwordx4 v[4:7], off, s[48:51], s11 offset:{16*i}")
        a.label(L('end2'))
    a("s_endpgm")
    kd=f""".p2align 6
.amdhsa_kernel {K}
  .amdhsa_next_free_vgpr 256
  .amdhsa_next_free_sgpr {100 if stamps else 80}
  .amdhsa_accum_offset 256
  .amdhsa_group_segment_fixed_size 0
  .amdhsa_kernarg_size 96
  .amdhsa_user_sgpr_count 2
  .amdhsa_user_sgpr_kernarg_segment_ptr 1
  .amdhsa_system_sgpr_workgroup_id_x 1
  .amdhsa_float_denorm_mode_32 3
.end_amdhsa_kernel
"""
    return a.text(), kd, LDS

HDR=open("cdna_kernels/"+NAME+".s.ref").read().split("; @launch")[0]
def write_main(path, **kw):
    t,kd,lds=gen(**kw)
    s=HDR+f"; @launch grid=(256,1,1) block=(512,1,1) lds={lds}\n"
    s+='.amdgcn_target "amdgcn-amd-amdhsa--gfx950"\n.text\n'+t+'.section .rodata,"a"\n'+kd
    open(path,"w").write(s)
if __name__=="__main__":
    write_main("cdna_kernels/"+NAME+".s")
```

```python
from gen import *
t,kd,lds=gen()
def mk(path,npre):
    s=HDR
    for i in range(npre): s+="; @launch kernel=pre_kernel grid=(256,1,1) block=(256,1,1) lds=0\n"
    s+=f"; @launch kernel={NAME}_kernel grid=(256,1,1) block=(512,1,1) lds={lds}\n"
    s+='.amdgcn_target "amdgcn-amd-amdhsa--gfx950"\n.text\n'+t
    s+=".globl pre_kernel\n.p2align 8\n.type pre_kernel,@function\npre_kernel:\n s_endpgm\n"
    s+='.section .rodata,"a"\n'+kd
    s+=""".p2align 6
.amdhsa_kernel pre_kernel
  .amdhsa_next_free_vgpr 8
  .amdhsa_next_free_sgpr 16
  .amdhsa_accum_offset 8
  .amdhsa_group_segment_fixed_size 0
  .amdhsa_kernarg_size 96
  .amdhsa_user_sgpr_count 2
  .amdhsa_user_sgpr_kernarg_segment_ptr 1
  .amdhsa_system_sgpr_workgroup_id_x 1
.end_amdhsa_kernel
"""
    open(path,"w").write(s)
mk("t_list0.s",0)
mk("t_list1.s",1)
mk("t_list3.s",3)
```

```python
import struct, sys, math
from asmlib import Asm
NAME="parallel_sum__gqa_block_cached__glu_gated_swiglu__decode"
def f32(x): return "0x%08x"%struct.unpack("<I",struct.pack("<f",x))[0]
INB=8192; H1ML=4096; H2=4608; CNTO=7168
QOFF=256*INB; HSOFF=QOFF+16384; WSB=HSOFF+16384
R16=("quad_perm:[1,0,3,2]","quad_perm:[2,3,0,1]","row_half_mirror","row_mirror")
DPPT="row_mask:0xf bank_mask:0xf"

def kd(K,nv,ns,acc):
    return f""".p2align 6
.amdhsa_kernel {K}
  .amdhsa_next_free_vgpr {nv}
  .amdhsa_next_free_sgpr {ns}
  .amdhsa_accum_offset {acc}
  .amdhsa_group_segment_fixed_size 0
  .amdhsa_kernarg_size 96
  .amdhsa_user_sgpr_count 2
  .amdhsa_user_sgpr_kernarg_segment_ptr 1
  .amdhsa_system_sgpr_workgroup_id_x 1
  .amdhsa_float_denorm_mode_32 3
.end_amdhsa_kernel
"""

def layernorm(a, XD, XF, t0, t1, t2, sneg):
    for i in range(7):
        a(f"v_lshlrev_b32 v{XF+2*i}, 16, v{XD+i}")
        a(f"v_and_b32 v{XF+2*i+1}, 0xffff0000, v{XD+i}")
    def red32(r,t):
        for m in R16: a(f"v_add_f32_dpp v{r}, v{r}, v{r} {m} {DPPT}")
        a(f"v_mov_b32 v{t}, v{r}\nv_permlane16_swap_b32 v{t}, v{r}\nv_add_f32 v{r}, v{r}, v{t}")
    def div448(r,t):
        a(f"""
        v_mul_f32 v{t}, {f32(1/448)}, v{r}
        v_fma_f32 v{r}, v{t}, s{sneg}, v{r}
        v_fmac_f32 v{t}, {f32(1/448)}, v{r}
        v_mov_b32 v{r}, v{t}
        """)
    a(f"s_mov_b32 s{sneg}, {f32(-448.0)}")
    a(f"v_add_f32 v{t0}, v{XF}, v{XF+1}")
    a(f"v_add_f32 v{t1}, v{XF+2}, v{XF+3}")
    for i in range(4,14,2): a(f"v_add_f32 v{t0}, v{t0}, v{XF+i}\nv_add_f32 v{t1}, v{t1}, v{XF+i+1}")
    a(f"v_add_f32 v{t0}, v{t0}, v{t1}")
    red32(t0,t1); div448(t0,t1)
    a(f"v_sub_f32 v{t2}, v{XF}, v{t0}\nv_mul_f32 v{t1}, v{t2}, v{t2}")
    for i in range(1,14): a(f"v_sub_f32 v{t2}, v{XF+i}, v{t0}\nv_fmac_f32 v{t1}, v{t2}, v{t2}")
    red32(t1,t2); div448(t1,t2)
    a(f"""
    v_cvt_pk_bf16_f32 v{t0}, v{t0}, v{t1}
    v_and_b32 v{t1}, 0xffff0000, v{t0}
    v_lshlrev_b32 v{t0}, 16, v{t0}
    v_add_f32 v{t1}, {f32(1e-5)}, v{t1}
    v_cvt_pk_bf16_f32 v{t1}, v{t1}, v{t1}
    v_lshlrev_b32 v{t1}, 16, v{t1}
    v_sqrt_f32 v{t1}, v{t1}
    v_cvt_pk_bf16_f32 v{t1}, v{t1}, v{t1}
    v_lshlrev_b32 v{t1}, 16, v{t1}
    v_rcp_f32 v{t1}, v{t1}
    """)
    for i in range(14): a(f"v_sub_f32 v{XF+i}, v{XF+i}, v{t0}")
    for i in range(7): a(f"v_cvt_pk_bf16_f32 v{XD+i}, v{XF+2*i}, v{XF+2*i+1}")
    for i in range(7):
        a(f"v_lshlrev_b32 v{XF+2*i}, 16, v{XD+i}")
        a(f"v_and_b32 v{XF+2*i+1}, 0xffff0000, v{XD+i}")
    for i in range(14): a(f"v_mul_f32 v{XF+i}, v{XF+i}, v{t1}")

def gen_prep(K="prep_kernel", nt=True):
    a=Asm(); L=lambda s: f"L_{K}_{s}"
    XN=0; RED=3584; LDS=RED+7*256
    XD=8; W=16; XF=32; XV=48; ACC=56; U=72
    a.raw(f".globl {K}\n.p2align 8\n.type {K},@function\n{K}:")
    a(f"""
    s_cmp_ge_u32 s2, 256
    s_cbranch_scc1 {L('end')}
    s_load_dwordx16 s[16:31], s[0:1], 0
    s_load_dwordx2 s[38:39], s[0:1], 88
    v_and_b32 v1, 63, v0
    v_and_b32 v2, 31, v0
    v_lshlrev_b32 v2, 2, v2
    v_bfe_u32 v3, v0, 5, 1
    v_mul_u32_u24 v3, 896, v3
    v_add_u32 v2, v2, v3
    v_lshrrev_b32 v3, 2, v0
    v_and_b32 v4, 3, v0
    s_mov_b32 s42, 1792
    s_mov_b32 s43, 0x20000
    s_mov_b32 s50, {WSB}
    s_mov_b32 s51, 0x20000
    s_sub_u32 s4, s2, 128
    s_movk_i32 s5, 3584
    s_cmp_lt_u32 s2, 128
    s_cselect_b32 s5, 0x2000, s5
    s_lshl_b32 s6, s2, 6
    s_lshl_b32 s7, s4, 5
    v_mul_lo_u32 v5, v3, s5
    s_mul_i32 s8, s5, 112
    v_cmp_lt_u32 vcc, 1, v4
    v_and_b32 v6, 1, v4
    s_waitcnt lgkmcnt(0)
    s_mov_b32 s40, s16
    s_mov_b32 s41, s17
    s_mov_b32 s48, s38
    s_mov_b32 s49, s39
    """)
    for i in range(7): a(f"buffer_load_dword v{XD+i}, v2, s[40:43], 0 offen offset:{i*128}")
    a(f"""
    s_cmp_ge_u32 s2, 240
    s_cbranch_scc1 {L('clear')}
    s_cmp_lt_u32 s2, 128
    s_cbranch_scc1 {L('qaddr')}
    v_mov_b32 v32, s28
    v_mov_b32 v33, s30
    v_cndmask_b32 v32, v32, v33, vcc
    v_mov_b32 v33, s29
    v_mov_b32 v34, s31
    v_cndmask_b32 v33, v33, v34, vcc
    v_lshl_add_u32 v5, v6, 4, v5
    v_add_u32 v5, s7, v5
    s_branch {L('ld')}
    """)
    a.label(L('qaddr'))
    a(f"""
    v_mov_b32 v32, s22
    v_mov_b32 v33, s23
    v_lshl_add_u32 v5, v4, 4, v5
    v_add_u32 v5, s6, v5
    """)
    a.label(L('ld'))
    a("v_add_co_u32 v6, vcc, v32, v5\nv_addc_co_u32 v7, vcc, 0, v33, vcc")
    for i in range(4):
        a(f"global_load_dwordx4 v[{W+4*i}:{W+4*i+3}], v[6:7], off{' nt' if nt else ''}")
        if i<3: a("v_add_co_u32 v6, vcc, s8, v6\nv_addc_co_u32 v7, vcc, 0, v7, vcc")
    a.label(L('clear'))
    a(f"""
    v_mov_b32 v{ACC}, -1
    v_mov_b32 v{ACC+1}, -1
    v_mov_b32 v{ACC+2}, -1
    v_mov_b32 v{ACC+3}, -1
    v_mov_b32 v{ACC+4}, 0
    v_lshlrev_b32 v6, 4, v0
    s_lshl_b32 s9, s2, 13
    buffer_store_dwordx4 v[{ACC}:{ACC+3}], v6, s[48:51], s9 offen
    s_add_u32 s9, s9, {CNTO}
    buffer_store_dword v{ACC+4}, off, s[48:51], s9
    s_cmp_ge_u32 s2, 240
    s_cbranch_scc1 {L('end')}
    s_waitcnt vmcnt(6)
    """)
    layernorm(a,XD,XF,5,6,7,11)
    for i in range(7): a(f"v_cvt_pk_bf16_f32 v{XD+i}, v{XF+2*i}, v{XF+2*i+1}")
    for i in range(7):
        a(f"v_lshlrev_b32 v{XF+2*i}, 16, v{XD+i}")
        a(f"v_and_b32 v{XF+2*i+1}, 0xffff0000, v{XD+i}")
    a("v_lshlrev_b32 v2, 1, v2")
    for i in range(7): a(f"ds_write_b64 v2, v[{XF+2*i}:{XF+2*i+1}] offset:{XN+i*256}")
    a("v_lshlrev_b32 v3, 2, v3\ns_waitcnt lgkmcnt(0)")
    for b in range(2):
        for i in range(4): a(f"ds_read_b32 v{XV+b*4+i}, v3 offset:{XN+b*1792+i*448}")
    a("s_waitcnt lgkmcnt(0)")
    for i in range(4):
        a(f"s_waitcnt vmcnt({5-i})")
        for d in range(4):
            a(f"v_lshlrev_b32 v{U+2*d}, 16, v{W+4*i+d}")
            a(f"v_and_b32 v{U+2*d+1}, 0xffff0000, v{W+4*i+d}")
        for b in range(2):
            for e in range(8):
                op="v_mul_f32" if i==0 else "v_fmac_f32"
                a(f"{op} v{ACC+b*8+e}, v{XV+b*4+i}, v{U+e}")
    for e in range(8): a(f"v_permlane16_swap_b32 v{ACC+e}, v{ACC+8+e}")
    for e in range(8): a(f"v_add_f32 v{ACC+e}, v{ACC+e}, v{ACC+8+e}")
    for e in range(4): a(f"v_permlane32_swap_b32 v{ACC+e}, v{ACC+4+e}")
    for e in range(4): a(f"v_add_f32 v{ACC+e}, v{ACC+e}, v{ACC+4+e}")
    for m in ("row_ror:8","row_ror:4"):
        for e in range(4): a(f"v_add_f32_dpp v{ACC+e}, v{ACC+e}, v{ACC+e} {m} {DPPT}")
    a(f"""
    v_lshrrev_b32 v5, 6, v0
    v_lshlrev_b32 v5, 8, v5
    v_bfe_u32 v6, v0, 4, 1
    v_lshl_add_u32 v5, v6, 7, v5
    v_lshl_add_u32 v5, v4, 5, v5
    v_bfe_u32 v6, v0, 5, 1
    v_lshl_add_u32 v5, v6, 4, v5
    ds_write_b128 v5, v[{ACC}:{ACC+3}] offset:{RED}
    v_lshrrev_b32 v6, 6, v0
    s_waitcnt lgkmcnt(0)
    v_readfirstlane_b32 s3, v6
    s_barrier
    s_cmp_lg_u32 s3, 0
    s_cbranch_scc1 {L('end')}
    v_lshlrev_b32 v5, 2, v0
    """)
    for w in range(7): a(f"ds_read_b32 v{U+w}, v5 offset:{RED+w*256}")
    a(f"""
    v_lshrrev_b32 v6, 5, v0
    s_waitcnt lgkmcnt(0)
    v_add_f32 v{U}, v{U}, v{U+1}
    v_add_f32 v{U+2}, v{U+2}, v{U+3}
    v_add_f32 v{U+4}, v{U+4}, v{U+5}
    v_add_f32 v{U}, v{U}, v{U+2}
    v_add_f32 v{U+4}, v{U+4}, v{U+6}
    v_add_f32 v{U}, v{U}, v{U+4}
    v_cvt_pk_bf16_f32 v{U}, v{U}, v{U}
    s_cmp_ge_u32 s2, 128
    s_cbranch_scc1 {L('ffn')}
    v_lshlrev_b32 v6, 13, v6
    v_and_b32 v7, 31, v0
    v_lshl_add_u32 v6, v7, 1, v6
    s_add_u32 s6, s6, {QOFF}
    buffer_store_short v{U}, v6, s[48:51], s6 offen
    s_endpgm
    """)
    a.label(L('ffn'))
    a(f"""
    v_lshlrev_b32 v{U}, 16, v{U}
    v_mov_b32 v{U+1}, v{U}
    v_permlane16_swap_b32 v{U}, v{U+1}
    v_mul_f32 v9, {f32(-math.log2(math.e))}, v{U}
    v_exp_f32 v9, v9
    v_add_f32 v9, 1.0, v9
    v_rcp_f32 v9, v9
    v_mul_f32 v9, v9, v{U}
    v_cvt_pk_bf16_f32 v9, v9, v9
    v_lshlrev_b32 v9, 16, v9
    v_mul_f32 v9, v9, v{U+1}
    v_cvt_pk_bf16_f32 v9, v9, v9
    v_mul_u32_u24 v6, 7168, v6
    v_and_b32 v7, 15, v0
    v_lshl_add_u32 v6, v7, 2, v6
    s_lshl_b32 s7, s4, 6
    s_add_u32 s7, s7, {HSOFF}
    buffer_store_dword v9, v6, s[48:51], s7 offen
    """)
    a.label(L('end'))
    a("s_endpgm")
    return a.text(), kd(K,80,64,80), LDS

def gen_main(K=NAME+"_kernel", NB=2, NS=22, round_scores=True, spin_max=1<<17, stamps=False, dyn=True, skip_tail=False):
    a=Asm(); L=lambda s: f"L_{K[-12:]}_{s}"
    CEXP=math.log2(math.e)/16.0
    OP=0; ML=16384; LDS=81920+1024
    assert NS%NB==0
    KS=2*NB if dyn else 32-NS
    POOL=2048-(NS+KS)*64
    def stamp(i):
        if stamps: a(f"s_memrealtime s[{80+2*i}:{81+2*i}]\ns_waitcnt lgkmcnt(0)")
    KO=[1,2]; VO=[3,4]; vM=5; vL=6
    MASK=16; Q=20; O=28; DS=36; A=[52,56]; S=60
    Q2=64; SV=72; TK=82; D=88; XR=92; HC=96; RING=100
    WO=0; W2=32
    assert RING+NB*64<=256
    Kr=lambda nb,j: RING+nb*64+j*4
    Vr=lambda nb,j: RING+nb*64+32+j*4
    a.raw(f".globl {K}\n.p2align 8\n.type {K},@function\n{K}:")
    a(f"""
    s_cmp_ge_u32 s2, 256
    s_cbranch_scc1 {L('end')}
    s_load_dwordx16 s[16:31], s[0:1], 0
    s_load_dwordx8 s[32:39], s[0:1], 64
    v_lshrrev_b32 v1, 6, v0
    v_and_b32 v0, 63, v0
    v_readfirstlane_b32 s3, v1
    s_and_b32 s4, s2, 15
    s_lshr_b32 s5, s2, 4
    """)
    if stamps:
        for i in range(80,96): a(f"s_mov_b32 s{i}, 0")
        a("s_mov_b32 s96, s3")
    stamp(0)
    a(f"""
    v_and_b32 v1, 3, v0
    v_lshlrev_b32 v1, 4, v1
    v_lshrrev_b32 v7, 4, v0
    v_lshl_add_u32 v1, v7, 6, v1
    v_bfe_u32 v9, v0, 3, 1
    v_lshl_add_u32 v9, v9, 9, v1
    v_bfe_u32 v8, v0, 2, 2
    v_lshl_add_u32 v1, v8, 9, v1
    v_add_u32 v2, 0x1000, v1
    v_and_b32 v10, 15, v0
    v_lshlrev_b32 v10, 4, v10
    v_lshl_add_u32 v3, v7, 9, v10
    v_add_u32 v4, 0x1000, v3
    s_lshl_b32 s6, s4, 24
    s_lshl_b32 s7, s5, 2
    s_add_u32 s7, s7, s3
    s_lshl_b32 s7, s7, 13
    s_add_u32 s6, s6, s7
    s_lshl_b32 s12, s4, 10
    s_add_u32 s12, s12, {QOFF}
    s_lshl_b32 s13, s5, 10
    s_add_u32 s13, s13, {QOFF}
    s_mov_b32 s42, 0x10000000
    s_mov_b32 s43, 0x20000
    s_mov_b32 s46, 0x10000000
    s_mov_b32 s47, 0x20000
    s_mov_b32 s50, {WSB}
    s_mov_b32 s51, 0x20000
    s_waitcnt lgkmcnt(0)
    s_mov_b32 s48, s38
    s_mov_b32 s49, s39
    s_mov_b32 s40, s18
    s_mov_b32 s41, s19
    s_mov_b32 s44, s20
    s_mov_b32 s45, s21
    buffer_load_dwordx4 v[{Q}:{Q+3}], v9, s[48:51], s12 offen
    buffer_load_dwordx4 v[{Q+4}:{Q+7}], v9, s[48:51], s12 offen offset:256
    """)
    def ldK(nb,j,so="s14"):
        kk,h=j>>1,j&1; r=Kr(nb,j)
        a(f"buffer_load_dwordx4 v[{r}:{r+3}], v{KO[kk>>1]}, s[40:43], {so} offen offset:{(kk&1)*2048+h*256} nt")
    def ldV(nb,j,so="s14"):
        kk,h=j>>1,j&1; r=Vr(nb,j)
        a(f"buffer_load_dwordx4 v[{r}:{r+3}], v{VO[kk>>1]}, s[44:47], {so} offen offset:{(kk&1)*2048+h*256} nt")
    a(f"""
    s_lshl_b32 s7, s5, 13
    s_add_u32 s7, s7, {CNTO}
    s_add_u32 s64, s38, s7
    s_addc_u32 s65, s39, 0
    s_mov_b32 s66, 0
    s_mov_b32 s67, 0x20000
    """)
    def ticket(nb):
        a(f"""
        v_mov_b32 v{TK+nb}, 1
        s_mov_b64 exec, 1
        buffer_atomic_add v{TK+nb}, off, s[64:67], 0 sc0
        s_mov_b64 exec, -1
        """)
    def preloads():
        a(f"""
        s_mov_b32 s52, s24
        s_mov_b32 s53, s25
        s_mov_b32 s54, {4096*896}
        s_mov_b32 s55, 0x20000
        s_mov_b32 s56, s32
        s_mov_b32 s57, s33
        s_mov_b32 s58, {1792*896}
        s_mov_b32 s59, 0x20000
        s_mov_b32 s60, s16
        s_mov_b32 s61, s17
        s_mov_b32 s62, 1792
        s_mov_b32 s63, 0x20000
        s_lshl_b32 s68, s4, 4
        s_add_u32 s68, s68, s5
        s_and_b32 s69, s68, 127
        s_lshr_b32 s70, s68, 7
        s_lshl_b32 s68, s68, 13
        v_mul_u32_u24 v11, {8*896}, v7
        v_add_u32 v11, v11, v10
        s_mul_i32 s71, s69, {32*896}
        s_lshl_b32 s72, s3, 8
        s_add_u32 s71, s71, s72
        s_add_u32 s73, s71, {4*896}
        buffer_load_dwordx4 v[{Q2}:{Q2+3}], v9, s[48:51], s13 offen
        buffer_load_dwordx4 v[{Q2+4}:{Q2+7}], v9, s[48:51], s13 offen offset:256
        """)
        for kk in range(8):
            r=WO+kk*4
            a(f"buffer_load_dwordx4 a[{r}:{r+3}], v11, s[52:55], s{71 if kk<4 else 73} offen offset:{(kk&3)*896} nt")
        a(f"""
        v_mul_u32_u24 v11, {4*896}, v7
        v_add_u32 v11, v11, v10
        s_mul_i32 s71, s69, {14*896}
        s_add_u32 s71, s71, s72
        """)
        for kk in range(4):
            r=W2+kk*4
            a(f"buffer_load_dwordx4 a[{r}:{r+3}], v11, s[56:59], s71 offen offset:{kk*896} nt")
        a(f"""
        v_lshlrev_b32 v11, 4, v7
        s_mul_i32 s71, s69, 56
        s_mul_i32 s72, s70, 7168
        s_add_u32 s71, s71, s72
        s_add_u32 s71, s71, {HSOFF}
        buffer_load_dwordx4 v[{HC}:{HC+3}], v11, s[48:51], s71 offen
        s_lshl_b32 s74, s69, 3
        s_mul_i32 s72, s70, 896
        s_add_u32 s74, s74, s72
        buffer_load_dwordx2 v[{XR}:{XR+1}], off, s[60:63], s74
        """)
    preloads()
    for nb in range(NB):
        ticket(nb)
        for j in range(8): ldK(nb,j,"s6")
        for j in range(8): ldV(nb,j,"s6")
        a("s_add_u32 s6, s6, 0x80000")
    a(f"""
    v_and_b32 v7, 1, v0
    v_cmp_eq_u32 vcc, 1, v7
    v_mov_b32 v8, 0xffff
    v_mov_b32 v9, 0xffff0000
    v_cndmask_b32 v8, v8, v9, vcc
    v_bfe_u32 v7, v0, 1, 2
    """)
    for r in range(4):
        a(f"v_cmp_eq_u32 vcc, {r}, v7\nv_cndmask_b32 v{MASK+r}, 0, v8, vcc")
    a(f"""
    v_lshrrev_b32 v7, 2, v0
    v_xor_b32 v7, v7, v0
    v_and_b32 v7, 8, v7
    v_cmp_ne_u32 s[8:9], 0, v7
    s_mov_b32 s10, {f32(CEXP)}
    s_mov_b32 s11, 0
    v_mov_b32 v{vM}, 0xff7fffff
    v_mov_b32 v{vL}, 0
    s_lshl_b32 s75, s5, 24
    s_lshl_b32 s15, s4, 2
    s_add_u32 s15, s15, s3
    s_add_u32 s15, s15, {NS*64}
    s_lshl_b32 s15, s15, 13
    s_add_u32 s15, s15, s75
    s_add_u32 s75, s75, {(NS+KS)*64*8192}
    s_mov_b32 s76, -1
    """)
    for i in range(8): a(f"v_mov_b32 v{O+i}, 0")
    W0=17*NB-2; W=17*NB-1
    a.flush()
    a.label(L('loop'))
    a(f"s_cmp_eq_u32 s11, {NS}\ns_cbranch_scc1 {L('switch')}")
    a.label(L('loop2'))
    for nb in range(NB):
        a.comment(f"---- sub-iteration {nb}")
        a(f"""
        s_waitcnt vmcnt({W0})
        v_readfirstlane_b32 s77, v{TK+nb}
        s_add_u32 s79, s11, {NB}
        s_lshl_b32 s78, s77, 13
        s_add_u32 s78, s78, s75
        s_cmp_ge_u32 s11, {NS+KS-NB}
        s_cselect_b32 s14, s78, s6
        s_cselect_b32 s77, s77, 0
        s_cselect_b32 s78, {POOL}, 1
        s_cmp_ge_u32 s77, s78
        s_cselect_b32 s42, 0, s42
        s_cselect_b32 s46, 0, s46
        s_cselect_b32 s66, 0, s66
        s_cselect_b32 s79, s79, -1
        s_min_u32 s76, s76, s79
        """)
        ticket(nb)
        for j in range(8):
            kk,h=j>>1,j&1; r=Kr(nb,j); d=DS+kk*4
            if j: a(f"s_waitcnt vmcnt({W})")
            c="0" if h==0 else f"v[{d}:{d+3}]"
            a(f"v_mfma_f32_16x16x32_bf16 v[{d}:{d+3}], v[{r}:{r+3}], v[{Q+h*4}:{Q+h*4+3}], {c}")
            ldK(nb,j)
        for kk in range(4):
            d=DS+kk*4; s=S+kk
            a(f"v_mov_b32_dpp v{s}, v{d} quad_perm:[0,0,0,0] {DPPT}")
            for r in range(1,4):
                a(f"v_add_f32_dpp v{s}, v{d+r}, v{s} quad_perm:[{r},{r},{r},{r}] {DPPT}")
        if round_scores:
            a(f"""
            v_cvt_pk_bf16_f32 v7, v{S}, v{S+1}
            v_cvt_pk_bf16_f32 v8, v{S+2}, v{S+3}
            v_lshlrev_b32 v{S}, 16, v7
            v_and_b32 v{S+1}, 0xffff0000, v7
            v_lshlrev_b32 v{S+2}, 16, v8
            v_and_b32 v{S+3}, 0xffff0000, v8
            """)
        a(f"""
        v_max3_f32 v7, v{S}, v{S+1}, v{S+2}
        v_max3_f32 v7, v7, v{S+3}, v{vM}
        v_mov_b32 v8, v7
        v_permlane16_swap_b32 v8, v7
        v_max_f32 v7, v7, v8
        v_mov_b32 v8, v7
        v_permlane32_swap_b32 v8, v7
        v_max_f32 v7, v7, v8
        v_sub_f32 v8, v{vM}, v7
        v_mul_f32 v8, s10, v8
        v_exp_f32 v8, v8
        v_mov_b32 v{vM}, v7
        v_mul_f32 v9, s10, v7
        v_mov_b32_dpp v10, v8 row_ror:8 {DPPT}
        v_mul_f32 v{vL}, v{vL}, v8
        v_cndmask_b32 v10, v8, v10, s[8:9]
        """)
        for i in range(8): a(f"v_mul_f32 v{O+i}, v{O+i}, v10")
        for kk in range(4): a(f"v_fma_f32 v{S+kk}, v{S+kk}, s10, -v9")
        for kk in range(4): a(f"v_exp_f32 v{S+kk}, v{S+kk}")
        for kk in range(4):
            Ar=A[kk&1]
            a(f"v_cvt_pk_bf16_f32 v11, v{S+kk}, v{S+kk}")
            a(f"v_add_f32 v{vL}, v{vL}, v{S+kk}")
            for r in range(4): a(f"v_and_b32 v{Ar+r}, v11, v{MASK+r}")
            for h in range(2):
                j=kk*2+h; r=Vr(nb,j); o=O+h*4
                a(f"s_waitcnt vmcnt({W})")
                a(f"v_mfma_f32_16x16x32_bf16 v[{o}:{o+3}], v[{Ar}:{Ar+3}], v[{r}:{r+3}], v[{o}:{o+3}]")
                ldV(nb,j)
        a(f"""
        s_add_u32 s6, s6, 0x80000
        s_add_u32 s11, s11, 1
        s_cmp_eq_u32 s11, {NS-NB}
        s_cselect_b32 s6, s15, s6
        s_cmp_eq_u32 s11, s76
        """)
        if nb<NB-1: a(f"s_cbranch_scc1 {L('sdone')}")
        else: a(f"s_cbranch_scc0 {L('loop')}")
    a(f"s_branch {L('sdone')}")
    a.label(L('switch'))
    stamp(1)
    for i in range(8): a(f"v_mov_b32 v{SV+i}, v{O+i}")
    a(f"v_mov_b32 v{SV+8}, v{vM}\nv_mov_b32 v{SV+9}, v{vL}")
    for i in range(8): a(f"v_mov_b32 v{O+i}, 0\nv_mov_b32 v{Q+i}, v{Q2+i}")
    a(f"""
    v_mov_b32 v{vM}, 0xff7fffff
    v_mov_b32 v{vL}, 0
    s_mov_b32 s66, {4 if dyn else 0}
    v_cmp_gt_u32 vcc, 48, v0
    v_cndmask_b32 v{HC+2}, 0, v{HC+2}, vcc
    v_cndmask_b32 v{HC+3}, 0, v{HC+3}, vcc
    """)
    for kk in range(4):
        Ar=A[kk&1]; r=W2+kk*4
        for q in range(4): a(f"v_and_b32 v{Ar+q}, v{HC+kk}, v{MASK+q}")
        c="0" if kk==0 else f"v[{D}:{D+3}]"
        a(f"v_mfma_f32_16x16x32_bf16 v[{D}:{D+3}], v[{Ar}:{Ar+3}], a[{r}:{r+3}], {c}")
    a(f"s_branch {L('loop2')}")
    a.label(L('sdone'))
    stamp(2)
    for lr in (vL,SV+9):
        a(f"""
        v_mov_b32 v8, v{lr}
        v_permlane16_swap_b32 v8, v{lr}
        v_add_f32 v{lr}, v{lr}, v8
        v_mov_b32 v8, v{lr}
        v_permlane32_swap_b32 v8, v{lr}
        v_add_f32 v{lr}, v{lr}, v8
        """)
    a(f"""
    v_lshrrev_b32 v7, 5, v0
    v_lshlrev_b32 v7, 10, v7
    v_and_b32 v8, 15, v0
    v_lshl_add_u32 v7, v8, 5, v7
    v_bfe_u32 v8, v0, 4, 1
    v_lshl_add_u32 v7, v8, 4, v7
    s_lshl_b32 s7, s3, 11
    v_add_u32 v7, s7, v7
    ds_write_b128 v7, v[{SV}:{SV+3}] offset:{OP}
    ds_write_b128 v7, v[{SV+4}:{SV+7}] offset:{OP+512}
    ds_write_b128 v7, v[{O}:{O+3}] offset:{OP+8192}
    ds_write_b128 v7, v[{O+4}:{O+7}] offset:{OP+8192+512}
    v_bfe_u32 v8, v0, 3, 1
    v_lshlrev_b32 v8, 5, v8
    s_lshl_b32 s7, s3, 2
    v_add_u32 v8, s7, v8
    ds_write_b32 v8, v{SV+8} offset:{ML}
    ds_write_b32 v8, v{SV+9} offset:{ML+16}
    ds_write_b32 v8, v{vM} offset:{ML+64}
    ds_write_b32 v8, v{vL} offset:{ML+64+16}
    """)
    a(f"""
    s_lshr_b32 s12, s3, 1
    s_and_b32 s13, s3, 1
    s_lshl_b32 s7, s12, 13
    s_lshl_b32 s14, s13, 10
    s_add_u32 s7, s7, s14
    v_lshlrev_b32 v7, 4, v0
    v_add_u32 v7, s7, v7
    s_lshl_b32 s7, s3, 5
    v_mov_b32 v8, s7
    s_add_u32 s15, s4, 16
    s_cmp_eq_u32 s12, 0
    s_cselect_b32 s14, s4, s5
    s_cselect_b32 s15, s5, s15
    s_lshl_b32 s14, s14, 4
    s_lshl_b32 s13, s13, 3
    s_add_u32 s14, s14, s13
    s_lshl_b32 s14, s14, 13
    s_lshl_b32 s12, s15, 7
    s_add_u32 s12, s12, s14
    s_lshl_b32 s13, s15, 3
    s_add_u32 s13, s13, s14
    s_add_u32 s13, s13, {H1ML}
    v_lshrrev_b32 v9, 3, v0
    v_lshlrev_b32 v9, 13, v9
    v_and_b32 v10, 7, v0
    v_lshl_add_u32 v11, v10, 4, v9
    v_cmp_eq_u32 vcc, 0, v10
    s_waitcnt lgkmcnt(0)
    s_barrier
    """)
    stamp(3)
    if skip_tail: a(f"s_branch {L('end')}")
    a(f"""
    ds_read_b128 v[{Q}:{Q+3}], v8 offset:{ML}
    ds_read_b128 v[{Q+4}:{Q+7}], v8 offset:{ML+16}
    """)
    for w in range(4): a(f"ds_read_b128 v[{DS+4*w}:{DS+4*w+3}], v7 offset:{OP+w*2048}")
    a(f"""
    s_waitcnt lgkmcnt(4)
    v_max3_f32 v12, v{Q}, v{Q+1}, v{Q+2}
    v_max_f32 v12, v12, v{Q+3}
    """)
    for w in range(4): a(f"v_sub_f32 v{Q+w}, v{Q+w}, v12")
    for w in range(4): a(f"v_mul_f32 v{Q+w}, s10, v{Q+w}")
    for w in range(4): a(f"v_exp_f32 v{Q+w}, v{Q+w}")
    a(f"v_mul_f32 v13, v{Q}, v{Q+4}")
    for w in range(1,4): a(f"v_fmac_f32 v13, v{Q+w}, v{Q+4+w}")
    a("s_waitcnt lgkmcnt(0)")
    for e in range(4):
        a(f"v_mul_f32 v{O+e}, v{Q}, v{DS+e}")
        for w in range(1,4): a(f"v_fmac_f32 v{O+e}, v{Q+w}, v{DS+4*w+e}")
    for e in range(4): a(f"v_min_u32 v{O+e}, -2, v{O+e}")
    a(f"""
    v_min_u32 v12, -2, v12
    v_min_u32 v13, -2, v13
    buffer_store_dwordx4 v[{O}:{O+3}], v11, s[48:51], s12 offen sc1
    s_mov_b64 exec, vcc
    buffer_store_dwordx2 v[12:13], v9, s[48:51], s13 offen sc1
    s_mov_b64 exec, -1
    """)
    a(f"""
    v_lshrrev_b32 v4, 4, v0
    v_and_b32 v6, 15, v0
    v_lshlrev_b32 v7, 7, v6
    v_lshl_add_u32 v7, v4, 5, v7
    v_lshlrev_b32 v8, 3, v6
    v_add_u32 v8, {H1ML}, v8
    v_bfe_u32 v9, v0, 4, 1
    v_lshl_add_u32 v9, v6, 1, v9
    s_lshl_b32 s7, s3, 5
    v_add_u32 v9, s7, v9
    v_cmp_gt_u32 vcc, 112, v9
    v_cmp_gt_u32 s[72:73], 32, v0
    s_and_b64 s[72:73], s[72:73], vcc
    s_lshl_b32 s7, s70, 7
    v_add_u32 v9, s7, v9
    v_lshlrev_b32 v9, 13, v9
    s_lshl_b32 s75, s69, 4
    s_add_u32 s75, s75, {H2}
    v_lshlrev_b32 v14, 4, v0
    v_add_u32 v14, {H2}, v14
    s_mov_b32 s71, 0
    """)
    PO=DS; PM=Q
    a.flush()
    a.label(L('p1'))
    a(f"""
    buffer_load_dwordx4 v[{PO}:{PO+3}], v7, s[48:51], s68 offen sc1
    buffer_load_dwordx4 v[{PO+4}:{PO+7}], v7, s[48:51], s68 offen offset:16 sc1
    buffer_load_dwordx4 v[{PO+8}:{PO+11}], v7, s[48:51], s68 offen offset:2048 sc1
    buffer_load_dwordx4 v[{PO+12}:{PO+15}], v7, s[48:51], s68 offen offset:2064 sc1
    buffer_load_dwordx2 v[{PM}:{PM+1}], v8, s[48:51], s68 offen sc1
    buffer_load_dwordx2 v[{PM+2}:{PM+3}], v8, s[48:51], s68 offen offset:128 sc1
    s_waitcnt vmcnt(0)
    v_max3_u32 v12, v{PO}, v{PO+1}, v{PO+2}
    v_max3_u32 v13, v{PO+3}, v{PO+4}, v{PO+5}
    v_max3_u32 v12, v12, v{PO+6}, v{PO+7}
    v_max3_u32 v13, v13, v{PO+8}, v{PO+9}
    v_max3_u32 v12, v12, v{PO+10}, v{PO+11}
    v_max3_u32 v13, v13, v{PO+12}, v{PO+13}
    v_max3_u32 v12, v12, v{PO+14}, v{PO+15}
    v_max3_u32 v13, v13, v{PM}, v{PM+1}
    v_max3_u32 v12, v12, v{PM+2}, v{PM+3}
    v_max_u32 v12, v12, v13
    v_cmp_eq_u32 vcc, -1, v12
    s_add_u32 s71, s71, 1
    s_cmp_ge_u32 s71, {spin_max}
    s_cbranch_scc1 {L('p1d')}
    s_cbranch_vccnz {L('p1')}
    """)
    a.label(L('p1d'))
    stamp(5)
    a(f"v_max_f32 v12, v{PM}, v{PM+2}")
    for m in R16: a(f"v_max_f32_dpp v12, v12, v12 {m} {DPPT}")
    a(f"""
    v_sub_f32 v10, v{PM}, v12
    v_sub_f32 v11, v{PM+2}, v12
    v_mul_f32 v10, s10, v10
    v_mul_f32 v11, s10, v11
    v_exp_f32 v10, v10
    v_exp_f32 v11, v11
    v_mul_f32 v13, v10, v{PM+1}
    v_fmac_f32 v13, v11, v{PM+3}
    """)
    for q in range(8): a(f"v_mul_f32 v{PO+q}, v{PO+q}, v10")
    for q in range(8): a(f"v_fmac_f32 v{PO+q}, v{PO+8+q}, v11")
    for m in R16:
        a(f"v_add_f32_dpp v13, v13, v13 {m} {DPPT}")
        for q in range(8): a(f"v_add_f32_dpp v{PO+q}, v{PO+q}, v{PO+q} {m} {DPPT}")
    a("v_rcp_f32 v13, v13")
    for q in range(8): a(f"v_mul_f32 v{PO+q}, v{PO+q}, v13")
    for q in range(8): a(f"v_cvt_pk_bf16_f32 v{PO+q}, v{PO+q}, v{PO+q}")
    for kk in range(8):
        Ar=A[kk&1]; r=WO+kk*4
        for q in range(4): a(f"v_and_b32 v{Ar+q}, v{PO+kk}, v{MASK+q}")
        a(f"v_mfma_f32_16x16x32_bf16 v[{D}:{D+3}], v[{Ar}:{Ar+3}], a[{r}:{r+3}], v[{D}:{D+3}]")
    for q in range(4): a(f"v_min_u32 v{D+q}, -2, v{D+q}")
    a(f"""
    s_mov_b64 exec, s[72:73]
    buffer_store_dwordx4 v[{D}:{D+3}], v9, s[48:51], s75 offen sc1
    s_mov_b64 exec, -1
    s_cmp_lg_u32 s3, 3
    s_cbranch_scc1 {L('end')}
    s_cmp_ge_u32 s69, 112
    s_cbranch_scc1 {L('end')}
    s_mov_b32 s60, s34
    s_mov_b32 s61, s35
    s_mov_b32 s71, 0
    v_lshlrev_b32 v{O}, 16, v{XR}
    v_and_b32 v{O+1}, 0xffff0000, v{XR}
    v_lshlrev_b32 v{O+2}, 16, v{XR+1}
    v_and_b32 v{O+3}, 0xffff0000, v{XR+1}
    """)
    P2=DS
    a.flush()
    a.label(L('p2'))
    a(f"""
    buffer_load_dwordx4 v[{P2}:{P2+3}], v14, s[48:51], s68 offen sc1
    buffer_load_dwordx4 v[{P2+4}:{P2+7}], v14, s[48:51], s68 offen offset:1024 sc1
    s_waitcnt vmcnt(0)
    v_max3_u32 v12, v{P2}, v{P2+1}, v{P2+2}
    v_max3_u32 v13, v{P2+3}, v{P2+4}, v{P2+5}
    v_max3_u32 v12, v12, v{P2+6}, v{P2+7}
    v_max_u32 v12, v12, v13
    v_cmp_eq_u32 vcc, -1, v12
    s_add_u32 s71, s71, 1
    s_cmp_ge_u32 s71, {spin_max}
    s_cbranch_scc1 {L('p2d')}
    s_cbranch_vccnz {L('p2')}
    """)
    a.label(L('p2d'))
    stamp(6)
    for q in range(4): a(f"v_add_f32 v{P2+q}, v{P2+q}, v{P2+4+q}")
    a(f"""
    v_permlane16_swap_b32 v{P2}, v{P2+1}
    v_permlane16_swap_b32 v{P2+2}, v{P2+3}
    v_add_f32 v{P2}, v{P2}, v{P2+1}
    v_add_f32 v{P2+2}, v{P2+2}, v{P2+3}
    v_permlane32_swap_b32 v{P2}, v{P2+2}
    v_add_f32 v{P2}, v{P2}, v{P2+2}
    """)
    for m in R16: a(f"v_add_f32_dpp v{P2}, v{P2}, v{P2} {m} {DPPT}")
    a(f"""
    v_cmp_eq_u32 vcc, 1, v4
    v_cndmask_b32 v{O}, v{O}, v{O+1}, vcc
    v_cmp_eq_u32 vcc, 2, v4
    v_cndmask_b32 v{O}, v{O}, v{O+2}, vcc
    v_cmp_eq_u32 vcc, 3, v4
    v_cndmask_b32 v{O}, v{O}, v{O+3}, vcc
    v_add_f32 v{P2}, v{P2}, v{O}
    v_cvt_pk_bf16_f32 v{P2}, v{P2}, v{P2}
    v_lshlrev_b32 v4, 1, v4
    v_cmp_eq_u32 vcc, 0, v6
    s_mov_b64 exec, vcc
    buffer_store_short v{P2}, v4, s[60:63], s74 offen
    """)
    a.label(L('end'))
    if stamps:
        a(f"s_cmp_ge_u32 s2, 256\ns_cbranch_scc1 {L('end2')}")
        a("s_waitcnt vmcnt(0)")
        stamp(7)
        a(f"""
        s_mov_b64 exec, 1
        s_mov_b32 s50, 0x1000000
        s_mov_b32 s88, s11
        s_mov_b32 s89, 0
        s_lshl_b32 s11, s2, 2
        s_add_u32 s11, s11, s96
        s_lshl_b32 s11, s11, 6
        s_add_u32 s11, s11, 0x400000
        """)
        for i in range(4):
            for q in range(4): a(f"v_mov_b32 v{4+q}, s{80+4*i+q}")
            a(f"buffer_store_dwordx4 v[4:7], off, s[48:51], s11 offset:{16*i}")
        a.label(L('end2'))
    a("s_endpgm")
    return a.text(), kd(K,256+48,100 if stamps else 80,256), LDS

HDR=open("cdna_kernels/"+NAME+".s.ref").read().split("; Override launch")[0]
def write_main(path, prep_kw={}, **kw):
    t0,kd0,lds0=gen_prep(**prep_kw)
    t,kd1,lds=gen_main(**kw)
    s=HDR
    s+=f"; @launch kernel=prep_kernel grid=(256,1,1) block=(448,1,1) lds={lds0}\n"
    s+=f"; @launch kernel={NAME}_kernel grid=(256,1,1) block=(256,1,1) lds={lds}\n"
    s+='.amdgcn_target "amdgcn-amd-amdhsa--gfx950"\n.text\n'+t0+t+'.section .rodata,"a"\n'+kd0+kd1
    open(path,"w").write(s)
if __name__=="__main__":
    write_main("cdna_kernels/"+NAME+".s")
```

```python
import struct, sys, math
from asmlib import Asm
NAME="parallel_sum__gqa_block_cached__glu_gated_swiglu__decode"
def f32(x): return "0x%08x"%struct.unpack("<I",struct.pack("<f",x))[0]
INB=8192; H1ML=4096; H2=4608; CNTO=7168
QOFF=256*INB; HSOFF=QOFF+16384; WSB=HSOFF+16384
R16=("quad_perm:[1,0,3,2]","quad_perm:[2,3,0,1]","row_half_mirror","row_mirror")
DPPT="row_mask:0xf bank_mask:0xf"

def kd(K,nv,ns,acc):
    return f""".p2align 6
.amdhsa_kernel {K}
  .amdhsa_next_free_vgpr {nv}
  .amdhsa_next_free_sgpr {ns}
  .amdhsa_accum_offset {acc}
  .amdhsa_group_segment_fixed_size 0
  .amdhsa_kernarg_size 96
  .amdhsa_user_sgpr_count 2
  .amdhsa_user_sgpr_kernarg_segment_ptr 1
  .amdhsa_system_sgpr_workgroup_id_x 1
  .amdhsa_float_denorm_mode_32 3
.end_amdhsa_kernel
"""

def layernorm(a, XD, XF, t0, t1, t2, sneg):
    for i in range(7):
        a(f"v_lshlrev_b32 v{XF+2*i}, 16, v{XD+i}")
        a(f"v_and_b32 v{XF+2*i+1}, 0xffff0000, v{XD+i}")
    def red32(r,t):
        for m in R16: a(f"v_add_f32_dpp v{r}, v{r}, v{r} {m} {DPPT}")
        a(f"v_mov_b32 v{t}, v{r}\nv_permlane16_swap_b32 v{t}, v{r}\nv_add_f32 v{r}, v{r}, v{t}")
    def div448(r,t):
        a(f"""
        v_mul_f32 v{t}, {f32(1/448)}, v{r}
        v_fma_f32 v{r}, v{t}, s{sneg}, v{r}
        v_fmac_f32 v{t}, {f32(1/448)}, v{r}
        v_mov_b32 v{r}, v{t}
        """)
    a(f"s_mov_b32 s{sneg}, {f32(-448.0)}")
    a(f"v_add_f32 v{t0}, v{XF}, v{XF+1}")
    a(f"v_add_f32 v{t1}, v{XF+2}, v{XF+3}")
    for i in range(4,14,2): a(f"v_add_f32 v{t0}, v{t0}, v{XF+i}\nv_add_f32 v{t1}, v{t1}, v{XF+i+1}")
    a(f"v_add_f32 v{t0}, v{t0}, v{t1}")
    red32(t0,t1); div448(t0,t1)
    a(f"v_sub_f32 v{t2}, v{XF}, v{t0}\nv_mul_f32 v{t1}, v{t2}, v{t2}")
    for i in range(1,14): a(f"v_sub_f32 v{t2}, v{XF+i}, v{t0}\nv_fmac_f32 v{t1}, v{t2}, v{t2}")
    red32(t1,t2); div448(t1,t2)
    a(f"""
    v_cvt_pk_bf16_f32 v{t0}, v{t0}, v{t1}
    v_and_b32 v{t1}, 0xffff0000, v{t0}
    v_lshlrev_b32 v{t0}, 16, v{t0}
    v_add_f32 v{t1}, {f32(1e-5)}, v{t1}
    v_cvt_pk_bf16_f32 v{t1}, v{t1}, v{t1}
    v_lshlrev_b32 v{t1}, 16, v{t1}
    v_sqrt_f32 v{t1}, v{t1}
    v_cvt_pk_bf16_f32 v{t1}, v{t1}, v{t1}
    v_lshlrev_b32 v{t1}, 16, v{t1}
    v_rcp_f32 v{t1}, v{t1}
    """)
    for i in range(14): a(f"v_sub_f32 v{XF+i}, v{XF+i}, v{t0}")
    for i in range(7): a(f"v_cvt_pk_bf16_f32 v{XD+i}, v{XF+2*i}, v{XF+2*i+1}")
    for i in range(7):
        a(f"v_lshlrev_b32 v{XF+2*i}, 16, v{XD+i}")
        a(f"v_and_b32 v{XF+2*i+1}, 0xffff0000, v{XD+i}")
    for i in range(14): a(f"v_mul_f32 v{XF+i}, v{XF+i}, v{t1}")

def gen_prep(K="prep_kernel", nt=True):
    a=Asm(); L=lambda s: f"L_{K}_{s}"
    XN=0; RED=3584; LDS=RED+7*256
    XD=8; W=16; XF=32; XV=48; ACC=56; U=72
    a.raw(f".globl {K}\n.p2align 8\n.type {K},@function\n{K}:")
    a(f"""
    s_cmp_ge_u32 s2, 256
    s_cbranch_scc1 {L('end')}
    s_load_dwordx16 s[16:31], s[0:1], 0
    s_load_dwordx2 s[38:39], s[0:1], 88
    v_and_b32 v1, 63, v0
    v_and_b32 v2, 31, v0
    v_lshlrev_b32 v2, 2, v2
    v_bfe_u32 v3, v0, 5, 1
    v_mul_u32_u24 v3, 896, v3
    v_add_u32 v2, v2, v3
    v_lshrrev_b32 v3, 2, v0
    v_and_b32 v4, 3, v0
    s_mov_b32 s42, 1792
    s_mov_b32 s43, 0x20000
    s_mov_b32 s50, {WSB}
    s_mov_b32 s51, 0x20000
    s_sub_u32 s4, s2, 128
    s_movk_i32 s5, 3584
    s_cmp_lt_u32 s2, 128
    s_cselect_b32 s5, 0x2000, s5
    s_lshl_b32 s6, s2, 6
    s_lshl_b32 s7, s4, 5
    v_mul_lo_u32 v5, v3, s5
    s_mul_i32 s8, s5, 112
    v_cmp_lt_u32 vcc, 1, v4
    v_and_b32 v6, 1, v4
    s_waitcnt lgkmcnt(0)
    s_mov_b32 s40, s16
    s_mov_b32 s41, s17
    s_mov_b32 s48, s38
    s_mov_b32 s49, s39
    """)
    for i in range(7): a(f"buffer_load_dword v{XD+i}, v2, s[40:43], 0 offen offset:{i*128}")
    a(f"""
    s_cmp_ge_u32 s2, 240
    s_cbranch_scc1 {L('clear')}
    s_cmp_lt_u32 s2, 128
    s_cbranch_scc1 {L('qaddr')}
    v_mov_b32 v32, s28
    v_mov_b32 v33, s30
    v_cndmask_b32 v32, v32, v33, vcc
    v_mov_b32 v33, s29
    v_mov_b32 v34, s31
    v_cndmask_b32 v33, v33, v34, vcc
    v_lshl_add_u32 v5, v6, 4, v5
    v_add_u32 v5, s7, v5
    s_branch {L('ld')}
    """)
    a.label(L('qaddr'))
    a(f"""
    v_mov_b32 v32, s22
    v_mov_b32 v33, s23
    v_lshl_add_u32 v5, v4, 4, v5
    v_add_u32 v5, s6, v5
    """)
    a.label(L('ld'))
    a("v_add_co_u32 v6, vcc, v32, v5\nv_addc_co_u32 v7, vcc, 0, v33, vcc")
    for i in range(4):
        a(f"global_load_dwordx4 v[{W+4*i}:{W+4*i+3}], v[6:7], off{' nt' if nt else ''}")
        if i<3: a("v_add_co_u32 v6, vcc, s8, v6\nv_addc_co_u32 v7, vcc, 0, v7, vcc")
    a.label(L('clear'))
    a(f"""
    v_mov_b32 v{ACC}, -1
    v_mov_b32 v{ACC+1}, -1
    v_mov_b32 v{ACC+2}, -1
    v_mov_b32 v{ACC+3}, -1
    v_mov_b32 v{ACC+4}, 0
    v_lshlrev_b32 v6, 4, v0
    s_lshl_b32 s9, s2, 13
    buffer_store_dwordx4 v[{ACC}:{ACC+3}], v6, s[48:51], s9 offen
    s_add_u32 s9, s9, {CNTO}
    buffer_store_dword v{ACC+4}, off, s[48:51], s9
    s_cmp_ge_u32 s2, 240
    s_cbranch_scc1 {L('end')}
    s_waitcnt vmcnt(6)
    """)
    layernorm(a,XD,XF,5,6,7,11)
    for i in range(7): a(f"v_cvt_pk_bf16_f32 v{XD+i}, v{XF+2*i}, v{XF+2*i+1}")
    for i in range(7):
        a(f"v_lshlrev_b32 v{XF+2*i}, 16, v{XD+i}")
        a(f"v_and_b32 v{XF+2*i+1}, 0xffff0000, v{XD+i}")
    a("v_lshlrev_b32 v2, 1, v2")
    for i in range(7): a(f"ds_write_b64 v2, v[{XF+2*i}:{XF+2*i+1}] offset:{XN+i*256}")
    a("v_lshlrev_b32 v3, 2, v3\ns_waitcnt lgkmcnt(0)")
    for b in range(2):
        for i in range(4): a(f"ds_read_b32 v{XV+b*4+i}, v3 offset:{XN+b*1792+i*448}")
    a("s_waitcnt lgkmcnt(0)")
    for i in range(4):
        a(f"s_waitcnt vmcnt({5-i})")
        for d in range(4):
            a(f"v_lshlrev_b32 v{U+2*d}, 16, v{W+4*i+d}")
            a(f"v_and_b32 v{U+2*d+1}, 0xffff0000, v{W+4*i+d}")
        for b in range(2):
            for e in range(8):
                op="v_mul_f32" if i==0 else "v_fmac_f32"
                a(f"{op} v{ACC+b*8+e}, v{XV+b*4+i}, v{U+e}")
    for e in range(8): a(f"v_permlane16_swap_b32 v{ACC+e}, v{ACC+8+e}")
    for e in range(8): a(f"v_add_f32 v{ACC+e}, v{ACC+e}, v{ACC+8+e}")
    for e in range(4): a(f"v_permlane32_swap_b32 v{ACC+e}, v{ACC+4+e}")
    for e in range(4): a(f"v_add_f32 v{ACC+e}, v{ACC+e}, v{ACC+4+e}")
    for m in ("row_ror:8","row_ror:4"):
        for e in range(4): a(f"v_add_f32_dpp v{ACC+e}, v{ACC+e}, v{ACC+e} {m} {DPPT}")
    a(f"""
    v_lshrrev_b32 v5, 6, v0
    v_lshlrev_b32 v5, 8, v5
    v_bfe_u32 v6, v0, 4, 1
    v_lshl_add_u32 v5, v6, 7, v5
    v_lshl_add_u32 v5, v4, 5, v5
    v_bfe_u32 v6, v0, 5, 1
    v_lshl_add_u32 v5, v6, 4, v5
    ds_write_b128 v5, v[{ACC}:{ACC+3}] offset:{RED}
    v_lshrrev_b32 v6, 6, v0
    s_waitcnt lgkmcnt(0)
    v_readfirstlane_b32 s3, v6
    s_barrier
    s_cmp_lg_u32 s3, 0
    s_cbranch_scc1 {L('end')}
    v_lshlrev_b32 v5, 2, v0
    """)
    for w in range(7): a(f"ds_read_b32 v{U+w}, v5 offset:{RED+w*256}")
    a(f"""
    v_lshrrev_b32 v6, 5, v0
    s_waitcnt lgkmcnt(0)
    v_add_f32 v{U}, v{U}, v{U+1}
    v_add_f32 v{U+2}, v{U+2}, v{U+3}
    v_add_f32 v{U+4}, v{U+4}, v{U+5}
    v_add_f32 v{U}, v{U}, v{U+2}
    v_add_f32 v{U+4}, v{U+4}, v{U+6}
    v_add_f32 v{U}, v{U}, v{U+4}
    v_cvt_pk_bf16_f32 v{U}, v{U}, v{U}
    s_cmp_ge_u32 s2, 128
    s_cbranch_scc1 {L('ffn')}
    v_lshlrev_b32 v6, 13, v6
    v_and_b32 v7, 31, v0
    v_lshl_add_u32 v6, v7, 1, v6
    s_add_u32 s6, s6, {QOFF}
    buffer_store_short v{U}, v6, s[48:51], s6 offen
    s_endpgm
    """)
    a.label(L('ffn'))
    a(f"""
    v_lshlrev_b32 v{U}, 16, v{U}
    v_mov_b32 v{U+1}, v{U}
    v_permlane16_swap_b32 v{U}, v{U+1}
    v_mul_f32 v9, {f32(-math.log2(math.e))}, v{U}
    v_exp_f32 v9, v9
    v_add_f32 v9, 1.0, v9
    v_rcp_f32 v9, v9
    v_mul_f32 v9, v9, v{U}
    v_cvt_pk_bf16_f32 v9, v9, v9
    v_lshlrev_b32 v9, 16, v9
    v_mul_f32 v9, v9, v{U+1}
    v_cvt_pk_bf16_f32 v9, v9, v9
    v_mul_u32_u24 v6, 7168, v6
    v_and_b32 v7, 15, v0
    v_lshl_add_u32 v6, v7, 2, v6
    s_lshl_b32 s7, s4, 6
    s_add_u32 s7, s7, {HSOFF}
    buffer_store_dword v9, v6, s[48:51], s7 offen
    """)
    a.label(L('end'))
    a("s_endpgm")
    return a.text(), kd(K,80,64,80), LDS

def gen_main(K=NAME+"_kernel", NB=2, NS=22, round_scores=True, spin_max=1<<17, stamps=False, dyn=True, skip_tail=False, kf=' nt', vf=' nt', dbgclk=False):
    a=Asm(); L=lambda s: f"L_{K[-12:]}_{s}"
    CEXP=math.log2(math.e)/16.0
    OP=0; ML=16384; LDS=81920+1024
    assert NS%NB==0
    KS=2*NB if dyn else 32-NS
    POOL=2048-(NS+KS)*64
    def stamp(i):
        if stamps: a(f"s_memrealtime s[{80+2*i}:{81+2*i}]\ns_waitcnt lgkmcnt(0)")
    KO=[1,2]; VO=[3,4]; vM=5; vL=6
    MASK=16; Q=20; O=28; DS=36; A=[52,56]; S=60
    Q2=64; SV=72; TK=82; D=88; XR=92; HC=96; RING=100
    WO=0; W2=32
    assert RING+NB*64<=256
    Kr=lambda nb,j: RING+nb*64+j*4
    Vr=lambda nb,j: RING+nb*64+32+j*4
    a.raw(f".globl {K}\n.p2align 8\n.type {K},@function\n{K}:")
    a(f"""
    s_cmp_ge_u32 s2, 256
    s_cbranch_scc1 {L('end')}
    s_load_dwordx16 s[16:31], s[0:1], 0
    s_load_dwordx8 s[32:39], s[0:1], 64
    v_lshrrev_b32 v1, 6, v0
    v_and_b32 v0, 63, v0
    v_readfirstlane_b32 s3, v1
    s_and_b32 s4, s2, 15
    s_lshr_b32 s5, s2, 4
    """)
    if stamps:
        for i in range(80,96): a(f"s_mov_b32 s{i}, 0")
        a("s_mov_b32 s96, s3")
    stamp(0)
    if dbgclk: a("s_memrealtime s[80:81]\ns_memtime s[82:83]\ns_waitcnt lgkmcnt(0)")
    a(f"""
    v_and_b32 v1, 3, v0
    v_lshlrev_b32 v1, 4, v1
    v_lshrrev_b32 v7, 4, v0
    v_lshl_add_u32 v1, v7, 6, v1
    v_bfe_u32 v9, v0, 3, 1
    v_lshl_add_u32 v9, v9, 9, v1
    v_bfe_u32 v8, v0, 2, 2
    v_lshl_add_u32 v1, v8, 9, v1
    v_add_u32 v2, 0x1000, v1
    v_and_b32 v10, 15, v0
    v_lshlrev_b32 v10, 4, v10
    v_lshl_add_u32 v3, v7, 9, v10
    v_add_u32 v4, 0x1000, v3
    s_lshl_b32 s6, s4, 24
    s_lshl_b32 s7, s5, 2
    s_add_u32 s7, s7, s3
    s_lshl_b32 s7, s7, 13
    s_add_u32 s6, s6, s7
    s_lshl_b32 s12, s4, 10
    s_add_u32 s12, s12, {QOFF}
    s_lshl_b32 s13, s5, 10
    s_add_u32 s13, s13, {QOFF}
    s_mov_b32 s42, 0x10000000
    s_mov_b32 s43, 0x20000
    s_mov_b32 s46, 0x10000000
    s_mov_b32 s47, 0x20000
    s_mov_b32 s50, {WSB}
    s_mov_b32 s51, 0x20000
    s_waitcnt lgkmcnt(0)
    s_mov_b32 s48, s38
    s_mov_b32 s49, s39
    s_mov_b32 s40, s18
    s_mov_b32 s41, s19
    s_mov_b32 s44, s20
    s_mov_b32 s45, s21
    buffer_load_dwordx4 v[{Q}:{Q+3}], v9, s[48:51], s12 offen
    buffer_load_dwordx4 v[{Q+4}:{Q+7}], v9, s[48:51], s12 offen offset:256
    """)
    def ldK(nb,j,so="s14"):
        kk,h=j>>1,j&1; r=Kr(nb,j)
        a(f"buffer_load_dwordx4 v[{r}:{r+3}], v{KO[kk>>1]}, s[40:43], {so} offen offset:{(kk&1)*2048+h*256}{kf}")
    def ldV(nb,j,so="s14"):
        kk,h=j>>1,j&1; r=Vr(nb,j)
        a(f"buffer_load_dwordx4 v[{r}:{r+3}], v{VO[kk>>1]}, s[44:47], {so} offen offset:{(kk&1)*2048+h*256}{vf}")
    a(f"""
    s_lshl_b32 s7, s5, 13
    s_add_u32 s7, s7, {CNTO}
    s_add_u32 s64, s38, s7
    s_addc_u32 s65, s39, 0
    s_mov_b32 s66, 0
    s_mov_b32 s67, 0x20000
    """)
    def ticket(nb):
        a(f"""
        v_mov_b32 v{TK+nb}, 1
        s_mov_b64 exec, 1
        buffer_atomic_add v{TK+nb}, off, s[64:67], 0 sc0
        s_mov_b64 exec, -1
        """)
    def preloads():
        a(f"""
        s_mov_b32 s52, s24
        s_mov_b32 s53, s25
        s_mov_b32 s54, {4096*896}
        s_mov_b32 s55, 0x20000
        s_mov_b32 s56, s32
        s_mov_b32 s57, s33
        s_mov_b32 s58, {1792*896}
        s_mov_b32 s59, 0x20000
        s_mov_b32 s60, s16
        s_mov_b32 s61, s17
        s_mov_b32 s62, 1792
        s_mov_b32 s63, 0x20000
        s_lshl_b32 s68, s4, 4
        s_add_u32 s68, s68, s5
        s_and_b32 s69, s68, 127
        s_lshr_b32 s70, s68, 7
        s_lshl_b32 s68, s68, 13
        v_mul_u32_u24 v11, {8*896}, v7
        v_add_u32 v11, v11, v10
        s_mul_i32 s71, s69, {32*896}
        s_lshl_b32 s72, s3, 8
        s_add_u32 s71, s71, s72
        s_add_u32 s73, s71, {4*896}
        buffer_load_dwordx4 v[{Q2}:{Q2+3}], v9, s[48:51], s13 offen
        buffer_load_dwordx4 v[{Q2+4}:{Q2+7}], v9, s[48:51], s13 offen offset:256
        """)
        for kk in range(8):
            r=WO+kk*4
            a(f"buffer_load_dwordx4 a[{r}:{r+3}], v11, s[52:55], s{71 if kk<4 else 73} offen offset:{(kk&3)*896} nt")
        a(f"""
        v_mul_u32_u24 v11, {4*896}, v7
        v_add_u32 v11, v11, v10
        s_mul_i32 s71, s69, {14*896}
        s_add_u32 s71, s71, s72
        """)
        for kk in range(4):
            r=W2+kk*4
            a(f"buffer_load_dwordx4 a[{r}:{r+3}], v11, s[56:59], s71 offen offset:{kk*896} nt")
        a(f"""
        v_lshlrev_b32 v11, 4, v7
        s_mul_i32 s71, s69, 56
        s_mul_i32 s72, s70, 7168
        s_add_u32 s71, s71, s72
        s_add_u32 s71, s71, {HSOFF}
        buffer_load_dwordx4 v[{HC}:{HC+3}], v11, s[48:51], s71 offen
        s_lshl_b32 s74, s69, 3
        s_mul_i32 s72, s70, 896
        s_add_u32 s74, s74, s72
        buffer_load_dwordx2 v[{XR}:{XR+1}], off, s[60:63], s74
        """)
    preloads()
    for nb in range(NB):
        ticket(nb)
        for j in range(8): ldK(nb,j,"s6")
        for j in range(8): ldV(nb,j,"s6")
        a("s_add_u32 s6, s6, 0x80000")
    a(f"""
    v_and_b32 v7, 1, v0
    v_cmp_eq_u32 vcc, 1, v7
    v_mov_b32 v8, 0xffff
    v_mov_b32 v9, 0xffff0000
    v_cndmask_b32 v8, v8, v9, vcc
    v_bfe_u32 v7, v0, 1, 2
    """)
    for r in range(4):
        a(f"v_cmp_eq_u32 vcc, {r}, v7\nv_cndmask_b32 v{MASK+r}, 0, v8, vcc")
    a(f"""
    v_lshrrev_b32 v7, 2, v0
    v_xor_b32 v7, v7, v0
    v_and_b32 v7, 8, v7
    v_cmp_ne_u32 s[8:9], 0, v7
    s_mov_b32 s10, {f32(CEXP)}
    s_mov_b32 s11, 0
    v_mov_b32 v{vM}, 0xff7fffff
    v_mov_b32 v{vL}, 0
    s_lshl_b32 s75, s5, 24
    s_lshl_b32 s15, s4, 2
    s_add_u32 s15, s15, s3
    s_add_u32 s15, s15, {NS*64}
    s_lshl_b32 s15, s15, 13
    s_add_u32 s15, s15, s75
    s_add_u32 s75, s75, {(NS+KS)*64*8192}
    s_mov_b32 s76, -1
    """)
    for i in range(8): a(f"v_mov_b32 v{O+i}, 0")
    W0=17*NB-2; W=17*NB-1
    a.flush()
    a.label(L('loop'))
    a(f"s_cmp_eq_u32 s11, {NS}\ns_cbranch_scc1 {L('switch')}")
    a.label(L('loop2'))
    for nb in range(NB):
        a.comment(f"---- sub-iteration {nb}")
        a(f"""
        s_waitcnt vmcnt({W0})
        v_readfirstlane_b32 s77, v{TK+nb}
        s_add_u32 s79, s11, {NB}
        s_lshl_b32 s78, s77, 13
        s_add_u32 s78, s78, s75
        s_cmp_ge_u32 s11, {NS+KS-NB}
        s_cselect_b32 s14, s78, s6
        s_cselect_b32 s77, s77, 0
        s_cselect_b32 s78, {POOL}, 1
        s_cmp_ge_u32 s77, s78
        s_cselect_b32 s42, 0, s42
        s_cselect_b32 s46, 0, s46
        s_cselect_b32 s66, 0, s66
        s_cselect_b32 s79, s79, -1
        s_min_u32 s76, s76, s79
        """)
        ticket(nb)
        for j in range(8):
            kk,h=j>>1,j&1; r=Kr(nb,j); d=DS+kk*4
            if j: a(f"s_waitcnt vmcnt({W})")
            c="0" if h==0 else f"v[{d}:{d+3}]"
            a(f"v_mfma_f32_16x16x32_bf16 v[{d}:{d+3}], v[{r}:{r+3}], v[{Q+h*4}:{Q+h*4+3}], {c}")
            ldK(nb,j)
        for kk in range(4):
            d=DS+kk*4; s=S+kk
            a(f"v_mov_b32_dpp v{s}, v{d} quad_perm:[0,0,0,0] {DPPT}")
            for r in range(1,4):
                a(f"v_add_f32_dpp v{s}, v{d+r}, v{s} quad_perm:[{r},{r},{r},{r}] {DPPT}")
        if round_scores:
            a(f"""
            v_cvt_pk_bf16_f32 v7, v{S}, v{S+1}
            v_cvt_pk_bf16_f32 v8, v{S+2}, v{S+3}
            v_lshlrev_b32 v{S}, 16, v7
            v_and_b32 v{S+1}, 0xffff0000, v7
            v_lshlrev_b32 v{S+2}, 16, v8
            v_and_b32 v{S+3}, 0xffff0000, v8
            """)
        a(f"""
        v_max3_f32 v7, v{S}, v{S+1}, v{S+2}
        v_max3_f32 v7, v7, v{S+3}, v{vM}
        v_mov_b32 v8, v7
        v_permlane16_swap_b32 v8, v7
        v_max_f32 v7, v7, v8
        v_mov_b32 v8, v7
        v_permlane32_swap_b32 v8, v7
        v_max_f32 v7, v7, v8
        v_sub_f32 v8, v{vM}, v7
        v_mul_f32 v8, s10, v8
        v_exp_f32 v8, v8
        v_mov_b32 v{vM}, v7
        v_mul_f32 v9, s10, v7
        v_mov_b32_dpp v10, v8 row_ror:8 {DPPT}
        v_mul_f32 v{vL}, v{vL}, v8
        v_cndmask_b32 v10, v8, v10, s[8:9]
        """)
        for i in range(8): a(f"v_mul_f32 v{O+i}, v{O+i}, v10")
        for kk in range(4): a(f"v_fma_f32 v{S+kk}, v{S+kk}, s10, -v9")
        for kk in range(4): a(f"v_exp_f32 v{S+kk}, v{S+kk}")
        for kk in range(4):
            Ar=A[kk&1]
            a(f"v_cvt_pk_bf16_f32 v11, v{S+kk}, v{S+kk}")
            a(f"v_add_f32 v{vL}, v{vL}, v{S+kk}")
            for r in range(4): a(f"v_and_b32 v{Ar+r}, v11, v{MASK+r}")
            for h in range(2):
                j=kk*2+h; r=Vr(nb,j); o=O+h*4
                a(f"s_waitcnt vmcnt({W})")
                a(f"v_mfma_f32_16x16x32_bf16 v[{o}:{o+3}], v[{Ar}:{Ar+3}], v[{r}:{r+3}], v[{o}:{o+3}]")
                ldV(nb,j)
        a(f"""
        s_add_u32 s6, s6, 0x80000
        s_add_u32 s11, s11, 1
        s_cmp_eq_u32 s11, {NS-NB}
        s_cselect_b32 s6, s15, s6
        s_cmp_eq_u32 s11, s76
        """)
        if nb<NB-1: a(f"s_cbranch_scc1 {L('sdone')}")
        else: a(f"s_cbranch_scc0 {L('loop')}")
    a(f"s_branch {L('sdone')}")
    a.label(L('switch'))
    stamp(1)
    for i in range(8): a(f"v_mov_b32 v{SV+i}, v{O+i}")
    a(f"v_mov_b32 v{SV+8}, v{vM}\nv_mov_b32 v{SV+9}, v{vL}")
    for i in range(8): a(f"v_mov_b32 v{O+i}, 0\nv_mov_b32 v{Q+i}, v{Q2+i}")
    a(f"""
    v_mov_b32 v{vM}, 0xff7fffff
    v_mov_b32 v{vL}, 0
    s_mov_b32 s66, {4 if dyn else 0}
    v_cmp_gt_u32 vcc, 48, v0
    v_cndmask_b32 v{HC+2}, 0, v{HC+2}, vcc
    v_cndmask_b32 v{HC+3}, 0, v{HC+3}, vcc
    """)
    for kk in range(4):
        Ar=A[kk&1]; r=W2+kk*4
        for q in range(4): a(f"v_and_b32 v{Ar+q}, v{HC+kk}, v{MASK+q}")
        c="0" if kk==0 else f"v[{D}:{D+3}]"
        a(f"v_mfma_f32_16x16x32_bf16 v[{D}:{D+3}], v[{Ar}:{Ar+3}], a[{r}:{r+3}], {c}")
    a(f"s_branch {L('loop2')}")
    a.label(L('sdone'))
    stamp(2)
    for lr in (vL,SV+9):
        a(f"""
        v_mov_b32 v8, v{lr}
        v_permlane16_swap_b32 v8, v{lr}
        v_add_f32 v{lr}, v{lr}, v8
        v_mov_b32 v8, v{lr}
        v_permlane32_swap_b32 v8, v{lr}
        v_add_f32 v{lr}, v{lr}, v8
        """)
    a(f"""
    v_lshrrev_b32 v7, 5, v0
    v_lshlrev_b32 v7, 10, v7
    v_and_b32 v8, 15, v0
    v_lshl_add_u32 v7, v8, 5, v7
    v_bfe_u32 v8, v0, 4, 1
    v_lshl_add_u32 v7, v8, 4, v7
    s_lshl_b32 s7, s3, 11
    v_add_u32 v7, s7, v7
    ds_write_b128 v7, v[{SV}:{SV+3}] offset:{OP}
    ds_write_b128 v7, v[{SV+4}:{SV+7}] offset:{OP+512}
    ds_write_b128 v7, v[{O}:{O+3}] offset:{OP+8192}
    ds_write_b128 v7, v[{O+4}:{O+7}] offset:{OP+8192+512}
    v_bfe_u32 v8, v0, 3, 1
    v_lshlrev_b32 v8, 5, v8
    s_lshl_b32 s7, s3, 2
    v_add_u32 v8, s7, v8
    ds_write_b32 v8, v{SV+8} offset:{ML}
    ds_write_b32 v8, v{SV+9} offset:{ML+16}
    ds_write_b32 v8, v{vM} offset:{ML+64}
    ds_write_b32 v8, v{vL} offset:{ML+64+16}
    """)
    a(f"""
    s_lshr_b32 s12, s3, 1
    s_and_b32 s13, s3, 1
    s_lshl_b32 s7, s12, 13
    s_lshl_b32 s14, s13, 10
    s_add_u32 s7, s7, s14
    v_lshlrev_b32 v7, 4, v0
    v_add_u32 v7, s7, v7
    s_lshl_b32 s7, s3, 5
    v_mov_b32 v8, s7
    s_add_u32 s15, s4, 16
    s_cmp_eq_u32 s12, 0
    s_cselect_b32 s14, s4, s5
    s_cselect_b32 s15, s5, s15
    s_lshl_b32 s14, s14, 4
    s_lshl_b32 s13, s13, 3
    s_add_u32 s14, s14, s13
    s_lshl_b32 s14, s14, 13
    s_lshl_b32 s12, s15, 7
    s_add_u32 s12, s12, s14
    s_lshl_b32 s13, s15, 3
    s_add_u32 s13, s13, s14
    s_add_u32 s13, s13, {H1ML}
    v_lshrrev_b32 v9, 3, v0
    v_lshlrev_b32 v9, 13, v9
    v_and_b32 v10, 7, v0
    v_lshl_add_u32 v11, v10, 4, v9
    v_cmp_eq_u32 vcc, 0, v10
    s_waitcnt lgkmcnt(0)
    s_barrier
    """)
    stamp(3)
    if dbgclk:
        a(f"""
        s_memrealtime s[84:85]
        s_memtime s[86:87]
        s_waitcnt lgkmcnt(0)
        s_sub_u32 s84, s84, s80
        s_sub_u32 s86, s86, s82
        s_mov_b32 s88, s36
        s_mov_b32 s89, s37
        s_mov_b32 s90, 64
        s_mov_b32 s91, 0x20000
        v_mov_b32 v12, s84
        v_mov_b32 v13, s86
        s_lshl_b32 s84, s2, 3
        s_cmp_eq_u32 s3, 0
        s_cselect_b32 s84, s84, 0x1000
        buffer_store_dwordx2 v[12:13], off, s[88:91], s84
        """)
    if skip_tail: a(f"s_branch {L('end')}")
    a(f"""
    ds_read_b128 v[{Q}:{Q+3}], v8 offset:{ML}
    ds_read_b128 v[{Q+4}:{Q+7}], v8 offset:{ML+16}
    """)
    for w in range(4): a(f"ds_read_b128 v[{DS+4*w}:{DS+4*w+3}], v7 offset:{OP+w*2048}")
    a(f"""
    s_waitcnt lgkmcnt(4)
    v_max3_f32 v12, v{Q}, v{Q+1}, v{Q+2}
    v_max_f32 v12, v12, v{Q+3}
    """)
    for w in range(4): a(f"v_sub_f32 v{Q+w}, v{Q+w}, v12")
    for w in range(4): a(f"v_mul_f32 v{Q+w}, s10, v{Q+w}")
    for w in range(4): a(f"v_exp_f32 v{Q+w}, v{Q+w}")
    a(f"v_mul_f32 v13, v{Q}, v{Q+4}")
    for w in range(1,4): a(f"v_fmac_f32 v13, v{Q+w}, v{Q+4+w}")
    a("s_waitcnt lgkmcnt(0)")
    for e in range(4):
        a(f"v_mul_f32 v{O+e}, v{Q}, v{DS+e}")
        for w in range(1,4): a(f"v_fmac_f32 v{O+e}, v{Q+w}, v{DS+4*w+e}")
    for e in range(4): a(f"v_min_u32 v{O+e}, -2, v{O+e}")
    a(f"""
    v_min_u32 v12, -2, v12
    v_min_u32 v13, -2, v13
    buffer_store_dwordx4 v[{O}:{O+3}], v11, s[48:51], s12 offen sc1
    s_mov_b64 exec, vcc
    buffer_store_dwordx2 v[12:13], v9, s[48:51], s13 offen sc1
    s_mov_b64 exec, -1
    """)
    a(f"""
    v_lshrrev_b32 v4, 4, v0
    v_and_b32 v6, 15, v0
    v_lshlrev_b32 v7, 7, v6
    v_lshl_add_u32 v7, v4, 5, v7
    v_lshlrev_b32 v8, 3, v6
    v_add_u32 v8, {H1ML}, v8
    v_bfe_u32 v9, v0, 4, 1
    v_lshl_add_u32 v9, v6, 1, v9
    s_lshl_b32 s7, s3, 5
    v_add_u32 v9, s7, v9
    v_cmp_gt_u32 vcc, 112, v9
    v_cmp_gt_u32 s[72:73], 32, v0
    s_and_b64 s[72:73], s[72:73], vcc
    s_lshl_b32 s7, s70, 7
    v_add_u32 v9, s7, v9
    v_lshlrev_b32 v9, 13, v9
    s_lshl_b32 s75, s69, 4
    s_add_u32 s75, s75, {H2}
    v_lshlrev_b32 v14, 4, v0
    v_add_u32 v14, {H2}, v14
    s_mov_b32 s71, 0
    """)
    PO=DS; PM=Q
    a.flush()
    a.label(L('p1'))
    a(f"""
    buffer_load_dwordx4 v[{PO}:{PO+3}], v7, s[48:51], s68 offen sc1
    buffer_load_dwordx4 v[{PO+4}:{PO+7}], v7, s[48:51], s68 offen offset:16 sc1
    buffer_load_dwordx4 v[{PO+8}:{PO+11}], v7, s[48:51], s68 offen offset:2048 sc1
    buffer_load_dwordx4 v[{PO+12}:{PO+15}], v7, s[48:51], s68 offen offset:2064 sc1
    buffer_load_dwordx2 v[{PM}:{PM+1}], v8, s[48:51], s68 offen sc1
    buffer_load_dwordx2 v[{PM+2}:{PM+3}], v8, s[48:51], s68 offen offset:128 sc1
    s_waitcnt vmcnt(0)
    v_max3_u32 v12, v{PO}, v{PO+1}, v{PO+2}
    v_max3_u32 v13, v{PO+3}, v{PO+4}, v{PO+5}
    v_max3_u32 v12, v12, v{PO+6}, v{PO+7}
    v_max3_u32 v13, v13, v{PO+8}, v{PO+9}
    v_max3_u32 v12, v12, v{PO+10}, v{PO+11}
    v_max3_u32 v13, v13, v{PO+12}, v{PO+13}
    v_max3_u32 v12, v12, v{PO+14}, v{PO+15}
    v_max3_u32 v13, v13, v{PM}, v{PM+1}
    v_max3_u32 v12, v12, v{PM+2}, v{PM+3}
    v_max_u32 v12, v12, v13
    v_cmp_eq_u32 vcc, -1, v12
    s_add_u32 s71, s71, 1
    s_cmp_ge_u32 s71, {spin_max}
    s_cbranch_scc1 {L('p1d')}
    s_cbranch_vccnz {L('p1')}
    """)
    a.label(L('p1d'))
    stamp(5)
    a(f"v_max_f32 v12, v{PM}, v{PM+2}")
    for m in R16: a(f"v_max_f32_dpp v12, v12, v12 {m} {DPPT}")
    a(f"""
    v_sub_f32 v10, v{PM}, v12
    v_sub_f32 v11, v{PM+2}, v12
    v_mul_f32 v10, s10, v10
    v_mul_f32 v11, s10, v11
    v_exp_f32 v10, v10
    v_exp_f32 v11, v11
    v_mul_f32 v13, v10, v{PM+1}
    v_fmac_f32 v13, v11, v{PM+3}
    """)
    for q in range(8): a(f"v_mul_f32 v{PO+q}, v{PO+q}, v10")
    for q in range(8): a(f"v_fmac_f32 v{PO+q}, v{PO+8+q}, v11")
    for m in R16:
        a(f"v_add_f32_dpp v13, v13, v13 {m} {DPPT}")
        for q in range(8): a(f"v_add_f32_dpp v{PO+q}, v{PO+q}, v{PO+q} {m} {DPPT}")
    a("v_rcp_f32 v13, v13")
    for q in range(8): a(f"v_mul_f32 v{PO+q}, v{PO+q}, v13")
    for q in range(8): a(f"v_cvt_pk_bf16_f32 v{PO+q}, v{PO+q}, v{PO+q}")
    for kk in range(8):
        Ar=A[kk&1]; r=WO+kk*4
        for q in range(4): a(f"v_and_b32 v{Ar+q}, v{PO+kk}, v{MASK+q}")
        a(f"v_mfma_f32_16x16x32_bf16 v[{D}:{D+3}], v[{Ar}:{Ar+3}], a[{r}:{r+3}], v[{D}:{D+3}]")
    for q in range(4): a(f"v_min_u32 v{D+q}, -2, v{D+q}")
    a(f"""
    s_mov_b64 exec, s[72:73]
    buffer_store_dwordx4 v[{D}:{D+3}], v9, s[48:51], s75 offen sc1
    s_mov_b64 exec, -1
    s_cmp_lg_u32 s3, 3
    s_cbranch_scc1 {L('end')}
    s_cmp_ge_u32 s69, 112
    s_cbranch_scc1 {L('end')}
    s_mov_b32 s60, s34
    s_mov_b32 s61, s35
    s_mov_b32 s71, 0
    v_lshlrev_b32 v{O}, 16, v{XR}
    v_and_b32 v{O+1}, 0xffff0000, v{XR}
    v_lshlrev_b32 v{O+2}, 16, v{XR+1}
    v_and_b32 v{O+3}, 0xffff0000, v{XR+1}
    """)
    P2=DS
    a.flush()
    a.label(L('p2'))
    a(f"""
    buffer_load_dwordx4 v[{P2}:{P2+3}], v14, s[48:51], s68 offen sc1
    buffer_load_dwordx4 v[{P2+4}:{P2+7}], v14, s[48:51], s68 offen offset:1024 sc1
    s_waitcnt vmcnt(0)
    v_max3_u32 v12, v{P2}, v{P2+1}, v{P2+2}
    v_max3_u32 v13, v{P2+3}, v{P2+4}, v{P2+5}
    v_max3_u32 v12, v12, v{P2+6}, v{P2+7}
    v_max_u32 v12, v12, v13
    v_cmp_eq_u32 vcc, -1, v12
    s_add_u32 s71, s71, 1
    s_cmp_ge_u32 s71, {spin_max}
    s_cbranch_scc1 {L('p2d')}
    s_cbranch_vccnz {L('p2')}
    """)
    a.label(L('p2d'))
    stamp(6)
    for q in range(4): a(f"v_add_f32 v{P2+q}, v{P2+q}, v{P2+4+q}")
    a(f"""
    v_permlane16_swap_b32 v{P2}, v{P2+1}
    v_permlane16_swap_b32 v{P2+2}, v{P2+3}
    v_add_f32 v{P2}, v{P2}, v{P2+1}
    v_add_f32 v{P2+2}, v{P2+2}, v{P2+3}
    v_permlane32_swap_b32 v{P2}, v{P2+2}
    v_add_f32 v{P2}, v{P2}, v{P2+2}
    """)
    for m in R16: a(f"v_add_f32_dpp v{P2}, v{P2}, v{P2} {m} {DPPT}")
    a(f"""
    v_cmp_eq_u32 vcc, 1, v4
    v_cndmask_b32 v{O}, v{O}, v{O+1}, vcc
    v_cmp_eq_u32 vcc, 2, v4
    v_cndmask_b32 v{O}, v{O}, v{O+2}, vcc
    v_cmp_eq_u32 vcc, 3, v4
    v_cndmask_b32 v{O}, v{O}, v{O+3}, vcc
    v_add_f32 v{P2}, v{P2}, v{O}
    v_cvt_pk_bf16_f32 v{P2}, v{P2}, v{P2}
    v_lshlrev_b32 v4, 1, v4
    v_cmp_eq_u32 vcc, 0, v6
    s_mov_b64 exec, vcc
    buffer_store_short v{P2}, v4, s[60:63], s74 offen
    """)
    a.label(L('end'))
    if stamps:
        a(f"s_cmp_ge_u32 s2, 256\ns_cbranch_scc1 {L('end2')}")
        a("s_waitcnt vmcnt(0)")
        stamp(7)
        a(f"""
        s_mov_b64 exec, 1
        s_mov_b32 s50, 0x1000000
        s_mov_b32 s88, s11
        s_mov_b32 s89, 0
        s_lshl_b32 s11, s2, 2
        s_add_u32 s11, s11, s96
        s_lshl_b32 s11, s11, 6
        s_add_u32 s11, s11, 0x400000
        """)
        for i in range(4):
            for q in range(4): a(f"v_mov_b32 v{4+q}, s{80+4*i+q}")
            a(f"buffer_store_dwordx4 v[4:7], off, s[48:51], s11 offset:{16*i}")
        a.label(L('end2'))
    a("s_endpgm")
    return a.text(), kd(K,256+48,100 if (stamps or dbgclk) else 80,256), LDS

HDR=open("cdna_kernels/"+NAME+".s.ref").read().split("; Override launch")[0]
def write_main(path, prep_kw={}, **kw):
    t0,kd0,lds0=gen_prep(**prep_kw)
    t,kd1,lds=gen_main(**kw)
    s=HDR
    s+=f"; @launch kernel=prep_kernel grid=(256,1,1) block=(448,1,1) lds={lds0}\n"
    s+=f"; @launch kernel={NAME}_kernel grid=(256,1,1) block=(256,1,1) lds={lds}\n"
    s+='.amdgcn_target "amdgcn-amd-amdhsa--gfx950"\n.text\n'+t0+t+'.section .rodata,"a"\n'+kd0+kd1
    open(path,"w").write(s)
if __name__=="__main__":
    write_main("cdna_kernels/"+NAME+".s")
```

```python
import struct, sys, math
from asmlib import Asm
from gen2 import f32, kd, layernorm, R16, DPPT, NAME, HDR
INB=8192; H1ML=4096; H2=4608; CNTO=7168
QOFF=256*INB
GU=QOFF+262144
RDY=GU+16*7168+1024
EPO=RDY+4096
SCO=3<<20
WSB=SCO+(2<<20)
STO=8<<20

def gen_main(K=NAME+"_kernel", NB=3, NX=5, NSV=24, spin_max=1<<17, stamps=False, dyn=True, skip_tail=False,
             kf=' nt', poll1='one', sched=(8,8,8,0), pollpos=48, sbar=True, exp=0, KS0=True, NPo=3, warm=0, st2=False, touch=False, PD=1, pmask=True, ps1=0, ps2=0, noclr=False, ldsz=81920+1024):
    a=Asm(); L=lambda s: f"L_{K[-12:]}_{s}"
    CEXP=math.log2(math.e)/16.0
    OP=0; ML=16384; XN=16640; RED=XN+3584; CF=RED+4096; QL=CF+256; SCL=QL+1024; LDS=ldsz
    NK=32-NX
    NP=max(NB//2,1) if NPo is None else NPo
    assert NK%NB==0 and NSV%NB==0
    KS=(0 if KS0 else 2*NB) if dyn else 32-NSV
    POOL=((32-NSV-KS)*64)//4
    NSH=32-NSV
    S2=NB; SPB=max(((NSH-NX+NB-1)//NB)*NB,2*NB); SKV=NK-NB
    S3,S4,S5=(NSV-3*NB, NSV-2*NB, NSV) if KS==0 else (NSV-2*NB, NSV-NB, NSV)
    SRD=SPB+2*NB
    assert S2<SPB and SRD<=SKV and S3>=0
    WN=8*NB-1
    def stamp(i):
        if stamps: a(f"s_memrealtime s[{80+2*i}:{81+2*i}]\ns_waitcnt lgkmcnt(0)")
    PO=[1,2]; VO=[3,4]; vM=5; vL=6
    MASK=16; Q=20; TK=20; O=28; DS=36; HC=36; A=[52,56]; S=60
    SCR=64; SV=80; XR=90; D=92; RD=96; GR=96; RING=128
    XB=0; WO=128; W2=160
    assert RING+NB*32+max(NX-4,0)*32<=256
    def Rr(sl,j):
        if sl<-4: sl=NB+(-sl-5)
        return (f"v[{RING+sl*32+j*4}:{RING+sl*32+j*4+3}]" if sl>=0 else f"a[{XB+(-sl-1)*32+j*4}:{XB+(-sl-1)*32+j*4+3}]")
    a.raw(f".globl {K}\n.p2align 8\n.type {K},@function\n{K}:")
    a(f"""
    s_cmp_ge_u32 s2, 256
    s_cbranch_scc1 {L('end2')}
    s_load_dwordx16 s[16:31], s[0:1], 0
    s_load_dwordx8 s[32:39], s[0:1], 64
    v_lshrrev_b32 v1, 6, v0
    v_lshrrev_b32 v12, 3, v0
    v_and_b32 v0, 63, v0
    v_readfirstlane_b32 s3, v1
    s_and_b32 s4, s2, 15
    s_lshr_b32 s5, s2, 4
    """)
    if stamps:
        for i in range(80,96): a(f"s_mov_b32 s{i}, 0")
        a("s_mov_b32 s96, s3")
    stamp(0)
    if st2: stamp(2)
    XD=20; W=28; WF=44; XF=60; XV=76; ACC=92; U=108
    a(f"""
    v_and_b32 v11, 31, v0
    v_lshlrev_b32 v11, 2, v11
    v_lshrrev_b32 v8, 5, v0
    v_mul_u32_u24 v8, 896, v8
    v_add_u32 v11, v11, v8
    v_and_b32 v13, 7, v0
    v_lshlrev_b32 v5, 13, v12
    v_lshl_add_u32 v5, v13, 4, v5
    s_mov_b32 s62, 1792
    s_mov_b32 s63, 0x20000
    s_mov_b32 s54, {448*8192}
    s_mov_b32 s55, 0x20000
    s_lshr_b32 s12, s2, 6
    s_and_b32 s13, s2, 63
    s_mul_i32 s14, s12, {112*8192}
    s_lshl_b32 s15, s13, 7
    s_add_u32 s14, s14, s15
    v_and_b32 v1, 3, v0
    v_lshlrev_b32 v1, 4, v1
    v_lshrrev_b32 v7, 4, v0
    v_lshl_add_u32 v1, v7, 6, v1
    v_bfe_u32 v15, v0, 3, 1
    v_lshl_add_u32 v15, v15, 9, v1
    v_bfe_u32 v8, v0, 2, 2
    v_lshl_add_u32 v1, v8, 9, v1
    v_add_u32 v2, 0x1000, v1
    s_lshl_b32 s6, s4, 24
    s_lshl_b32 s7, s5, 2
    s_add_u32 s7, s7, s3
    s_lshl_b32 s7, s7, 13
    s_add_u32 s6, s6, s7
    s_mov_b32 s99, s6
    s_mov_b32 s42, 0x10000000
    s_mov_b32 s43, 0x20000
    s_waitcnt lgkmcnt(0)
    s_mov_b32 s60, s16
    s_mov_b32 s61, s17
    s_mov_b32 s52, s22
    s_mov_b32 s53, s23
    """)
    VQ=[]
    def wait_for(tag):
        last=max(i for i,t in enumerate(VQ) if t==tag)
        a(f"s_waitcnt vmcnt({min(len(VQ)-1-last,62)})")
    done=[0]
    def room():
        if len(VQ)-done[0]>=56:
            a("s_waitcnt vmcnt(40)"); done[0]=len(VQ)-40
    for i in range(7):
        a(f"buffer_load_dword v{XD+i}, v11, s[60:63], 0 offen offset:{i*128}"); VQ.append('x')
    def unit_loads(R,vo,srd,so,stride,tag):
        for i in range(4):
            if i==3: a(f"s_cmp_ge_u32 s3, 2\ns_cselect_b32 {so}, 0x7fff0000, {so}")
            room()
            a(f"buffer_load_dwordx4 v[{R+4*i}:{R+4*i+3}], v{vo}, {srd}, {so} offen nt"); VQ.append(f"{tag}{i}")
            if i<3: a(f"s_add_u32 {so}, {so}, {32*stride}")
    unit_loads(W,5,"s[52:55]","s14",8192,'wq')
    if warm:
        a(f"""
        s_getpc_b64 s[44:45]
        """)
        a.label(L('pc'))
        a(f"""
        s_mov_b32 s46, {L('end2')}-{L('pc')}
        s_mov_b32 s47, 0x20000
        v_lshlrev_b32 v6, 4, v0
        s_lshl_b32 s15, s3, 12
        """)
        for i in range(4):
            a(f"buffer_load_dwordx4 a[{176+4*i}:{179+4*i}], v6, s[44:47], s15 offen offset:{1024*i}"); VQ.append('w')
    a("s_mov_b32 s40, s18\ns_mov_b32 s41, s19")
    if sbar: a("s_barrier")
    def ld(sl,j,so="s14"):
        kk,h=j>>1,j&1
        a(f"buffer_load_dwordx4 {Rr(sl,j)}, v{PO[kk>>1]}, s[40:43], {so} offen offset:{(kk&1)*2048+h*256}{kf}")
    order=list(range(NP))+[-(x+1) for x in range(NX)]+list(range(NP,NB))
    FL=[(sl,j) for sl in order for j in range(8)]
    fpos=[0]
    def emit_fill(n):
        for _ in range(n):
            if fpos[0]>=len(FL): return
            sl,j=FL[fpos[0]]; fpos[0]+=1
            room()
            ld(sl,j,"s6"); VQ.append(f"f{sl}")
            if j==7: a("s_add_u32 s6, s6, 0x80000")
    emit_fill(sched[0])
    a(f"""
    s_add_u32 s76, s38, {EPO}
    s_addc_u32 s77, s39, 0
    s_load_dword s97, s[76:77], 0
    v_and_b32 v10, 15, v0
    v_lshlrev_b32 v10, 4, v10
    v_lshl_add_u32 v3, v7, 9, v10
    v_add_u32 v4, 0x1000, v3
    v_mul_u32_u24 v9, 3584, v12
    v_lshl_add_u32 v9, v13, 4, v9
    s_mov_b32 s58, {448*3584}
    s_mov_b32 s59, 0x20000
    s_and_b32 s71, s2, 3
    s_lshr_b32 s72, s2, 3
    s_mul_i32 s15, s71, {112*3584}
    s_lshl_b32 s73, s72, 7
    s_add_u32 s15, s15, s73
    s_cmp_ge_u32 s2, 224
    s_cselect_b32 s58, 0, s58
    s_bitcmp1_b32 s2, 2
    s_cselect_b32 s56, s30, s28
    s_cselect_b32 s57, s31, s29
    s_mov_b32 s48, s38
    s_mov_b32 s49, s39
    s_mov_b32 s50, {WSB}
    s_mov_b32 s51, 0x20000
    s_add_u32 s7, s7, {CNTO}
    s_add_u32 s64, s38, s7
    s_addc_u32 s65, s39, 0
    s_mov_b32 s66, 0
    s_mov_b32 s67, 0x20000
    s_lshl_b32 s68, s4, 4
    s_add_u32 s68, s68, s5
    s_and_b32 s69, s68, 127
    s_lshr_b32 s70, s68, 7
    s_lshl_b32 s68, s68, 13
    """)
    wait_for('x')
    if st2: stamp(3)
    emit_fill(sched[1])
    layernorm(a,XD,XF,5,6,8,11)
    for i in range(7): a(f"v_cvt_pk_bf16_f32 v{XD+i}, v{XF+2*i}, v{XF+2*i+1}")
    for i in range(7):
        a(f"v_lshlrev_b32 v{XF+2*i}, 16, v{XD+i}")
        a(f"v_and_b32 v{XF+2*i+1}, 0xffff0000, v{XD+i}")
    a("v_lshlrev_b32 v11, 1, v11")
    for i in range(7): a(f"ds_write_b64 v11, v[{XF+2*i}:{XF+2*i+1}] offset:{XN+i*256}")
    a(f"""
    v_lshlrev_b32 v12, 2, v12
    s_mul_i32 s7, s12, 448
    v_add_u32 v5, s7, v12
    s_mul_i32 s7, s71, 448
    v_add_u32 v6, s7, v12
    s_lshl_b32 s7, s3, 9
    v_bfe_u32 v8, v0, 4, 1
    v_lshlrev_b32 v14, 8, v8
    v_lshl_add_u32 v14, v13, 5, v14
    v_lshrrev_b32 v8, 5, v0
    v_lshl_add_u32 v14, v8, 4, v14
    v_add_u32 v14, s7, v14
    s_waitcnt lgkmcnt(0)
    """)
    for u,va in ((0,5),(1,6)):
        for b in range(2):
            for i in range(4): a(f"ds_read_b32 v{XV+u*8+b*4+i}, v{va} offset:{XN+b*1792+i*128}")
    emit_fill(sched[2])
    a("s_add_u32 s97, s97, 1\ns_waitcnt lgkmcnt(0)")
    def unit(R,xv,tag,red,mid=0):
        for i in range(4):
            if i==3: a(f"s_cmp_ge_u32 s3, 2\ns_cbranch_scc1 {L('u3'+tag)}")
            wait_for(f"{tag}{i}")
            for d in range(4):
                a(f"v_lshlrev_b32 v{U+2*d}, 16, v{R+4*i+d}")
                a(f"v_and_b32 v{U+2*d+1}, 0xffff0000, v{R+4*i+d}")
            for b in range(2):
                for e in range(8):
                    op="v_mul_f32" if i==0 else "v_fmac_f32"
                    a(f"{op} v{ACC+b*8+e}, v{xv+b*4+i}, v{U+e}")
        a.label(L('u3'+tag))
        for e in range(8): a(f"v_permlane16_swap_b32 v{ACC+e}, v{ACC+8+e}")
        for e in range(8): a(f"v_add_f32 v{ACC+e}, v{ACC+e}, v{ACC+8+e}")
        for e in range(4): a(f"v_permlane32_swap_b32 v{ACC+e}, v{ACC+4+e}")
        for e in range(4): a(f"v_add_f32 v{ACC+e}, v{ACC+e}, v{ACC+4+e}")
        for e in range(4): a(f"v_add_f32_dpp v{ACC+e}, v{ACC+e}, v{ACC+e} row_ror:8 {DPPT}")
        a(f"ds_write_b128 v14, v[{ACC}:{ACC+3}] offset:{red}")
        emit_fill(mid)
    def gather4(red):
        a("v_lshlrev_b32 v5, 3, v0")
        for w in range(4): a(f"ds_read_b64 v[{U+2*w}:{U+2*w+1}], v5 offset:{red+w*512}")
        a(f"""
        s_waitcnt lgkmcnt(0)
        v_add_f32 v{U}, v{U}, v{U+2}
        v_add_f32 v{U+1}, v{U+1}, v{U+3}
        v_add_f32 v{U+4}, v{U+4}, v{U+6}
        v_add_f32 v{U+5}, v{U+5}, v{U+7}
        """)
    if st2: stamp(4)
    unit(W,XV,'wq',RED,sched[3])
    if st2: stamp(5)
    a(f"""
    v_mov_b32 v{U+9}, s97
    v_mov_b32 v{U+11}, s97
    v_lshrrev_b32 v6, 5, v0
    v_lshlrev_b32 v6, 15, v6
    v_and_b32 v5, 31, v0
    v_lshl_add_u32 v6, v5, 4, v6
    s_lshl_b32 s7, s12, 16
    s_lshl_b32 s13, s13, 9
    s_add_u32 s7, s7, s13
    s_add_u32 s7, s7, {QOFF}
    s_waitcnt lgkmcnt(0)
    s_barrier
    s_cmp_lg_u32 s3, 0
    s_cbranch_scc1 {L('pubwait')}
    """)
    gather4(RED)
    a(f"""
    v_add_f32 v{U+8}, v{U}, v{U+4}
    v_add_f32 v{U+10}, v{U+1}, v{U+5}
    buffer_store_dwordx4 v[{U+8}:{U+11}], v6, s[48:51], s7 offen sc1
    """)
    a.label(L('pubwait'))
    if sbar: a("s_barrier")
    if st2: stamp(6)
    unit_loads(WF,9,"s[56:59]","s15",3584,'wf')
    a(f"""
    s_lshl_b32 s12, s4, 12
    s_lshl_b32 s13, s3, 10
    s_add_u32 s12, s12, s13
    s_add_u32 s12, s12, {QOFF}
    s_add_u32 s13, s12, 0x10000
    s_add_u32 s14, s12, 0x20000
    s_add_u32 s15, s12, 0x30000
    v_lshlrev_b32 v9, 4, v0
    """)
    def qload(track=True):
        for p in range(4):
            if track: room()
            a(f"buffer_load_dwordx4 v[{W+4*p}:{W+4*p+3}], v9, s[48:51], s{12+p} offen sc1")
            if track: VQ.append('qa')
    emit_fill(pollpos-fpos[0])
    qload()
    emit_fill(999)
    unit(WF,XV+8,'wf',RED+2048)
    a(f"""
    v_and_b32 v7, 1, v0
    v_cmp_eq_u32 vcc, 1, v7
    v_mov_b32 v8, 0xffff
    v_mov_b32 v11, 0xffff0000
    v_cndmask_b32 v8, v8, v11, vcc
    v_bfe_u32 v7, v0, 1, 2
    """)
    for r in range(4):
        a(f"v_cmp_eq_u32 vcc, {r}, v7\nv_cndmask_b32 v{MASK+r}, 0, v8, vcc")
    a(f"""
    v_lshrrev_b32 v7, 2, v0
    v_xor_b32 v7, v7, v0
    v_and_b32 v7, 8, v7
    v_cmp_ne_u32 s[8:9], 0, v7
    s_mov_b32 s10, {f32(CEXP)}
    s_mov_b32 s11, 0
    s_mov_b32 s98, {S2}
    s_mov_b32 s73, 0
    s_lshl_b32 s7, s3, 8
    v_lshlrev_b32 v13, 2, v0
    v_add_u32 v13, s7, v13
    s_mov_b32 s44, 0x01010101
    s_mov_b32 s45, 0x01010101
    """)
    wait_for('qa')
    a.flush()
    a.label(L('qchk'))
    a(f"v_xor_b32 v7, s97, v{W+1}\nv_xor_b32 v8, s97, v{W+3}")
    for i in range(5,16,4):
        a(f"v_xor_b32 v11, s97, v{W+i}\nv_xor_b32 v12, s97, v{W+i+2}\nv_or3_b32 v7, v7, v11, v12")
    a(f"""
    v_or_b32 v7, v7, v8
    v_cmp_ne_u32 vcc, 0, v7
    s_cbranch_vccz {L('qok')}
    s_add_u32 s73, s73, 1
    s_cmp_ge_u32 s73, {spin_max}
    s_cbranch_scc1 {L('qok')}
    """)
    qload(False)
    a(f"s_waitcnt vmcnt(0)\ns_branch {L('qchk')}")
    a.label(L('qok'))
    a(f"""
    v_add_f32 v{W}, v{W}, v{W+4}
    v_add_f32 v{W+2}, v{W+2}, v{W+6}
    v_add_f32 v{W+8}, v{W+8}, v{W+12}
    v_add_f32 v{W+10}, v{W+10}, v{W+14}
    v_add_f32 v{W}, v{W}, v{W+8}
    v_add_f32 v{W+2}, v{W+2}, v{W+10}
    v_cvt_pk_bf16_f32 v7, v{W}, v{W+2}
    ds_write_b32 v13, v7 offset:{QL}
    s_waitcnt lgkmcnt(0)
    s_barrier
    ds_read_b128 v[{Q}:{Q+3}], v15 offset:{QL}
    ds_read_b128 v[{Q+4}:{Q+7}], v15 offset:{QL+256}
    v_lshrrev_b32 v15, 3, v0
    v_lshlrev_b32 v15, 3, v15
    s_lshl_b32 s7, s3, 11
    v_add_u32 v14, s7, v15
    s_waitcnt lgkmcnt(0)
    """)
    stamp(1)
    if st2:
        stamp_real=stamp
        def stamp(i):
            if i==7: stamp_real(7)
    def kbody(sl,ring=True,waits=True):
        for j in range(8):
            kk,h=j>>1,j&1; d=DS+kk*4
            if waits: a(f"s_waitcnt vmcnt({WN})")
            c="0" if h==0 else f"v[{d}:{d+3}]"
            a(f"v_mfma_f32_16x16x32_bf16 v[{d}:{d+3}], {Rr(sl,j)}, v[{Q+h*4}:{Q+h*4+3}], {c}")
            if ring: ld(sl,j,"s6")
        for kk in range(4):
            d=DS+kk*4; s=S+kk
            a(f"v_mov_b32_dpp v{s}, v{d} quad_perm:[0,0,0,0] {DPPT}")
            for r in range(1,4):
                a(f"v_add_f32_dpp v{s}, v{d+r}, v{s} quad_perm:[{r},{r},{r},{r}] {DPPT}")
        a(f"""
        v_cvt_pk_bf16_f32 v{A[0]}, v{S}, v{S+1}
        v_cvt_pk_bf16_f32 v{A[0]+1}, v{S+2}, v{S+3}
        s_mov_b64 exec, s[44:45]
        ds_write_b64 v14, v[{A[0]}:{A[0]+1}] offset:{SCL}
        s_mov_b64 exec, -1
        v_add_u32 v14, 64, v14
        """)
        if ring: a("s_add_u32 s6, s6, 0x80000\ns_add_u32 s11, s11, 1")
    qi=max(i for i,t in enumerate(VQ) if t=='qa')
    def pwait(sl):
        last=max(i for i,t in enumerate(VQ) if t==f"f{sl}")
        if last>qi: wait_for(f"f{sl}")
    for sl in range(NP):
        pwait(sl); kbody(sl,True,False); VQ.extend(['r']*8)
    for x in range(NX):
        pwait(-(x+1)); kbody(-(x+1),False,False)
    a(f"s_cmp_lg_u32 s3, 0\ns_cbranch_scc1 {L('ksubP')}")
    gather4(RED+2048)
    a(f"""
    v_add_f32 v{U+8}, v{U}, v{U+4}
    v_add_f32 v{U+9}, v{U+1}, v{U+5}
    v_lshrrev_b32 v7, 5, v0
    v_mul_u32_u24 v7, 7168, v7
    v_and_b32 v8, 31, v0
    v_lshl_add_u32 v7, v8, 3, v7
    s_lshl_b32 s7, s71, 1
    s_bfe_u32 s73, s2, 0x10002
    s_add_u32 s7, s7, s73
    s_mul_i32 s7, s7, 14336
    s_lshl_b32 s73, s72, 8
    s_add_u32 s7, s7, s73
    s_add_u32 s7, s7, {GU}
    s_cmp_ge_u32 s2, 224
    s_cselect_b32 s7, 0x7fff0000, s7
    v_mov_b32 v124, -1
    v_mov_b32 v125, -1
    v_mov_b32 v126, -1
    v_mov_b32 v127, -1
    v_mov_b32 v123, 0
    v_add_u32 v11, 0x1000, v9
    buffer_store_dwordx2 v[{U+8}:{U+9}], v7, s[48:51], s7 offen sc1
    """)
    for i in range(0 if noclr else 7):
        a(f"buffer_store_dwordx4 v[124:127], v{9 if i<4 else 11}, s[48:51], s68 offen offset:{(i&3)*1024} sc1")
    a(f"""
    s_add_u32 s7, s68, {CNTO}
    s_mov_b64 exec, 1
    buffer_store_dword v123, off, s[48:51], s7 sc1
    s_mov_b64 exec, -1
    s_branch {L('ksubP')}
    """)
    a.label(L('kloop'))
    a(f"s_cmp_eq_u32 s11, s98\ns_cbranch_scc1 {L('ksvc')}")
    a.label(L('kloop2'))
    for nb in range(NB):
        if nb==NP: a.label(L('ksubP'))
        kbody(nb)
    if NP==NB: a.label(L('ksubP'))
    a(f"s_cmp_lt_u32 s11, {NK}\ns_cbranch_scc1 {L('kloop')}")
    stamp(5)
    a(f"""
    s_mov_b32 s11, 0
    s_mov_b32 s98, {S3}
    v_mov_b32 v{vM}, 0xff7fffff
    v_mov_b32 v{vL}, 0
    s_lshl_b32 s75, s5, 24
    s_lshl_b32 s15, s4, 2
    s_add_u32 s15, s15, s3
    s_lshl_b32 s15, s15, 13
    s_add_u32 s15, s15, s75
    s_lshl_b32 s7, s3, 13
    s_add_u32 s75, s75, s7
    s_add_u32 s75, s75, {KS*64*8192}
    s_mov_b32 s76, -1
    s_mul_i32 s47, s5, {64*NSH*64}
    s_add_u32 s47, s47, {SCO}
    s_lshl_b32 s7, s3, 11
    s_add_u32 s7, s7, {NSH*64}
    v_add_u32 v14, s7, v15
    """)
    for i in range(8): a(f"v_mov_b32 v{O+i}, 0")
    a.flush()
    a.label(L('vloop'))
    a(f"s_cmp_eq_u32 s11, s98\ns_cbranch_scc1 {L('vsvc')}")
    a.label(L('vloop2'))
    SS=DS+4
    for nb in range(NB):
        sc=SCR+2*nb
        a(f"""
        ds_read_b64 v[{SS}:{SS+1}], v14 offset:{SCL}
        v_add_u32 v14, 64, v14
        s_waitcnt vmcnt({WN})
        v_readfirstlane_b32 s77, v{TK+nb}
        s_add_u32 s79, s11, {NB}
        s_lshl_b32 s78, s77, 15
        s_add_u32 s78, s78, s75
        s_cmp_ge_u32 s11, {NSV+KS-NB}
        s_cselect_b32 s14, s78, s6
        s_cselect_b32 s77, s77, 0
        s_cselect_b32 s78, {POOL}, 1
        s_cmp_ge_u32 s77, s78
        s_cselect_b32 s42, 0, s42
        s_cselect_b32 s66, 0, s66
        s_cselect_b32 s79, s79, -1
        s_min_u32 s76, s76, s79
        s_waitcnt lgkmcnt(0)
        s_cmp_lt_u32 s11, {NSV}
        s_cbranch_scc1 {L(f'vs{nb}')}
        """)
        a(f"""
        v_mov_b32 v{SS}, v{sc}
        v_mov_b32 v{SS+1}, v{sc+1}
        """)
        a.label(L(f'vs{nb}'))
        a(f"""
        s_bfe_u32 s7, s14, 0x6000d
        s_mul_i32 s7, s7, {NSH*64}
        s_bfe_u32 s46, s14, 0x50013
        s_lshl_b32 s46, s46, 6
        s_add_u32 s7, s7, s46
        s_add_u32 s7, s7, s47
        s_cmp_ge_u32 s11, {NSV-NB}
        s_cselect_b32 s7, s7, 0x7fff0000
        s_cmp_eq_u32 s42, 0
        s_cselect_b32 s7, 0x7fff0000, s7
        v_mov_b32 v{TK+nb}, 1
        s_mov_b64 exec, 1
        buffer_atomic_add v{TK+nb}, off, s[64:67], 0 sc0
        s_mov_b64 exec, -1
        buffer_load_dwordx2 v[{sc}:{sc+1}], v15, s[48:51], s7 offen sc1
        v_lshlrev_b32 v{S}, 16, v{SS}
        v_and_b32 v{S+1}, 0xffff0000, v{SS}
        v_lshlrev_b32 v{S+2}, 16, v{SS+1}
        v_and_b32 v{S+3}, 0xffff0000, v{SS+1}
        v_max3_f32 v7, v{S}, v{S+1}, v{S+2}
        v_max3_f32 v7, v7, v{S+3}, v{vM}
        v_mov_b32 v8, v7
        v_permlane16_swap_b32 v8, v7
        v_max_f32 v7, v7, v8
        v_mov_b32 v8, v7
        v_permlane32_swap_b32 v8, v7
        v_max_f32 v7, v7, v8
        v_sub_f32 v8, v{vM}, v7
        v_mul_f32 v8, s10, v8
        v_exp_f32 v8, v8
        v_mov_b32 v{vM}, v7
        v_mul_f32 v9, s10, v7
        v_mov_b32_dpp v10, v8 row_ror:8 {DPPT}
        v_mul_f32 v{vL}, v{vL}, v8
        v_cndmask_b32 v10, v8, v10, s[8:9]
        """)
        for i in range(8): a(f"v_mul_f32 v{O+i}, v{O+i}, v10")
        for kk in range(4): a(f"v_fma_f32 v{S+kk}, v{S+kk}, s10, -v9")
        for kk in range(4): a(f"v_exp_f32 v{S+kk}, v{S+kk}")
        for kk in range(4):
            Ar=A[kk&1]
            a(f"v_cvt_pk_bf16_f32 v11, v{S+kk}, v{S+kk}")
            a(f"v_add_f32 v{vL}, v{vL}, v{S+kk}")
            for r in range(4): a(f"v_and_b32 v{Ar+r}, v11, v{MASK+r}")
            for h in range(2):
                j=kk*2+h; o=O+h*4
                if j: a(f"s_waitcnt vmcnt({WN})")
                a(f"v_mfma_f32_16x16x32_bf16 v[{o}:{o+3}], v[{Ar}:{Ar+3}], {Rr(nb,j)}, v[{o}:{o+3}]")
                ld(nb,j)
        a(f"""
        s_add_u32 s6, s6, 0x80000
        s_add_u32 s11, s11, 1
        s_cmp_eq_u32 s11, {NSV-NB}
        s_cselect_b32 s6, s15, s6
        s_cmp_eq_u32 s11, s76
        """)
        if nb<NB-1: a(f"s_cbranch_scc1 {L('sdone')}")
        else: a(f"s_cbranch_scc0 {L('vloop')}")
    a(f"s_branch {L('sdone')}")
    a.label(L('ksvc'))
    a(f"""
    s_cmp_eq_u32 s11, {SRD}
    s_cbranch_scc1 {L('rdy')}
    s_cmp_eq_u32 s11, {SKV}
    s_cbranch_scc1 {L('kv')}
    s_cmp_eq_u32 s11, {S2}
    s_cbranch_scc1 {L('svc2b')}
    s_mov_b32 s98, {SRD}
    v_lshlrev_b32 v7, 4, v0
    s_lshl_b32 s7, s3, 11
    v_add_u32 v8, s7, v7
    ds_read_b128 v[{GR}:{GR+3}], v8 offset:{SCL}
    ds_read_b128 v[{GR+4}:{GR+7}], v8 offset:{SCL+1024}
    s_lshl_b32 s7, s4, 4
    s_add_u32 s7, s7, s5
    s_lshl_b32 s7, s7, 2
    s_add_u32 s7, s7, s3
    s_mul_i32 s7, s7, {NSH*64}
    s_add_u32 s7, s7, {SCO}
    v_cmp_gt_u32 vcc, {min(NSH*4,64)}, v0
    v_cmp_gt_u32 s[46:47], {max(NSH*4-64,0)}, v0
    s_waitcnt lgkmcnt(0)
    s_mov_b64 exec, vcc
    buffer_store_dwordx4 v[{GR}:{GR+3}], v7, s[48:51], s7 offen sc1
    """)
    if NSH>16: a(f"s_mov_b64 exec, s[46:47]\nbuffer_store_dwordx4 v[{GR+4}:{GR+7}], v7, s[48:51], s7 offen offset:1024 sc1")
    a(f"s_mov_b64 exec, -1\ns_branch {L('kloop2')}")
    a.label(L('svc2b'))
    a(f"""
    s_mov_b32 s98, {SPB}
    s_mov_b32 s52, s24
    s_mov_b32 s53, s25
    s_mov_b32 s54, {4096*896}
    s_mov_b32 s56, s32
    s_mov_b32 s57, s33
    s_mov_b32 s58, {1792*896}
    v_lshrrev_b32 v7, 4, v0
    v_and_b32 v10, 15, v0
    v_lshlrev_b32 v10, 4, v10
    v_mul_u32_u24 v11, {8*896}, v7
    v_add_u32 v11, v11, v10
    s_mul_i32 s71, s69, {32*896}
    s_lshl_b32 s72, s3, 8
    s_add_u32 s71, s71, s72
    s_add_u32 s73, s71, {4*896}
    """)
    for kk in range(8):
        r=WO+kk*4
        a(f"buffer_load_dwordx4 a[{r}:{r+3}], v11, s[52:55], s{71 if kk<4 else 73} offen offset:{(kk&3)*896} nt")
    a(f"""
    v_mul_u32_u24 v11, {4*896}, v7
    v_add_u32 v11, v11, v10
    s_mul_i32 s71, s69, {14*896}
    s_add_u32 s71, s71, s72
    """)
    for kk in range(4):
        r=W2+kk*4
        a(f"buffer_load_dwordx4 a[{r}:{r+3}], v11, s[56:59], s71 offen offset:{kk*896} nt")
    a(f"""
    s_lshl_b32 s74, s69, 3
    s_mul_i32 s72, s70, 896
    s_add_u32 s74, s74, s72
    buffer_load_dwordx2 v[{XR}:{XR+1}], off, s[60:63], s74
    s_mov_b32 s73, 0
    s_branch {L('kloop2')}
    """)
    a.label(L('rdy'))
    a(f"""
    s_mov_b32 s98, {SKV}
    v_mov_b32 v7, s97
    s_lshl_b32 s7, s2, 2
    s_add_u32 s7, s7, s3
    s_lshl_b32 s7, s7, 2
    s_add_u32 s7, s7, {RDY}
    s_waitcnt vmcnt({WN})
    s_mov_b64 exec, 1
    buffer_store_dword v7, off, s[48:51], s7 sc1
    s_mov_b64 exec, -1
    """)
    if SRD!=SKV: a(f"s_branch {L('kloop2')}")
    a.label(L('kv'))
    a(f"""
    s_mov_b32 s98, -1
    s_mov_b32 s40, s20
    s_mov_b32 s41, s21
    s_add_u32 s6, s99, {NSH*0x80000}
    v_mov_b32 v{PO[0]}, v{VO[0]}
    v_mov_b32 v{PO[1]}, v{VO[1]}
    s_branch {L('kloop2')}
    """)
    a.label(L('vsvc'))
    a(f"""
    s_cmp_eq_u32 s11, {S4}
    s_cbranch_scc1 {L('svc4')}
    s_cmp_eq_u32 s11, {S5}
    s_cbranch_scc1 {L('switch')}
    s_mov_b32 s98, {S4}
    v_lshlrev_b32 v13, 4, v0
    s_mov_b32 s7, {RDY}
    """)
    def rload():
        for i in range(4): a(f"buffer_load_dwordx4 v[{RD+4*i}:{RD+4*i+3}], v13, s[48:51], s7 offen offset:{1024*i} sc1")
    rload()
    a(f"s_branch {L('vloop2')}")
    a.label(L('svc4'))
    a(f"""
    s_mov_b32 s98, {S5}
    s_mov_b32 s71, 0
    s_mov_b32 s7, {RDY}
    s_waitcnt vmcnt({WN})
    """)
    a.flush()
    a.label(L('rchk'))
    a(f"""
    v_min3_u32 v7, v{RD}, v{RD+1}, v{RD+2}
    v_max3_u32 v8, v{RD}, v{RD+1}, v{RD+2}
    """)
    for i in range(3,15,2): a(f"v_min3_u32 v7, v7, v{RD+i}, v{RD+i+1}\nv_max3_u32 v8, v8, v{RD+i}, v{RD+i+1}")
    a(f"""
    v_min_u32 v7, v7, v{RD+15}
    v_max_u32 v8, v8, v{RD+15}
    v_xor_b32 v7, s97, v7
    v_xor_b32 v8, s97, v8
    v_or_b32 v7, v7, v8
    v_cmp_ne_u32 vcc, 0, v7
    s_cbranch_vccz {L('rok')}
    s_add_u32 s71, s71, 1
    s_cmp_ge_u32 s71, {spin_max}
    s_cbranch_scc1 {L('rok')}
    s_sleep 16
    """)
    rload()
    a(f"s_waitcnt vmcnt(0)\ns_branch {L('rchk')}")
    a.label(L('rok'))
    if KS==0: a("s_mov_b32 s66, 4")
    a(f"""
    v_lshrrev_b32 v7, 4, v0
    v_lshlrev_b32 v11, 4, v7
    s_mul_i32 s71, s69, 56
    s_mul_i32 s72, s70, 7168
    s_add_u32 s71, s71, s72
    s_add_u32 s71, s71, {GU}
    """)
    for pm in range(8):
        a(f"buffer_load_dwordx4 v[{GR+4*pm}:{GR+4*pm+3}], v11, s[48:51], s71 offen sc1")
        if pm<7: a("s_add_u32 s71, s71, 14336")
    a(f"""
    s_or_b32 s7, s2, s3
    s_cmp_lg_u32 s7, 0
    s_cbranch_scc1 {L('vloop2')}
    v_mov_b32 v7, s97
    s_mov_b32 s7, {EPO}
    s_mov_b64 exec, 1
    buffer_store_dword v7, off, s[48:51], s7 sc1
    s_mov_b64 exec, -1
    s_branch {L('vloop2')}
    """)
    a.label(L('switch'))
    a(f"s_mov_b32 s98, -1\ns_waitcnt vmcnt({WN})")
    if touch:
        a("s_mov_b32 s60, s34\ns_mov_b32 s61, s35\nbuffer_load_dword a180, off, s[60:63], 0")
    if warm&2:
        a("s_getpc_b64 s[52:53]")
        a.label(L('pc2'))
        a(f"""
        s_mov_b32 s54, {L('end2')}-{L('pc2')}
        v_lshlrev_b32 v7, 4, v0
        s_lshl_b32 s7, s3, 10
        buffer_load_dwordx4 a[176:179], v7, s[52:55], s7 offen
        """)
    for i in range(8): a(f"v_mov_b32 v{SV+i}, v{O+i}")
    a(f"v_mov_b32 v{SV+8}, v{vM}\nv_mov_b32 v{SV+9}, v{vL}")
    for i in range(8): a(f"v_mov_b32 v{O+i}, 0")
    a(f"""
    v_mov_b32 v{vM}, 0xff7fffff
    v_mov_b32 v{vL}, 0
    {'s_nop 0' if KS==0 else 's_mov_b32 s66, '+str(4 if dyn else 0)}
    v_mov_b32 v14, v15
    """)
    for m in range(2):
        for q in range(4):
            g=GR+4*m+q
            a(f"v_add_f32 v{g}, v{g}, v{g+8}\nv_add_f32 v{g+16}, v{g+16}, v{g+24}\nv_add_f32 v{g}, v{g}, v{g+16}")
    for q in range(4):
        a(f"""
        v_cvt_pk_bf16_f32 v7, v{GR+q}, v{GR+4+q}
        v_and_b32 v8, 0xffff0000, v7
        v_lshlrev_b32 v7, 16, v7
        v_mul_f32 v9, {f32(-math.log2(math.e))}, v7
        v_exp_f32 v9, v9
        v_add_f32 v9, 1.0, v9
        v_rcp_f32 v9, v9
        v_mul_f32 v9, v9, v7
        v_cvt_pk_bf16_f32 v9, v9, v9
        v_lshlrev_b32 v9, 16, v9
        v_mul_f32 v9, v9, v8
        v_cvt_pk_bf16_f32 v{HC+q}, v9, v9
        """)
    a(f"""
    v_cmp_gt_u32 vcc, 48, v0
    v_cndmask_b32 v{HC+2}, 0, v{HC+2}, vcc
    v_cndmask_b32 v{HC+3}, 0, v{HC+3}, vcc
    """)
    for kk in range(4):
        Ar=A[kk&1]; r=W2+kk*4
        for q in range(4): a(f"v_and_b32 v{Ar+q}, v{HC+kk}, v{MASK+q}")
        c="0" if kk==0 else f"v[{D}:{D+3}]"
        a(f"v_mfma_f32_16x16x32_bf16 v[{D}:{D+3}], v[{Ar}:{Ar+3}], a[{r}:{r+3}], {c}")
    a(f"s_cmp_lg_u32 s11, s76\ns_cbranch_scc1 {L('vloop2')}")
    a.label(L('sdone'))
    a(f"s_cmp_lg_u32 s98, -1\ns_cbranch_scc1 {L('switch')}")
    TAIL(a,L,locals())
    return a.text(), kd(K,256+192,100,256), LDS

def TAIL(a,L,E):
    g=lambda n: E[n]
    vL,vM,SV,O,OP,ML,DS,A,MASK,D,WO,XR,CF=[g(n) for n in "vL vM SV O OP ML DS A MASK D WO XR CF".split()]
    stamp,stamps,skip_tail,poll1,spin_max=[g(n) for n in "stamp stamps skip_tail poll1 spin_max".split()]
    PD,pmask,ps1,ps2=g("PD"),g("pmask"),g("ps1"),g("ps2")
    Q=96
    stamp(2)
    for lr in (vL,SV+9):
        a(f"""
        v_mov_b32 v8, v{lr}
        v_permlane16_swap_b32 v8, v{lr}
        v_add_f32 v{lr}, v{lr}, v8
        v_mov_b32 v8, v{lr}
        v_permlane32_swap_b32 v8, v{lr}
        v_add_f32 v{lr}, v{lr}, v8
        """)
    a(f"""
    v_lshrrev_b32 v7, 5, v0
    v_lshlrev_b32 v7, 10, v7
    v_and_b32 v8, 15, v0
    v_lshl_add_u32 v7, v8, 5, v7
    v_bfe_u32 v8, v0, 4, 1
    v_lshl_add_u32 v7, v8, 4, v7
    s_lshl_b32 s7, s3, 11
    v_add_u32 v7, s7, v7
    ds_write_b128 v7, v[{SV}:{SV+3}] offset:{OP}
    ds_write_b128 v7, v[{SV+4}:{SV+7}] offset:{OP+512}
    ds_write_b128 v7, v[{O}:{O+3}] offset:{OP+8192}
    ds_write_b128 v7, v[{O+4}:{O+7}] offset:{OP+8192+512}
    v_bfe_u32 v8, v0, 3, 1
    v_lshlrev_b32 v8, 5, v8
    s_lshl_b32 s7, s3, 2
    v_add_u32 v8, s7, v8
    ds_write_b32 v8, v{SV+8} offset:{ML}
    ds_write_b32 v8, v{SV+9} offset:{ML+16}
    ds_write_b32 v8, v{vM} offset:{ML+64}
    ds_write_b32 v8, v{vL} offset:{ML+64+16}
    s_lshr_b32 s12, s3, 1
    s_and_b32 s13, s3, 1
    s_lshl_b32 s7, s12, 13
    s_lshl_b32 s14, s13, 10
    s_add_u32 s7, s7, s14
    v_lshlrev_b32 v7, 4, v0
    v_add_u32 v7, s7, v7
    s_lshl_b32 s7, s3, 5
    v_mov_b32 v8, s7
    s_add_u32 s15, s4, 16
    s_cmp_eq_u32 s12, 0
    s_cselect_b32 s14, s4, s5
    s_cselect_b32 s15, s5, s15
    s_lshl_b32 s14, s14, 4
    s_lshl_b32 s13, s13, 3
    s_add_u32 s14, s14, s13
    s_lshl_b32 s14, s14, 13
    s_lshl_b32 s12, s15, 7
    s_add_u32 s12, s12, s14
    s_lshl_b32 s13, s15, 3
    s_add_u32 s13, s13, s14
    s_add_u32 s13, s13, {H1ML}
    v_lshrrev_b32 v9, 3, v0
    v_lshlrev_b32 v9, 13, v9
    v_and_b32 v10, 7, v0
    v_lshl_add_u32 v11, v10, 4, v9
    v_cmp_eq_u32 vcc, 0, v10
    s_waitcnt lgkmcnt(0)
    s_barrier
    """)
    stamp(3)
    if skip_tail: a(f"s_branch {L('end')}")
    a(f"""
    ds_read_b128 v[{Q}:{Q+3}], v8 offset:{ML}
    ds_read_b128 v[{Q+4}:{Q+7}], v8 offset:{ML+16}
    """)
    for w in range(4): a(f"ds_read_b128 v[{DS+4*w}:{DS+4*w+3}], v7 offset:{OP+w*2048}")
    a(f"""
    s_waitcnt lgkmcnt(4)
    v_max3_f32 v12, v{Q}, v{Q+1}, v{Q+2}
    v_max_f32 v12, v12, v{Q+3}
    """)
    for w in range(4): a(f"v_sub_f32 v{Q+w}, v{Q+w}, v12")
    for w in range(4): a(f"v_mul_f32 v{Q+w}, s10, v{Q+w}")
    for w in range(4): a(f"v_exp_f32 v{Q+w}, v{Q+w}")
    a(f"v_mul_f32 v13, v{Q}, v{Q+4}")
    for w in range(1,4): a(f"v_fmac_f32 v13, v{Q+w}, v{Q+4+w}")
    a("s_waitcnt lgkmcnt(0)")
    for e in range(4):
        a(f"v_mul_f32 v{O+e}, v{Q}, v{DS+e}")
        for w in range(1,4): a(f"v_fmac_f32 v{O+e}, v{Q+w}, v{DS+4*w+e}")
    for e in range(4): a(f"v_min_u32 v{O+e}, -2, v{O+e}")
    a(f"""
    v_min_u32 v12, -2, v12
    v_min_u32 v13, -2, v13
    buffer_store_dwordx4 v[{O}:{O+3}], v11, s[48:51], s12 offen sc1
    s_mov_b64 exec, vcc
    buffer_store_dwordx2 v[12:13], v9, s[48:51], s13 offen sc1
    s_mov_b64 exec, -1
    v_lshrrev_b32 v4, 4, v0
    v_and_b32 v6, 15, v0
    v_lshlrev_b32 v7, 7, v6
    v_lshl_add_u32 v7, v4, 5, v7
    v_lshlrev_b32 v8, 3, v6
    v_add_u32 v8, {H1ML}, v8
    v_bfe_u32 v9, v0, 4, 1
    v_lshl_add_u32 v9, v6, 1, v9
    s_lshl_b32 s7, s3, 5
    v_add_u32 v9, s7, v9
    v_cmp_gt_u32 vcc, 112, v9
    v_cmp_gt_u32 s[72:73], 32, v0
    s_and_b64 s[72:73], s[72:73], vcc
    s_lshl_b32 s7, s70, 7
    v_add_u32 v9, s7, v9
    v_lshlrev_b32 v9, 13, v9
    s_lshl_b32 s75, s69, 4
    s_add_u32 s75, s75, {H2}
    v_lshlrev_b32 v14, 4, v0
    v_add_u32 v14, {H2}, v14
    v_lshlrev_b32 v15, 5, v4
    s_mov_b32 s71, 0
    """)
    PO=DS; PM=Q
    stamp(4)
    if poll1=='one': a(f"s_cmp_lg_u32 s3, 0\ns_cbranch_scc1 {L('p1w')}")
    def p1loads():
        a(f"""
        buffer_load_dwordx4 v[{PO}:{PO+3}], v7, s[48:51], s68 offen sc1
        buffer_load_dwordx4 v[{PO+4}:{PO+7}], v7, s[48:51], s68 offen offset:16 sc1
        buffer_load_dwordx4 v[{PO+8}:{PO+11}], v7, s[48:51], s68 offen offset:2048 sc1
        buffer_load_dwordx4 v[{PO+12}:{PO+15}], v7, s[48:51], s68 offen offset:2064 sc1
        buffer_load_dwordx2 v[{PM}:{PM+1}], v8, s[48:51], s68 offen sc1
        buffer_load_dwordx2 v[{PM+2}:{PM+3}], v8, s[48:51], s68 offen offset:128 sc1
        """)
    for i in range(PD-1):
        p1loads(); a("s_sleep 4")
    a.flush()
    a.label(L('p1'))
    p1loads()
    a(f"""
    s_waitcnt vmcnt({6*(PD-1)})
    v_max3_u32 v12, v{PO}, v{PO+1}, v{PO+2}
    v_max3_u32 v13, v{PO+3}, v{PO+4}, v{PO+5}
    v_max3_u32 v12, v12, v{PO+6}, v{PO+7}
    v_max3_u32 v13, v13, v{PO+8}, v{PO+9}
    v_max3_u32 v12, v12, v{PO+10}, v{PO+11}
    v_max3_u32 v13, v13, v{PO+12}, v{PO+13}
    v_max3_u32 v12, v12, v{PO+14}, v{PO+15}
    v_max3_u32 v13, v13, v{PM}, v{PM+1}
    v_max3_u32 v12, v12, v{PM+2}, v{PM+3}
    v_max_u32 v12, v12, v13
    v_cmp_eq_u32 vcc, -1, v12
    s_add_u32 s71, s71, 1
    s_cmp_ge_u32 s71, {spin_max}
    s_cbranch_scc1 {L('p1d')}
    """)
    if pmask:
        a(f"s_cbranch_vccz {L('p1d')}\ns_mov_b64 exec, vcc\n{'s_sleep '+str(ps1) if ps1 else ''}\ns_branch {L('p1')}")
    else: a(f"s_cbranch_vccnz {L('p1')}")
    a.label(L('p1d'))
    if pmask: a("s_mov_b64 exec, -1")
    stamp(5)
    PR=104
    a(f"v_max_f32 v12, v{PM}, v{PM+2}")
    for m in R16: a(f"v_max_f32_dpp v12, v12, v12 {m} {DPPT}")
    a(f"""
    v_sub_f32 v10, v{PM}, v12
    v_sub_f32 v11, v{PM+2}, v12
    v_mul_f32 v10, s10, v10
    v_mul_f32 v11, s10, v11
    v_exp_f32 v10, v10
    v_exp_f32 v11, v11
    v_mul_f32 v13, v10, v{PM+1}
    v_fmac_f32 v13, v11, v{PM+3}
    """)
    for q in range(8): a(f"v_mul_f32 v{PR+q}, v{PO+q}, v10")
    for q in range(8): a(f"v_fmac_f32 v{PR+q}, v{PO+8+q}, v11")
    for m in R16:
        a(f"v_add_f32_dpp v13, v13, v13 {m} {DPPT}")
        for q in range(8): a(f"v_add_f32_dpp v{PR+q}, v{PR+q}, v{PR+q} {m} {DPPT}")
    a("v_rcp_f32 v13, v13")
    for q in range(8): a(f"v_mul_f32 v{PR+q}, v{PR+q}, v13")
    for q in range(8): a(f"v_cvt_pk_bf16_f32 v{PR+q}, v{PR+q}, v{PR+q}")
    if poll1=='one':
        a(f"""
        ds_write_b128 v15, v[{PR}:{PR+3}] offset:{CF}
        ds_write_b128 v15, v[{PR+4}:{PR+7}] offset:{CF+16}
        s_waitcnt lgkmcnt(0)
        """)
        a.label(L('p1w'))
        a(f"""
        s_barrier
        ds_read_b128 v[{PR}:{PR+3}], v15 offset:{CF}
        ds_read_b128 v[{PR+4}:{PR+7}], v15 offset:{CF+16}
        s_waitcnt lgkmcnt(0)
        """)
    for kk in range(8):
        Ar=A[kk&1]; r=WO+kk*4
        for q in range(4): a(f"v_and_b32 v{Ar+q}, v{PR+kk}, v{MASK+q}")
        a(f"v_mfma_f32_16x16x32_bf16 v[{D}:{D+3}], v[{Ar}:{Ar+3}], a[{r}:{r+3}], v[{D}:{D+3}]")
    for q in range(4): a(f"v_min_u32 v{D+q}, -2, v{D+q}")
    a(f"""
    s_mov_b64 exec, s[72:73]
    buffer_store_dwordx4 v[{D}:{D+3}], v9, s[48:51], s75 offen sc1
    s_mov_b64 exec, -1
    """)
    stamp(1)
    a(f"""
    s_cmp_lg_u32 s3, 3
    s_cbranch_scc1 {L('end')}
    s_cmp_ge_u32 s69, 112
    s_cbranch_scc1 {L('end')}
    s_mov_b32 s60, s34
    s_mov_b32 s61, s35
    s_mov_b32 s71, 0
    v_lshlrev_b32 v{O}, 16, v{XR}
    v_and_b32 v{O+1}, 0xffff0000, v{XR}
    v_lshlrev_b32 v{O+2}, 16, v{XR+1}
    v_and_b32 v{O+3}, 0xffff0000, v{XR+1}
    v_cmp_eq_u32 vcc, 1, v4
    v_cndmask_b32 v{O}, v{O}, v{O+1}, vcc
    v_cmp_eq_u32 vcc, 2, v4
    v_cndmask_b32 v{O}, v{O}, v{O+2}, vcc
    v_cmp_eq_u32 vcc, 3, v4
    v_cndmask_b32 v{O}, v{O}, v{O+3}, vcc
    v_lshlrev_b32 v4, 1, v4
    v_cmp_eq_u32 s[72:73], 0, v6
    """)
    P2=112; PL=120
    def p2loads():
        a(f"""
        buffer_load_dwordx4 v[{PL}:{PL+3}], v14, s[48:51], s68 offen sc1
        buffer_load_dwordx4 v[{PL+4}:{PL+7}], v14, s[48:51], s68 offen offset:1024 sc1
        """)
    for i in range(PD-1):
        p2loads(); a("s_sleep 4")
    a.flush()
    a.label(L('p2'))
    p2loads()
    a(f"""
    s_waitcnt vmcnt({2*(PD-1)})
    v_max3_u32 v12, v{PL}, v{PL+1}, v{PL+2}
    v_max3_u32 v13, v{PL+3}, v{PL+4}, v{PL+5}
    v_max3_u32 v12, v12, v{PL+6}, v{PL+7}
    v_max_u32 v12, v12, v13
    v_cmp_eq_u32 vcc, -1, v12
    s_add_u32 s71, s71, 1
    s_cmp_ge_u32 s71, {spin_max}
    s_cbranch_scc1 {L('p2d')}
    """)
    if pmask:
        a(f"s_cbranch_vccz {L('p2d')}\ns_mov_b64 exec, vcc\n{'s_sleep '+str(ps2) if ps2 else ''}\ns_branch {L('p2')}")
    else: a(f"s_cbranch_vccnz {L('p2')}")
    a.label(L('p2d'))
    if pmask: a("s_mov_b64 exec, -1")
    stamp(6)
    for q in range(4): a(f"v_add_f32 v{P2+q}, v{PL+q}, v{PL+4+q}")
    a(f"""
    v_permlane16_swap_b32 v{P2}, v{P2+1}
    v_permlane16_swap_b32 v{P2+2}, v{P2+3}
    v_add_f32 v{P2}, v{P2}, v{P2+1}
    v_add_f32 v{P2+2}, v{P2+2}, v{P2+3}
    v_permlane32_swap_b32 v{P2}, v{P2+2}
    v_add_f32 v{P2}, v{P2}, v{P2+2}
    """)
    for m in R16: a(f"v_add_f32_dpp v{P2}, v{P2}, v{P2} {m} {DPPT}")
    a(f"""
    v_add_f32 v{P2}, v{P2}, v{O}
    v_cvt_pk_bf16_f32 v{P2}, v{P2}, v{P2}
    s_mov_b64 exec, s[72:73]
    buffer_store_short v{P2}, v4, s[60:63], s74 offen
    """)
    a.label(L('end'))
    if stamps:
        a("s_waitcnt vmcnt(0)")
        stamp(7)
        a(f"""
        s_mov_b64 exec, 1
        s_mov_b32 s50, 0x1000000
        s_lshl_b32 s11, s2, 2
        s_add_u32 s11, s11, s96
        s_lshl_b32 s11, s11, 6
        s_add_u32 s11, s11, {STO}
        """)
        for i in range(4):
            for q in range(4): a(f"v_mov_b32 v{4+q}, s{80+4*i+q}")
            a(f"buffer_store_dwordx4 v[4:7], off, s[48:51], s11 offset:{16*i}")
    a.label(L('end2'))
    a("s_endpgm")

def write_main(path, **kw):
    t,kd1,lds=gen_main(**kw)
    s=HDR
    s+=f"; @launch grid=(256,1,1) block=(256,1,1) lds={lds}\n"
    s+='.amdgcn_target "amdgcn-amd-amdhsa--gfx950"\n.text\n'+t+'.section .rodata,"a"\n'+kd1
    open(path,"w").write(s)
if __name__=="__main__":
    write_main("cdna_kernels/"+NAME+".s")
```

```python
import struct, sys, math
from asmlib import Asm
from gen2 import f32, kd, layernorm, R16, DPPT, NAME, HDR
INB=8192; H1ML=4096; H2=4608; CNTO=7168
QOFF=256*INB
GU=QOFF+262144
RDY=GU+16*7168+1024
EPO=RDY+4096
SCO=3<<20
WSB=SCO+(2<<20)
STO=8<<20

def gen_main(K=NAME+"_kernel", NB=1, NX=7, NSV=24, spin_max=1<<17, stamps=False, dyn=True, skip_tail=False,
             kf=' nt', poll1='one', sched=(8,8,8,0), pollpos=48, sbar=True, exp=0, KS0=True, NPo=1, warm=0, st2=False, touch=False, PD=1, pmask=True, ps1=0, ps2=0, noclr=False, ldsz=81920+1024, vf=None, swz=0, perm=0, xp=0, ip=None, sp=None, bp=(13,14,15,16,21,18,17,22,19,20,23), pair=False, WNo=6, early=True, WVo=7, pace=None, ilv=0):
    a=Asm(); L=lambda s: f"L_{K[-12:]}_{s}"
    CEXP=math.log2(math.e)/16.0
    OP=0; ML=16384; XN=16640; RED=XN+3584; CF=RED+4096; QL=CF+256; SCL=QL+1024; LDS=ldsz
    NK=32-NX
    NP=max(NB//2,1) if NPo is None else NPo
    assert NK%NB==0 and NSV%NB==0
    KS=(0 if KS0 else 2*NB) if dyn else 32-NSV
    POOL=((32-NSV-KS)*64)//4//(NB if pair else 1)
    UB={1:0,2:1,4:2}[NB] if pair else 0
    NSH=32-NSV
    S2=NB if not ilv else 4; SPB=max(S2+NB,((NSH-NX+NB-1)//NB)*NB,2*NB); SKV=NK-NB
    S3,S4,S5=(NSV-3*NB, NSV-2*NB, NSV) if KS==0 else (NSV-2*NB, NSV-NB, NSV)
    SRD=SPB+2*NB
    assert S2<SPB and SRD<=SKV and S3>=0
    WN=8*NB-1 if WNo is None else WNo
    assert WN<=8*NB-1
    WV=WN if WVo is None else WVo
    assert WV<=8*NB+(0 if pair else 1)
    def stamp(i):
        if stamps: a(f"s_memrealtime s[{80+2*i}:{81+2*i}]\ns_waitcnt lgkmcnt(0)")
    PO=[1,2]; VO=[3,4]; vM=5; vL=6
    MASK=16; Q=20; TK=20; O=28; DS=36; HC=36; A=[52,56]; S=60
    SCR=64; SV=80; XR=90; D=92; RD=96; GR=96; RING=128
    XB=0; WO=128; W2=160
    assert RING+NB*32+max(NX-4,0)*32<=256
    def Rr(sl,j):
        if sl<-4: sl=NB+(-sl-5)
        return (f"v[{RING+sl*32+j*4}:{RING+sl*32+j*4+3}]" if sl>=0 else f"a[{XB+(-sl-1)*32+j*4}:{XB+(-sl-1)*32+j*4+3}]")
    a.raw(f".globl {K}\n.p2align 8\n.type {K},@function\n{K}:")
    a(f"""
    s_cmp_ge_u32 s2, 256
    s_cbranch_scc1 {L('end2')}
    s_load_dwordx16 s[16:31], s[0:1], 0
    s_load_dwordx8 s[32:39], s[0:1], 64
    v_lshrrev_b32 v1, 6, v0
    v_lshrrev_b32 v12, 3, v0
    v_and_b32 v0, 63, v0
    v_readfirstlane_b32 s3, v1
    s_and_b32 s4, s2, 15
    s_lshr_b32 s5, s2, 4
    """)
    if stamps:
        for i in range(80,96): a(f"s_mov_b32 s{i}, 0")
        a("s_mov_b32 s96, s3")
    stamp(0)
    if st2: stamp(2)
    XD=20; W=28; WF=44; XF=60; XV=76; ACC=92; U=108
    a(f"""
    v_and_b32 v11, 31, v0
    v_lshlrev_b32 v11, 2, v11
    v_lshrrev_b32 v8, 5, v0
    v_mul_u32_u24 v8, 896, v8
    v_add_u32 v11, v11, v8
    v_and_b32 v13, 7, v0
    v_lshlrev_b32 v5, 13, v12
    v_lshl_add_u32 v5, v13, 4, v5
    s_mov_b32 s62, 1792
    s_mov_b32 s63, 0x20000
    s_mov_b32 s54, {448*8192}
    s_mov_b32 s55, 0x20000
    s_lshr_b32 s12, s2, 6
    s_and_b32 s13, s2, 63
    s_mul_i32 s14, s12, {112*8192}
    s_lshl_b32 s15, s13, 7
    s_add_u32 s14, s14, s15
    v_and_b32 v1, 3, v0
    v_lshlrev_b32 v1, 4, v1
    v_lshrrev_b32 v7, 4, v0
    v_lshl_add_u32 v1, v7, 6, v1
    v_bfe_u32 v15, v0, 3, 1
    v_lshl_add_u32 v15, v15, 9, v1
    v_bfe_u32 v8, v0, 2, 2
    v_lshl_add_u32 v1, v8, 9, v1
    v_add_u32 v2, 0x1000, v1
    s_lshl_b32 s6, s4, 24
    s_lshl_b32 s7, s5, 2
    s_add_u32 s7, s7, s3
    s_lshl_b32 s7, s7, 13
    s_add_u32 s6, s6, s7
    s_mov_b32 s99, s6
    s_mov_b32 s42, 0x10000000
    s_mov_b32 s43, 0x20000
    s_waitcnt lgkmcnt(0)
    s_mov_b32 s60, s16
    s_mov_b32 s61, s17
    s_mov_b32 s52, s22
    s_mov_b32 s53, s23
    """)
    VQ=[]
    def wait_for(tag):
        last=max(i for i,t in enumerate(VQ) if t==tag)
        a(f"s_waitcnt vmcnt({min(len(VQ)-1-last,62)})")
    done=[0]
    paced=[False]
    def room():
        if pace and paced[0]:
            a(f"s_waitcnt vmcnt({pace-1})"); done[0]=len(VQ)-(pace-1); return
        if len(VQ)-done[0]>=56:
            a("s_waitcnt vmcnt(40)"); done[0]=len(VQ)-40
    for i in range(7):
        a(f"buffer_load_dword v{XD+i}, v11, s[60:63], 0 offen offset:{i*128}"); VQ.append('x')
    def unit_loads(R,vo,srd,so,stride,tag):
        for i in range(4):
            if i==3: a(f"s_cmp_ge_u32 s3, 2\ns_cselect_b32 {so}, 0x7fff0000, {so}")
            room()
            a(f"buffer_load_dwordx4 v[{R+4*i}:{R+4*i+3}], v{vo}, {srd}, {so} offen nt"); VQ.append(f"{tag}{i}")
            if i<3: a(f"s_add_u32 {so}, {so}, {32*stride}")
    unit_loads(W,5,"s[52:55]","s14",8192,'wq')
    if warm:
        a(f"""
        s_getpc_b64 s[44:45]
        """)
        a.label(L('pc'))
        a(f"""
        s_mov_b32 s46, {L('end2')}-{L('pc')}
        s_mov_b32 s47, 0x20000
        v_lshlrev_b32 v6, 4, v0
        s_lshl_b32 s15, s3, 12
        """)
        for i in range(4):
            a(f"buffer_load_dwordx4 a[{176+4*i}:{179+4*i}], v6, s[44:47], s15 offen offset:{1024*i}"); VQ.append('w')
    a("s_mov_b32 s40, s18\ns_mov_b32 s41, s19")
    if sbar: a("s_barrier")
    def ld(sl,j,so="s14"):
        kk,h=j>>1,j&1
        fl=vf if (so=="s14" and vf is not None) else kf
        if bp:
            assert sorted(bp)==list(range(13,24))
            if j==0:
                keep=0xffffffff
                sh={}
                for i,p_ in enumerate(bp):
                    if p_!=13+i:
                        keep&=~(1<<(13+i)); sh.setdefault(p_-(13+i),0); sh[p_-(13+i)]|=1<<(13+i)
                a(f"s_and_b32 s100, {so}, {keep}")
                for d,m in sh.items():
                    a(f"s_and_b32 s101, {so}, {m}")
                    a(f"s_lshl_b32 s101, s101, {d}" if d>0 else f"s_lshr_b32 s101, s101, {-d}")
                    a("s_or_b32 s100, s100, s101")
            so="s100"
        if sp:
            lo,hi,n=sp; m=((1<<n)-1)<<lo
            if j==0: a(f"""
            s_lshr_b32 s100, {so}, {hi-lo}
            s_xor_b32 s100, s100, {so}
            s_and_b32 s100, s100, {m}
            s_lshl_b32 s101, s100, {hi-lo}
            s_or_b32 s100, s100, s101
            s_xor_b32 s100, s100, {so}
            """)
            so="s100"
        if ip:
            r,sh,mk=ip
            if j==0:
                a(f"""
                s_bfe_u32 s100, {so}, {(5<<16)|19}
                s_lshl_b32 s101, s100, {r}
                s_lshr_b32 s100, s100, {5-r}
                s_or_b32 s100, s100, s101
                s_and_b32 s100, s100, 31
                s_lshl_b32 s100, s100, 19
                s_and_b32 s101, {so}, {0xffffffff & ~(31<<19)}
                s_or_b32 s100, s100, s101
                """)
                if mk: a(f"s_lshr_b32 s101, {so}, {sh}\ns_and_b32 s101, s101, {mk}\ns_xor_b32 s100, s100, s101")
            so="s100"
        if xp:
            n=xp; lowm=(1<<19)-1; mid=((1<<(28-n-19))-1)<<19
            if j==0: a(f"""
            s_and_b32 s100, {so}, {mid}
            s_lshl_b32 s100, s100, {n}
            s_lshr_b32 s101, {so}, {28-n-19}
            s_and_b32 s101, s101, {((1<<n)-1)<<19}
            s_or_b32 s100, s100, s101
            s_and_b32 s101, {so}, {lowm}
            s_or_b32 s100, s100, s101
            """)
            so="s100"
        if perm:
            n=perm; smask=0xf<<15; imask=((1<<n)-1)<<15; keep=0xffffffff & ~(((1<<(4+n))-1)<<15)
            if j==0: a(f"""
            s_and_b32 s100, {so}, {smask}
            s_lshl_b32 s100, s100, {n}
            s_lshr_b32 s101, {so}, 4
            s_and_b32 s101, s101, {imask}
            s_or_b32 s100, s100, s101
            s_and_b32 s101, {so}, {keep}
            s_or_b32 s100, s100, s101
            """)
            so="s100"
        if swz:
            sh,mk=swz
            if j==0: a(f"s_lshr_b32 s100, {so}, {sh}\ns_and_b32 s100, s100, {mk}\ns_xor_b32 s100, s100, {so}")
            so="s100"
        a(f"buffer_load_dwordx4 {Rr(sl,j)}, v{PO[kk>>1]}, s[40:43], {so} offen offset:{(kk&1)*2048+h*256}{fl}")
    order=list(range(NP))+[-(x+1) for x in range(NX)]+list(range(NP,NB))
    FL=[(sl,j) for sl in order for j in range(8)]
    fpos=[0]
    def emit_fill(n):
        for _ in range(n):
            if fpos[0]>=len(FL): return
            sl,j=FL[fpos[0]]; fpos[0]+=1
            room()
            ld(sl,j,"s6"); VQ.append(f"f{sl}")
            if j==7: a("s_add_u32 s6, s6, 0x80000")
    emit_fill(sched[0])
    a(f"""
    s_add_u32 s76, s38, {EPO}
    s_addc_u32 s77, s39, 0
    s_load_dword s97, s[76:77], 0
    v_and_b32 v10, 15, v0
    v_lshlrev_b32 v10, 4, v10
    v_lshl_add_u32 v3, v7, 9, v10
    v_add_u32 v4, 0x1000, v3
    v_mul_u32_u24 v9, 3584, v12
    v_lshl_add_u32 v9, v13, 4, v9
    s_mov_b32 s58, {448*3584}
    s_mov_b32 s59, 0x20000
    s_and_b32 s71, s2, 3
    s_lshr_b32 s72, s2, 3
    s_mul_i32 s15, s71, {112*3584}
    s_lshl_b32 s73, s72, 7
    s_add_u32 s15, s15, s73
    s_cmp_ge_u32 s2, 224
    s_cselect_b32 s58, 0, s58
    s_bitcmp1_b32 s2, 2
    s_cselect_b32 s56, s30, s28
    s_cselect_b32 s57, s31, s29
    s_mov_b32 s48, s38
    s_mov_b32 s49, s39
    s_mov_b32 s50, {WSB}
    s_mov_b32 s51, 0x20000
    s_add_u32 s7, s7, {CNTO}
    s_add_u32 s64, s38, s7
    s_addc_u32 s65, s39, 0
    s_mov_b32 s66, 0
    s_mov_b32 s67, 0x20000
    s_lshl_b32 s68, s4, 4
    s_add_u32 s68, s68, s5
    s_and_b32 s69, s68, 127
    s_lshr_b32 s70, s68, 7
    s_lshl_b32 s68, s68, 13
    """)
    wait_for('x')
    if st2: stamp(3)
    emit_fill(sched[1])
    layernorm(a,XD,XF,5,6,8,11)
    for i in range(7): a(f"v_cvt_pk_bf16_f32 v{XD+i}, v{XF+2*i}, v{XF+2*i+1}")
    for i in range(7):
        a(f"v_lshlrev_b32 v{XF+2*i}, 16, v{XD+i}")
        a(f"v_and_b32 v{XF+2*i+1}, 0xffff0000, v{XD+i}")
    a("v_lshlrev_b32 v11, 1, v11")
    for i in range(7): a(f"ds_write_b64 v11, v[{XF+2*i}:{XF+2*i+1}] offset:{XN+i*256}")
    a(f"""
    v_lshlrev_b32 v12, 2, v12
    s_mul_i32 s7, s12, 448
    v_add_u32 v5, s7, v12
    s_mul_i32 s7, s71, 448
    v_add_u32 v6, s7, v12
    s_lshl_b32 s7, s3, 9
    v_bfe_u32 v8, v0, 4, 1
    v_lshlrev_b32 v14, 8, v8
    v_lshl_add_u32 v14, v13, 5, v14
    v_lshrrev_b32 v8, 5, v0
    v_lshl_add_u32 v14, v8, 4, v14
    v_add_u32 v14, s7, v14
    s_waitcnt lgkmcnt(0)
    """)
    for u,va in ((0,5),(1,6)):
        for b in range(2):
            for i in range(4): a(f"ds_read_b32 v{XV+u*8+b*4+i}, v{va} offset:{XN+b*1792+i*128}")
    emit_fill(sched[2])
    a("s_add_u32 s97, s97, 1\ns_waitcnt lgkmcnt(0)")
    def unit(R,xv,tag,red,mid=0):
        for i in range(4):
            if i==3: a(f"s_cmp_ge_u32 s3, 2\ns_cbranch_scc1 {L('u3'+tag)}")
            wait_for(f"{tag}{i}")
            for d in range(4):
                a(f"v_lshlrev_b32 v{U+2*d}, 16, v{R+4*i+d}")
                a(f"v_and_b32 v{U+2*d+1}, 0xffff0000, v{R+4*i+d}")
            for b in range(2):
                for e in range(8):
                    op="v_mul_f32" if i==0 else "v_fmac_f32"
                    a(f"{op} v{ACC+b*8+e}, v{xv+b*4+i}, v{U+e}")
        a.label(L('u3'+tag))
        for e in range(8): a(f"v_permlane16_swap_b32 v{ACC+e}, v{ACC+8+e}")
        for e in range(8): a(f"v_add_f32 v{ACC+e}, v{ACC+e}, v{ACC+8+e}")
        for e in range(4): a(f"v_permlane32_swap_b32 v{ACC+e}, v{ACC+4+e}")
        for e in range(4): a(f"v_add_f32 v{ACC+e}, v{ACC+e}, v{ACC+4+e}")
        for e in range(4): a(f"v_add_f32_dpp v{ACC+e}, v{ACC+e}, v{ACC+e} row_ror:8 {DPPT}")
        a(f"ds_write_b128 v14, v[{ACC}:{ACC+3}] offset:{red}")
        emit_fill(mid)
    def gather4(red):
        a("v_lshlrev_b32 v5, 3, v0")
        for w in range(4): a(f"ds_read_b64 v[{U+2*w}:{U+2*w+1}], v5 offset:{red+w*512}")
        a(f"""
        s_waitcnt lgkmcnt(0)
        v_add_f32 v{U}, v{U}, v{U+2}
        v_add_f32 v{U+1}, v{U+1}, v{U+3}
        v_add_f32 v{U+4}, v{U+4}, v{U+6}
        v_add_f32 v{U+5}, v{U+5}, v{U+7}
        """)
    if st2: stamp(4)
    unit(W,XV,'wq',RED,sched[3])
    if st2: stamp(5)
    a(f"""
    v_mov_b32 v{U+9}, s97
    v_mov_b32 v{U+11}, s97
    v_lshrrev_b32 v6, 5, v0
    v_lshlrev_b32 v6, 15, v6
    v_and_b32 v5, 31, v0
    v_lshl_add_u32 v6, v5, 4, v6
    s_lshl_b32 s7, s12, 16
    s_lshl_b32 s13, s13, 9
    s_add_u32 s7, s7, s13
    s_add_u32 s7, s7, {QOFF}
    s_waitcnt lgkmcnt(0)
    s_barrier
    s_cmp_lg_u32 s3, 0
    s_cbranch_scc1 {L('pubwait')}
    """)
    gather4(RED)
    a(f"""
    v_add_f32 v{U+8}, v{U}, v{U+4}
    v_add_f32 v{U+10}, v{U+1}, v{U+5}
    buffer_store_dwordx4 v[{U+8}:{U+11}], v6, s[48:51], s7 offen sc1
    """)
    a.label(L('pubwait'))
    if sbar: a("s_barrier")
    if st2: stamp(6)
    paced[0]=True
    unit_loads(WF,9,"s[56:59]","s15",3584,'wf')
    a(f"""
    s_lshl_b32 s12, s4, 12
    s_lshl_b32 s13, s3, 10
    s_add_u32 s12, s12, s13
    s_add_u32 s12, s12, {QOFF}
    s_add_u32 s13, s12, 0x10000
    s_add_u32 s14, s12, 0x20000
    s_add_u32 s15, s12, 0x30000
    v_lshlrev_b32 v9, 4, v0
    """)
    def qload(track=True):
        for p in range(4):
            if track: room()
            a(f"buffer_load_dwordx4 v[{W+4*p}:{W+4*p+3}], v9, s[48:51], s{12+p} offen sc1")
            if track: VQ.append('qa')
    emit_fill(pollpos-fpos[0])
    qload()
    emit_fill(999)
    unit(WF,XV+8,'wf',RED+2048)
    a(f"""
    v_and_b32 v7, 1, v0
    v_cmp_eq_u32 vcc, 1, v7
    v_mov_b32 v8, 0xffff
    v_mov_b32 v11, 0xffff0000
    v_cndmask_b32 v8, v8, v11, vcc
    v_bfe_u32 v7, v0, 1, 2
    """)
    for r in range(4):
        a(f"v_cmp_eq_u32 vcc, {r}, v7\nv_cndmask_b32 v{MASK+r}, 0, v8, vcc")
    a(f"""
    v_lshrrev_b32 v7, 2, v0
    v_xor_b32 v7, v7, v0
    v_and_b32 v7, 8, v7
    v_cmp_ne_u32 s[8:9], 0, v7
    s_mov_b32 s10, {f32(CEXP)}
    s_mov_b32 s11, 0
    s_mov_b32 s98, {S2}
    s_mov_b32 s73, 0
    s_lshl_b32 s7, s3, 8
    v_lshlrev_b32 v13, 2, v0
    v_add_u32 v13, s7, v13
    s_mov_b32 s44, 0x01010101
    s_mov_b32 s45, 0x01010101
    """)
    wait_for('qa')
    a.flush()
    a.label(L('qchk'))
    a(f"v_xor_b32 v7, s97, v{W+1}\nv_xor_b32 v8, s97, v{W+3}")
    for i in range(5,16,4):
        a(f"v_xor_b32 v11, s97, v{W+i}\nv_xor_b32 v12, s97, v{W+i+2}\nv_or3_b32 v7, v7, v11, v12")
    a(f"""
    v_or_b32 v7, v7, v8
    v_cmp_ne_u32 vcc, 0, v7
    s_cbranch_vccz {L('qok')}
    s_add_u32 s73, s73, 1
    s_cmp_ge_u32 s73, {spin_max}
    s_cbranch_scc1 {L('qok')}
    """)
    qload(False)
    a(f"s_waitcnt vmcnt(0)\ns_branch {L('qchk')}")
    a.label(L('qok'))
    a(f"""
    v_add_f32 v{W}, v{W}, v{W+4}
    v_add_f32 v{W+2}, v{W+2}, v{W+6}
    v_add_f32 v{W+8}, v{W+8}, v{W+12}
    v_add_f32 v{W+10}, v{W+10}, v{W+14}
    v_add_f32 v{W}, v{W}, v{W+8}
    v_add_f32 v{W+2}, v{W+2}, v{W+10}
    v_cvt_pk_bf16_f32 v7, v{W}, v{W+2}
    ds_write_b32 v13, v7 offset:{QL}
    s_waitcnt lgkmcnt(0)
    s_barrier
    ds_read_b128 v[{Q}:{Q+3}], v15 offset:{QL}
    ds_read_b128 v[{Q+4}:{Q+7}], v15 offset:{QL+256}
    v_lshrrev_b32 v15, 3, v0
    v_lshlrev_b32 v15, 3, v15
    s_lshl_b32 s7, s3, 11
    v_add_u32 v14, s7, v15
    s_waitcnt lgkmcnt(0)
    """)
    stamp(1)
    if st2:
        stamp_real=stamp
        def stamp(i):
            if i==7: stamp_real(7)
    def kbody(sl,ring=True,waits=True,tile=None):
        for j in range(8):
            kk,h=j>>1,j&1; d=DS+kk*4
            if waits: a(f"s_waitcnt vmcnt({WN})")
            c="0" if h==0 else f"v[{d}:{d+3}]"
            a(f"v_mfma_f32_16x16x32_bf16 v[{d}:{d+3}], {Rr(sl,j)}, v[{Q+h*4}:{Q+h*4+3}], {c}")
            if ring: ld(sl,j,"s6")
        for kk in range(4):
            d=DS+kk*4; s=S+kk
            a(f"v_mov_b32_dpp v{s}, v{d} quad_perm:[0,0,0,0] {DPPT}")
            for r in range(1,4):
                a(f"v_add_f32_dpp v{s}, v{d+r}, v{s} quad_perm:[{r},{r},{r},{r}] {DPPT}")
        a(f"""
        v_cvt_pk_bf16_f32 v{A[0]}, v{S}, v{S+1}
        v_cvt_pk_bf16_f32 v{A[0]+1}, v{S+2}, v{S+3}
        s_mov_b64 exec, s[44:45]
        ds_write_b64 v14, v[{A[0]}:{A[0]+1}] offset:{SCL+(tile or 0)*64}
        s_mov_b64 exec, -1
        """)
        if tile is None: a("v_add_u32 v14, 64, v14")
        if ring: a("s_add_u32 s6, s6, 0x80000\ns_add_u32 s11, s11, 1")
    qi=max(i for i,t in enumerate(VQ) if t=='qa')
    def pwait(sl):
        last=max(i for i,t in enumerate(VQ) if t==f"f{sl}")
        if last>qi: wait_for(f"f{sl}")
    if not ilv:
        for sl in range(NP):
            pwait(sl); kbody(sl,True,False); VQ.extend(['r']*8)
        for x in range(NX):
            pwait(-(x+1)); kbody(-(x+1),False,False)
    else:
        assert NB==1 and NP==1
        pwait(0); kbody(0,True,False,tile=0); VQ.extend(['r']*8)
        nr=1
        for x in range(NX):
            pwait(-(x+1)); kbody(-(x+1),False,False,tile=1+x)
            if (x+1)%ilv==0 and x+1<NX and all(max(i for i,t in enumerate(VQ) if t==f"f{-(y+1)}")<qi or True for y in range(NX)):
                kbody(0,True,True,tile=NX+nr); VQ.extend(['r']*8); nr+=1
                qi=len(VQ)
        a(f"v_add_u32 v14, {(NX+nr)*64}, v14")
        assert nr<=S2
    a(f"s_cmp_lg_u32 s3, 0\ns_cbranch_scc1 {L('ksubP')}")
    gather4(RED+2048)
    a(f"""
    v_add_f32 v{U+8}, v{U}, v{U+4}
    v_add_f32 v{U+9}, v{U+1}, v{U+5}
    v_lshrrev_b32 v7, 5, v0
    v_mul_u32_u24 v7, 7168, v7
    v_and_b32 v8, 31, v0
    v_lshl_add_u32 v7, v8, 3, v7
    s_lshl_b32 s7, s71, 1
    s_bfe_u32 s73, s2, 0x10002
    s_add_u32 s7, s7, s73
    s_mul_i32 s7, s7, 14336
    s_lshl_b32 s73, s72, 8
    s_add_u32 s7, s7, s73
    s_add_u32 s7, s7, {GU}
    s_cmp_ge_u32 s2, 224
    s_cselect_b32 s7, 0x7fff0000, s7
    v_mov_b32 v124, -1
    v_mov_b32 v125, -1
    v_mov_b32 v126, -1
    v_mov_b32 v127, -1
    v_mov_b32 v123, 0
    v_add_u32 v11, 0x1000, v9
    buffer_store_dwordx2 v[{U+8}:{U+9}], v7, s[48:51], s7 offen sc1
    """)
    for i in range(0 if noclr else 7):
        a(f"buffer_store_dwordx4 v[124:127], v{9 if i<4 else 11}, s[48:51], s68 offen offset:{(i&3)*1024} sc1")
    a(f"""
    s_add_u32 s7, s68, {CNTO}
    s_mov_b64 exec, 1
    buffer_store_dword v123, off, s[48:51], s7 sc1
    s_mov_b64 exec, -1
    s_branch {L('ksubP')}
    """)
    a.label(L('kloop'))
    a(f"s_cmp_eq_u32 s11, s98\ns_cbranch_scc1 {L('ksvc')}")
    a.label(L('kloop2'))
    for nb in range(NB):
        if nb==NP: a.label(L('ksubP'))
        kbody(nb)
    if NP==NB: a.label(L('ksubP'))
    a(f"s_cmp_lt_u32 s11, {NK}\ns_cbranch_scc1 {L('kloop')}")
    stamp(5)
    a(f"""
    s_mov_b32 s11, 0
    s_mov_b32 s98, {S3}
    v_mov_b32 v{vM}, 0xff7fffff
    v_mov_b32 v{vL}, 0
    s_lshl_b32 s75, s5, 24
    s_lshl_b32 s15, s4, 2
    s_add_u32 s15, s15, s3
    s_lshl_b32 s15, s15, 13
    s_add_u32 s15, s15, s75
    s_lshl_b32 s7, s3, {13+UB}
    s_add_u32 s75, s75, s7
    s_add_u32 s75, s75, {KS*64*8192}
    s_mov_b32 s76, -1
    s_mul_i32 s47, s5, {64*NSH*64}
    s_add_u32 s47, s47, {SCO}
    s_lshl_b32 s7, s3, 11
    s_add_u32 s7, s7, {NSH*64}
    v_add_u32 v14, s7, v15
    """)
    for i in range(8): a(f"v_mov_b32 v{O+i}, 0")
    a.flush()
    a.label(L('vloop'))
    a(f"s_cmp_eq_u32 s11, s98\ns_cbranch_scc1 {L('vsvc')}")
    a.label(L('vloop2'))
    SS=DS+4
    for nb in range(NB):
        sc=SCR+2*nb
        a(f"""
        ds_read_b64 v[{SS}:{SS+1}], v14 offset:{SCL}
        v_add_u32 v14, 64, v14
        s_waitcnt vmcnt({8*NB if early else WN})
        """)
        if pair and nb>0:
            a(f"""
            s_add_u32 s78, s14, 0x2000
            s_cmp_ge_u32 s11, {NSV+KS-NB}
            s_cselect_b32 s14, s78, s6
            """)
        else: a(f"""
        v_readfirstlane_b32 s77, v{TK+nb}
        s_add_u32 s79, s11, {NB}
        s_lshl_b32 s78, s77, {15+UB}
        s_add_u32 s78, s78, s75
        s_cmp_ge_u32 s11, {NSV+KS-NB}
        s_cselect_b32 s14, s78, s6
        s_cselect_b32 s77, s77, 0
        s_cselect_b32 s78, {POOL}, 1
        s_cmp_ge_u32 s77, s78
        s_cselect_b32 s42, 0, s42
        s_cselect_b32 s66, 0, s66
        s_cselect_b32 s79, s79, -1
        s_min_u32 s76, s76, s79
        """)
        a(f"""
        s_waitcnt lgkmcnt(0)
        s_cmp_lt_u32 s11, {NSV}
        s_cbranch_scc1 {L(f'vs{nb}')}
        """)
        a(f"""
        v_mov_b32 v{SS}, v{sc}
        v_mov_b32 v{SS+1}, v{sc+1}
        """)
        a.label(L(f'vs{nb}'))
        a(f"""
        s_bfe_u32 s7, s14, 0x6000d
        s_mul_i32 s7, s7, {NSH*64}
        s_bfe_u32 s46, s14, 0x50013
        s_lshl_b32 s46, s46, 6
        s_add_u32 s7, s7, s46
        s_add_u32 s7, s7, s47
        s_cmp_ge_u32 s11, {NSV-NB}
        s_cselect_b32 s7, s7, 0x7fff0000
        s_cmp_eq_u32 s42, 0
        s_cselect_b32 s7, 0x7fff0000, s7
        """)
        if not (pair and nb>0): a(f"""
        v_mov_b32 v{TK+nb}, 1
        s_mov_b64 exec, 1
        buffer_atomic_add v{TK+nb}, off, s[64:67], 0 sc0
        s_mov_b64 exec, -1
        """)
        a(f"""
        buffer_load_dwordx2 v[{sc}:{sc+1}], v15, s[48:51], s7 offen sc1
        v_lshlrev_b32 v{S}, 16, v{SS}
        v_and_b32 v{S+1}, 0xffff0000, v{SS}
        v_lshlrev_b32 v{S+2}, 16, v{SS+1}
        v_and_b32 v{S+3}, 0xffff0000, v{SS+1}
        v_max3_f32 v7, v{S}, v{S+1}, v{S+2}
        v_max3_f32 v7, v7, v{S+3}, v{vM}
        v_mov_b32 v8, v7
        v_permlane16_swap_b32 v8, v7
        v_max_f32 v7, v7, v8
        v_mov_b32 v8, v7
        v_permlane32_swap_b32 v8, v7
        v_max_f32 v7, v7, v8
        v_sub_f32 v8, v{vM}, v7
        v_mul_f32 v8, s10, v8
        v_exp_f32 v8, v8
        v_mov_b32 v{vM}, v7
        v_mul_f32 v9, s10, v7
        v_mov_b32_dpp v10, v8 row_ror:8 {DPPT}
        v_mul_f32 v{vL}, v{vL}, v8
        v_cndmask_b32 v10, v8, v10, s[8:9]
        """)
        for i in range(8): a(f"v_mul_f32 v{O+i}, v{O+i}, v10")
        for kk in range(4): a(f"v_fma_f32 v{S+kk}, v{S+kk}, s10, -v9")
        for kk in range(4): a(f"v_exp_f32 v{S+kk}, v{S+kk}")
        for kk in range(4):
            Ar=A[kk&1]
            a(f"v_cvt_pk_bf16_f32 v11, v{S+kk}, v{S+kk}")
            a(f"v_add_f32 v{vL}, v{vL}, v{S+kk}")
            for r in range(4): a(f"v_and_b32 v{Ar+r}, v11, v{MASK+r}")
            for h in range(2):
                j=kk*2+h; o=O+h*4
                if j or early: a(f"s_waitcnt vmcnt({WV})")
                a(f"v_mfma_f32_16x16x32_bf16 v[{o}:{o+3}], v[{Ar}:{Ar+3}], {Rr(nb,j)}, v[{o}:{o+3}]")
                ld(nb,j)
        a(f"""
        s_add_u32 s6, s6, 0x80000
        s_add_u32 s11, s11, 1
        s_cmp_eq_u32 s11, {NSV-NB}
        s_cselect_b32 s6, s15, s6
        s_cmp_eq_u32 s11, s76
        """)
        if nb<NB-1: a(f"s_cbranch_scc1 {L('sdone')}")
        else: a(f"s_cbranch_scc0 {L('vloop')}")
    a(f"s_branch {L('sdone')}")
    a.label(L('ksvc'))
    a(f"""
    s_cmp_eq_u32 s11, {SRD}
    s_cbranch_scc1 {L('rdy')}
    s_cmp_eq_u32 s11, {SKV}
    s_cbranch_scc1 {L('kv')}
    s_cmp_eq_u32 s11, {S2}
    s_cbranch_scc1 {L('svc2b')}
    s_mov_b32 s98, {SRD}
    v_lshlrev_b32 v7, 4, v0
    s_lshl_b32 s7, s3, 11
    v_add_u32 v8, s7, v7
    ds_read_b128 v[{GR}:{GR+3}], v8 offset:{SCL}
    ds_read_b128 v[{GR+4}:{GR+7}], v8 offset:{SCL+1024}
    s_lshl_b32 s7, s4, 4
    s_add_u32 s7, s7, s5
    s_lshl_b32 s7, s7, 2
    s_add_u32 s7, s7, s3
    s_mul_i32 s7, s7, {NSH*64}
    s_add_u32 s7, s7, {SCO}
    v_cmp_gt_u32 vcc, {min(NSH*4,64)}, v0
    v_cmp_gt_u32 s[46:47], {max(NSH*4-64,0)}, v0
    s_waitcnt lgkmcnt(0)
    s_mov_b64 exec, vcc
    buffer_store_dwordx4 v[{GR}:{GR+3}], v7, s[48:51], s7 offen sc1
    """)
    if NSH>16: a(f"s_mov_b64 exec, s[46:47]\nbuffer_store_dwordx4 v[{GR+4}:{GR+7}], v7, s[48:51], s7 offen offset:1024 sc1")
    a(f"s_mov_b64 exec, -1\ns_branch {L('kloop2')}")
    a.label(L('svc2b'))
    a(f"""
    s_mov_b32 s98, {SPB}
    s_mov_b32 s52, s24
    s_mov_b32 s53, s25
    s_mov_b32 s54, {4096*896}
    s_mov_b32 s56, s32
    s_mov_b32 s57, s33
    s_mov_b32 s58, {1792*896}
    v_lshrrev_b32 v7, 4, v0
    v_and_b32 v10, 15, v0
    v_lshlrev_b32 v10, 4, v10
    v_mul_u32_u24 v11, {8*896}, v7
    v_add_u32 v11, v11, v10
    s_mul_i32 s71, s69, {32*896}
    s_lshl_b32 s72, s3, 8
    s_add_u32 s71, s71, s72
    s_add_u32 s73, s71, {4*896}
    """)
    for kk in range(8):
        r=WO+kk*4
        a(f"buffer_load_dwordx4 a[{r}:{r+3}], v11, s[52:55], s{71 if kk<4 else 73} offen offset:{(kk&3)*896} nt")
    a(f"""
    v_mul_u32_u24 v11, {4*896}, v7
    v_add_u32 v11, v11, v10
    s_mul_i32 s71, s69, {14*896}
    s_add_u32 s71, s71, s72
    """)
    for kk in range(4):
        r=W2+kk*4
        a(f"buffer_load_dwordx4 a[{r}:{r+3}], v11, s[56:59], s71 offen offset:{kk*896} nt")
    a(f"""
    s_lshl_b32 s74, s69, 3
    s_mul_i32 s72, s70, 896
    s_add_u32 s74, s74, s72
    buffer_load_dwordx2 v[{XR}:{XR+1}], off, s[60:63], s74
    s_mov_b32 s73, 0
    s_branch {L('kloop2')}
    """)
    a.label(L('rdy'))
    a(f"""
    s_mov_b32 s98, {SKV}
    v_mov_b32 v7, s97
    s_lshl_b32 s7, s2, 2
    s_add_u32 s7, s7, s3
    s_lshl_b32 s7, s7, 2
    s_add_u32 s7, s7, {RDY}
    s_waitcnt vmcnt({WN})
    s_mov_b64 exec, 1
    buffer_store_dword v7, off, s[48:51], s7 sc1
    s_mov_b64 exec, -1
    """)
    if SRD!=SKV: a(f"s_branch {L('kloop2')}")
    a.label(L('kv'))
    a(f"""
    s_mov_b32 s98, -1
    s_mov_b32 s40, s20
    s_mov_b32 s41, s21
    s_add_u32 s6, s99, {NSH*0x80000}
    v_mov_b32 v{PO[0]}, v{VO[0]}
    v_mov_b32 v{PO[1]}, v{VO[1]}
    s_branch {L('kloop2')}
    """)
    a.label(L('vsvc'))
    a(f"""
    s_cmp_eq_u32 s11, {S4}
    s_cbranch_scc1 {L('svc4')}
    s_cmp_eq_u32 s11, {S5}
    s_cbranch_scc1 {L('switch')}
    s_mov_b32 s98, {S4}
    v_lshlrev_b32 v13, 4, v0
    s_mov_b32 s7, {RDY}
    """)
    def rload():
        for i in range(4): a(f"buffer_load_dwordx4 v[{RD+4*i}:{RD+4*i+3}], v13, s[48:51], s7 offen offset:{1024*i} sc1")
    rload()
    a(f"s_branch {L('vloop2')}")
    a.label(L('svc4'))
    a(f"""
    s_mov_b32 s98, {S5}
    s_mov_b32 s71, 0
    s_mov_b32 s7, {RDY}
    s_waitcnt vmcnt({WN})
    """)
    a.flush()
    a.label(L('rchk'))
    a(f"""
    v_min3_u32 v7, v{RD}, v{RD+1}, v{RD+2}
    v_max3_u32 v8, v{RD}, v{RD+1}, v{RD+2}
    """)
    for i in range(3,15,2): a(f"v_min3_u32 v7, v7, v{RD+i}, v{RD+i+1}\nv_max3_u32 v8, v8, v{RD+i}, v{RD+i+1}")
    a(f"""
    v_min_u32 v7, v7, v{RD+15}
    v_max_u32 v8, v8, v{RD+15}
    v_xor_b32 v7, s97, v7
    v_xor_b32 v8, s97, v8
    v_or_b32 v7, v7, v8
    v_cmp_ne_u32 vcc, 0, v7
    s_cbranch_vccz {L('rok')}
    s_add_u32 s71, s71, 1
    s_cmp_ge_u32 s71, {spin_max}
    s_cbranch_scc1 {L('rok')}
    s_sleep 16
    """)
    rload()
    a(f"s_waitcnt vmcnt(0)\ns_branch {L('rchk')}")
    a.label(L('rok'))
    if KS==0: a("s_mov_b32 s66, 4")
    a(f"""
    v_lshrrev_b32 v7, 4, v0
    v_lshlrev_b32 v11, 4, v7
    s_mul_i32 s71, s69, 56
    s_mul_i32 s72, s70, 7168
    s_add_u32 s71, s71, s72
    s_add_u32 s71, s71, {GU}
    """)
    for pm in range(8):
        a(f"buffer_load_dwordx4 v[{GR+4*pm}:{GR+4*pm+3}], v11, s[48:51], s71 offen sc1")
        if pm<7: a("s_add_u32 s71, s71, 14336")
    a(f"""
    s_or_b32 s7, s2, s3
    s_cmp_lg_u32 s7, 0
    s_cbranch_scc1 {L('vloop2')}
    v_mov_b32 v7, s97
    s_mov_b32 s7, {EPO}
    s_mov_b64 exec, 1
    buffer_store_dword v7, off, s[48:51], s7 sc1
    s_mov_b64 exec, -1
    s_branch {L('vloop2')}
    """)
    a.label(L('switch'))
    a(f"s_mov_b32 s98, -1\ns_waitcnt vmcnt({WN})")
    if touch:
        a("s_mov_b32 s60, s34\ns_mov_b32 s61, s35\nbuffer_load_dword a180, off, s[60:63], 0")
    if warm&2:
        a("s_getpc_b64 s[52:53]")
        a.label(L('pc2'))
        a(f"""
        s_mov_b32 s54, {L('end2')}-{L('pc2')}
        v_lshlrev_b32 v7, 4, v0
        s_lshl_b32 s7, s3, 10
        buffer_load_dwordx4 a[176:179], v7, s[52:55], s7 offen
        """)
    for i in range(8): a(f"v_mov_b32 v{SV+i}, v{O+i}")
    a(f"v_mov_b32 v{SV+8}, v{vM}\nv_mov_b32 v{SV+9}, v{vL}")
    for i in range(8): a(f"v_mov_b32 v{O+i}, 0")
    a(f"""
    v_mov_b32 v{vM}, 0xff7fffff
    v_mov_b32 v{vL}, 0
    {'s_nop 0' if KS==0 else 's_mov_b32 s66, '+str(4 if dyn else 0)}
    v_mov_b32 v14, v15
    """)
    for m in range(2):
        for q in range(4):
            g=GR+4*m+q
            a(f"v_add_f32 v{g}, v{g}, v{g+8}\nv_add_f32 v{g+16}, v{g+16}, v{g+24}\nv_add_f32 v{g}, v{g}, v{g+16}")
    for q in range(4):
        a(f"""
        v_cvt_pk_bf16_f32 v7, v{GR+q}, v{GR+4+q}
        v_and_b32 v8, 0xffff0000, v7
        v_lshlrev_b32 v7, 16, v7
        v_mul_f32 v9, {f32(-math.log2(math.e))}, v7
        v_exp_f32 v9, v9
        v_add_f32 v9, 1.0, v9
        v_rcp_f32 v9, v9
        v_mul_f32 v9, v9, v7
        v_cvt_pk_bf16_f32 v9, v9, v9
        v_lshlrev_b32 v9, 16, v9
        v_mul_f32 v9, v9, v8
        v_cvt_pk_bf16_f32 v{HC+q}, v9, v9
        """)
    a(f"""
    v_cmp_gt_u32 vcc, 48, v0
    v_cndmask_b32 v{HC+2}, 0, v{HC+2}, vcc
    v_cndmask_b32 v{HC+3}, 0, v{HC+3}, vcc
    """)
    for kk in range(4):
        Ar=A[kk&1]; r=W2+kk*4
        for q in range(4): a(f"v_and_b32 v{Ar+q}, v{HC+kk}, v{MASK+q}")
        c="0" if kk==0 else f"v[{D}:{D+3}]"
        a(f"v_mfma_f32_16x16x32_bf16 v[{D}:{D+3}], v[{Ar}:{Ar+3}], a[{r}:{r+3}], {c}")
    a(f"s_cmp_lg_u32 s11, s76\ns_cbranch_scc1 {L('vloop2')}")
    a.label(L('sdone'))
    a(f"s_cmp_lg_u32 s98, -1\ns_cbranch_scc1 {L('switch')}")
    TAIL(a,L,locals())
    return a.text(), kd(K,256+192,102,256), LDS

def TAIL(a,L,E):
    g=lambda n: E[n]
    vL,vM,SV,O,OP,ML,DS,A,MASK,D,WO,XR,CF=[g(n) for n in "vL vM SV O OP ML DS A MASK D WO XR CF".split()]
    stamp,stamps,skip_tail,poll1,spin_max=[g(n) for n in "stamp stamps skip_tail poll1 spin_max".split()]
    PD,pmask,ps1,ps2=g("PD"),g("pmask"),g("ps1"),g("ps2")
    Q=96
    stamp(2)
    for lr in (vL,SV+9):
        a(f"""
        v_mov_b32 v8, v{lr}
        v_permlane16_swap_b32 v8, v{lr}
        v_add_f32 v{lr}, v{lr}, v8
        v_mov_b32 v8, v{lr}
        v_permlane32_swap_b32 v8, v{lr}
        v_add_f32 v{lr}, v{lr}, v8
        """)
    a(f"""
    v_lshrrev_b32 v7, 5, v0
    v_lshlrev_b32 v7, 10, v7
    v_and_b32 v8, 15, v0
    v_lshl_add_u32 v7, v8, 5, v7
    v_bfe_u32 v8, v0, 4, 1
    v_lshl_add_u32 v7, v8, 4, v7
    s_lshl_b32 s7, s3, 11
    v_add_u32 v7, s7, v7
    ds_write_b128 v7, v[{SV}:{SV+3}] offset:{OP}
    ds_write_b128 v7, v[{SV+4}:{SV+7}] offset:{OP+512}
    ds_write_b128 v7, v[{O}:{O+3}] offset:{OP+8192}
    ds_write_b128 v7, v[{O+4}:{O+7}] offset:{OP+8192+512}
    v_bfe_u32 v8, v0, 3, 1
    v_lshlrev_b32 v8, 5, v8
    s_lshl_b32 s7, s3, 2
    v_add_u32 v8, s7, v8
    ds_write_b32 v8, v{SV+8} offset:{ML}
    ds_write_b32 v8, v{SV+9} offset:{ML+16}
    ds_write_b32 v8, v{vM} offset:{ML+64}
    ds_write_b32 v8, v{vL} offset:{ML+64+16}
    s_lshr_b32 s12, s3, 1
    s_and_b32 s13, s3, 1
    s_lshl_b32 s7, s12, 13
    s_lshl_b32 s14, s13, 10
    s_add_u32 s7, s7, s14
    v_lshlrev_b32 v7, 4, v0
    v_add_u32 v7, s7, v7
    s_lshl_b32 s7, s3, 5
    v_mov_b32 v8, s7
    s_add_u32 s15, s4, 16
    s_cmp_eq_u32 s12, 0
    s_cselect_b32 s14, s4, s5
    s_cselect_b32 s15, s5, s15
    s_lshl_b32 s14, s14, 4
    s_lshl_b32 s13, s13, 3
    s_add_u32 s14, s14, s13
    s_lshl_b32 s14, s14, 13
    s_lshl_b32 s12, s15, 7
    s_add_u32 s12, s12, s14
    s_lshl_b32 s13, s15, 3
    s_add_u32 s13, s13, s14
    s_add_u32 s13, s13, {H1ML}
    v_lshrrev_b32 v9, 3, v0
    v_lshlrev_b32 v9, 13, v9
    v_and_b32 v10, 7, v0
    v_lshl_add_u32 v11, v10, 4, v9
    v_cmp_eq_u32 vcc, 0, v10
    s_waitcnt lgkmcnt(0)
    s_barrier
    """)
    stamp(3)
    if skip_tail: a(f"s_branch {L('end')}")
    a(f"""
    ds_read_b128 v[{Q}:{Q+3}], v8 offset:{ML}
    ds_read_b128 v[{Q+4}:{Q+7}], v8 offset:{ML+16}
    """)
    for w in range(4): a(f"ds_read_b128 v[{DS+4*w}:{DS+4*w+3}], v7 offset:{OP+w*2048}")
    a(f"""
    s_waitcnt lgkmcnt(4)
    v_max3_f32 v12, v{Q}, v{Q+1}, v{Q+2}
    v_max_f32 v12, v12, v{Q+3}
    """)
    for w in range(4): a(f"v_sub_f32 v{Q+w}, v{Q+w}, v12")
    for w in range(4): a(f"v_mul_f32 v{Q+w}, s10, v{Q+w}")
    for w in range(4): a(f"v_exp_f32 v{Q+w}, v{Q+w}")
    a(f"v_mul_f32 v13, v{Q}, v{Q+4}")
    for w in range(1,4): a(f"v_fmac_f32 v13, v{Q+w}, v{Q+4+w}")
    a("s_waitcnt lgkmcnt(0)")
    for e in range(4):
        a(f"v_mul_f32 v{O+e}, v{Q}, v{DS+e}")
        for w in range(1,4): a(f"v_fmac_f32 v{O+e}, v{Q+w}, v{DS+4*w+e}")
    for e in range(4): a(f"v_min_u32 v{O+e}, -2, v{O+e}")
    a(f"""
    v_min_u32 v12, -2, v12
    v_min_u32 v13, -2, v13
    buffer_store_dwordx4 v[{O}:{O+3}], v11, s[48:51], s12 offen sc1
    s_mov_b64 exec, vcc
    buffer_store_dwordx2 v[12:13], v9, s[48:51], s13 offen sc1
    s_mov_b64 exec, -1
    v_lshrrev_b32 v4, 4, v0
    v_and_b32 v6, 15, v0
    v_lshlrev_b32 v7, 7, v6
    v_lshl_add_u32 v7, v4, 5, v7
    v_lshlrev_b32 v8, 3, v6
    v_add_u32 v8, {H1ML}, v8
    v_bfe_u32 v9, v0, 4, 1
    v_lshl_add_u32 v9, v6, 1, v9
    s_lshl_b32 s7, s3, 5
    v_add_u32 v9, s7, v9
    v_cmp_gt_u32 vcc, 112, v9
    v_cmp_gt_u32 s[72:73], 32, v0
    s_and_b64 s[72:73], s[72:73], vcc
    s_lshl_b32 s7, s70, 7
    v_add_u32 v9, s7, v9
    v_lshlrev_b32 v9, 13, v9
    s_lshl_b32 s75, s69, 4
    s_add_u32 s75, s75, {H2}
    v_lshlrev_b32 v14, 4, v0
    v_add_u32 v14, {H2}, v14
    v_lshlrev_b32 v15, 5, v4
    s_mov_b32 s71, 0
    """)
    PO=DS; PM=Q
    stamp(4)
    if poll1=='one': a(f"s_cmp_lg_u32 s3, 0\ns_cbranch_scc1 {L('p1w')}")
    def p1loads():
        a(f"""
        buffer_load_dwordx4 v[{PO}:{PO+3}], v7, s[48:51], s68 offen sc1
        buffer_load_dwordx4 v[{PO+4}:{PO+7}], v7, s[48:51], s68 offen offset:16 sc1
        buffer_load_dwordx4 v[{PO+8}:{PO+11}], v7, s[48:51], s68 offen offset:2048 sc1
        buffer_load_dwordx4 v[{PO+12}:{PO+15}], v7, s[48:51], s68 offen offset:2064 sc1
        buffer_load_dwordx2 v[{PM}:{PM+1}], v8, s[48:51], s68 offen sc1
        buffer_load_dwordx2 v[{PM+2}:{PM+3}], v8, s[48:51], s68 offen offset:128 sc1
        """)
    for i in range(PD-1):
        p1loads(); a("s_sleep 4")
    a.flush()
    a.label(L('p1'))
    p1loads()
    a(f"""
    s_waitcnt vmcnt({6*(PD-1)})
    v_max3_u32 v12, v{PO}, v{PO+1}, v{PO+2}
    v_max3_u32 v13, v{PO+3}, v{PO+4}, v{PO+5}
    v_max3_u32 v12, v12, v{PO+6}, v{PO+7}
    v_max3_u32 v13, v13, v{PO+8}, v{PO+9}
    v_max3_u32 v12, v12, v{PO+10}, v{PO+11}
    v_max3_u32 v13, v13, v{PO+12}, v{PO+13}
    v_max3_u32 v12, v12, v{PO+14}, v{PO+15}
    v_max3_u32 v13, v13, v{PM}, v{PM+1}
    v_max3_u32 v12, v12, v{PM+2}, v{PM+3}
    v_max_u32 v12, v12, v13
    v_cmp_eq_u32 vcc, -1, v12
    s_add_u32 s71, s71, 1
    s_cmp_ge_u32 s71, {spin_max}
    s_cbranch_scc1 {L('p1d')}
    """)
    if pmask:
        a(f"s_cbranch_vccz {L('p1d')}\ns_mov_b64 exec, vcc\n{'s_sleep '+str(ps1) if ps1 else ''}\ns_branch {L('p1')}")
    else: a(f"s_cbranch_vccnz {L('p1')}")
    a.label(L('p1d'))
    if pmask: a("s_mov_b64 exec, -1")
    stamp(5)
    PR=104
    a(f"v_max_f32 v12, v{PM}, v{PM+2}")
    for m in R16: a(f"v_max_f32_dpp v12, v12, v12 {m} {DPPT}")
    a(f"""
    v_sub_f32 v10, v{PM}, v12
    v_sub_f32 v11, v{PM+2}, v12
    v_mul_f32 v10, s10, v10
    v_mul_f32 v11, s10, v11
    v_exp_f32 v10, v10
    v_exp_f32 v11, v11
    v_mul_f32 v13, v10, v{PM+1}
    v_fmac_f32 v13, v11, v{PM+3}
    """)
    for q in range(8): a(f"v_mul_f32 v{PR+q}, v{PO+q}, v10")
    for q in range(8): a(f"v_fmac_f32 v{PR+q}, v{PO+8+q}, v11")
    for m in R16:
        a(f"v_add_f32_dpp v13, v13, v13 {m} {DPPT}")
        for q in range(8): a(f"v_add_f32_dpp v{PR+q}, v{PR+q}, v{PR+q} {m} {DPPT}")
    a("v_rcp_f32 v13, v13")
    for q in range(8): a(f"v_mul_f32 v{PR+q}, v{PR+q}, v13")
    for q in range(8): a(f"v_cvt_pk_bf16_f32 v{PR+q}, v{PR+q}, v{PR+q}")
    if poll1=='one':
        a(f"""
        ds_write_b128 v15, v[{PR}:{PR+3}] offset:{CF}
        ds_write_b128 v15, v[{PR+4}:{PR+7}] offset:{CF+16}
        s_waitcnt lgkmcnt(0)
        """)
        a.label(L('p1w'))
        a(f"""
        s_barrier
        ds_read_b128 v[{PR}:{PR+3}], v15 offset:{CF}
        ds_read_b128 v[{PR+4}:{PR+7}], v15 offset:{CF+16}
        s_waitcnt lgkmcnt(0)
        """)
    for kk in range(8):
        Ar=A[kk&1]; r=WO+kk*4
        for q in range(4): a(f"v_and_b32 v{Ar+q}, v{PR+kk}, v{MASK+q}")
        a(f"v_mfma_f32_16x16x32_bf16 v[{D}:{D+3}], v[{Ar}:{Ar+3}], a[{r}:{r+3}], v[{D}:{D+3}]")
    for q in range(4): a(f"v_min_u32 v{D+q}, -2, v{D+q}")
    a(f"""
    s_mov_b64 exec, s[72:73]
    buffer_store_dwordx4 v[{D}:{D+3}], v9, s[48:51], s75 offen sc1
    s_mov_b64 exec, -1
    """)
    stamp(1)
    a(f"""
    s_cmp_lg_u32 s3, 3
    s_cbranch_scc1 {L('end')}
    s_cmp_ge_u32 s69, 112
    s_cbranch_scc1 {L('end')}
    s_mov_b32 s60, s34
    s_mov_b32 s61, s35
    s_mov_b32 s71, 0
    v_lshlrev_b32 v{O}, 16, v{XR}
    v_and_b32 v{O+1}, 0xffff0000, v{XR}
    v_lshlrev_b32 v{O+2}, 16, v{XR+1}
    v_and_b32 v{O+3}, 0xffff0000, v{XR+1}
    v_cmp_eq_u32 vcc, 1, v4
    v_cndmask_b32 v{O}, v{O}, v{O+1}, vcc
    v_cmp_eq_u32 vcc, 2, v4
    v_cndmask_b32 v{O}, v{O}, v{O+2}, vcc
    v_cmp_eq_u32 vcc, 3, v4
    v_cndmask_b32 v{O}, v{O}, v{O+3}, vcc
    v_lshlrev_b32 v4, 1, v4
    v_cmp_eq_u32 s[72:73], 0, v6
    """)
    P2=112; PL=120
    def p2loads():
        a(f"""
        buffer_load_dwordx4 v[{PL}:{PL+3}], v14, s[48:51], s68 offen sc1
        buffer_load_dwordx4 v[{PL+4}:{PL+7}], v14, s[48:51], s68 offen offset:1024 sc1
        """)
    for i in range(PD-1):
        p2loads(); a("s_sleep 4")
    a.flush()
    a.label(L('p2'))
    p2loads()
    a(f"""
    s_waitcnt vmcnt({2*(PD-1)})
    v_max3_u32 v12, v{PL}, v{PL+1}, v{PL+2}
    v_max3_u32 v13, v{PL+3}, v{PL+4}, v{PL+5}
    v_max3_u32 v12, v12, v{PL+6}, v{PL+7}
    v_max_u32 v12, v12, v13
    v_cmp_eq_u32 vcc, -1, v12
    s_add_u32 s71, s71, 1
    s_cmp_ge_u32 s71, {spin_max}
    s_cbranch_scc1 {L('p2d')}
    """)
    if pmask:
        a(f"s_cbranch_vccz {L('p2d')}\ns_mov_b64 exec, vcc\n{'s_sleep '+str(ps2) if ps2 else ''}\ns_branch {L('p2')}")
    else: a(f"s_cbranch_vccnz {L('p2')}")
    a.label(L('p2d'))
    if pmask: a("s_mov_b64 exec, -1")
    stamp(6)
    for q in range(4): a(f"v_add_f32 v{P2+q}, v{PL+q}, v{PL+4+q}")
    a(f"""
    v_permlane16_swap_b32 v{P2}, v{P2+1}
    v_permlane16_swap_b32 v{P2+2}, v{P2+3}
    v_add_f32 v{P2}, v{P2}, v{P2+1}
    v_add_f32 v{P2+2}, v{P2+2}, v{P2+3}
    v_permlane32_swap_b32 v{P2}, v{P2+2}
    v_add_f32 v{P2}, v{P2}, v{P2+2}
    """)
    for m in R16: a(f"v_add_f32_dpp v{P2}, v{P2}, v{P2} {m} {DPPT}")
    a(f"""
    v_add_f32 v{P2}, v{P2}, v{O}
    v_cvt_pk_bf16_f32 v{P2}, v{P2}, v{P2}
    s_mov_b64 exec, s[72:73]
    buffer_store_short v{P2}, v4, s[60:63], s74 offen
    """)
    a.label(L('end'))
    if stamps:
        a("s_waitcnt vmcnt(0)")
        stamp(7)
        a(f"""
        s_mov_b64 exec, 1
        s_mov_b32 s50, 0x1000000
        s_lshl_b32 s11, s2, 2
        s_add_u32 s11, s11, s96
        s_lshl_b32 s11, s11, 6
        s_add_u32 s11, s11, {STO}
        """)
        for i in range(4):
            for q in range(4): a(f"v_mov_b32 v{4+q}, s{80+4*i+q}")
            a(f"buffer_store_dwordx4 v[4:7], off, s[48:51], s11 offset:{16*i}")
    a.label(L('end2'))
    a("s_endpgm")

def write_main(path, **kw):
    t,kd1,lds=gen_main(**kw)
    s=HDR
    s+=f"; @launch grid=(256,1,1) block=(256,1,1) lds={lds}\n"
    s+='.amdgcn_target "amdgcn-amd-amdhsa--gfx950"\n.text\n'+t+'.section .rodata,"a"\n'+kd1
    open(path,"w").write(s)
if __name__=="__main__":
    write_main("cdna_kernels/"+NAME+".s")
```

```python
import struct, sys, math
from asmlib import Asm
from gen2 import f32, kd, layernorm, R16, DPPT, NAME, HDR
INB=8192; H1ML=4096; H2=4608; CNTO=7168
QOFF=256*INB
GU=QOFF+262144
RDY=GU+16*7168+1024
EPO=RDY+4096
SCO=3<<20
WSB=SCO+(2<<20)
STO=8<<20

def gen_main(K=NAME+"_kernel", NB=1, NX=7, NSV=24, spin_max=1<<17, stamps=False, dyn=True, skip_tail=False,
             kf=' nt', poll1='one', sched=(8,8,8,0), pollpos=48, sbar=True, exp=0, KS0=True, NPo=1, warm=0, st2=False, touch=False, PD=1, pmask=True, ps1=0, ps2=0, noclr=False, ldsz=81920+1024, vf=None, swz=0, perm=0, xp=0, ip=None, sp=None, bp=(13,14,15,16,21,18,17,23,22,19,20), pair=False, WNo=6, early=True, WVo=7, pace=None, ilv=0, outf='', rot=True, d2=0, d1=0, b3=2, b1=0):
    a=Asm(); L=lambda s: f"L_{K[-12:]}_{s}"
    CEXP=math.log2(math.e)/16.0
    OP=0; ML=16384; XN=16640; RED=XN+3584; CF=RED+4096; QL=CF+256; SCL=QL+1024; LDS=ldsz
    NK=32-NX
    NP=max(NB//2,1) if NPo is None else NPo
    assert NK%NB==0 and NSV%NB==0
    KS=(0 if KS0 else 2*NB) if dyn else 32-NSV
    POOL=((32-NSV-KS)*64)//4//(NB if pair else 1)
    UB={1:0,2:1,4:2}[NB] if pair else 0
    NSH=32-NSV
    S2=NB if not ilv else 4; SPB=max(S2+NB,((NSH-NX+NB-1)//NB)*NB,2*NB); SKV=NK-NB
    S3,S4,S5=(NSV-3*NB, NSV-2*NB, NSV) if KS==0 else (NSV-2*NB, NSV-NB, NSV)
    SRD=SPB+2*NB
    assert S2<SPB and SRD<=SKV and S3>=0
    WN=8*NB-1 if WNo is None else WNo
    assert WN<=8*NB-1
    WV=WN if WVo is None else WVo
    assert WV<=8*NB+(0 if pair else 1)
    def stamp(i):
        if stamps: a(f"s_memrealtime s[{80+2*i}:{81+2*i}]\ns_waitcnt lgkmcnt(0)")
    PO=[1,2]; VO=[3,4]; vM=5; vL=6
    MASK=16; Q=20; TK=20; O=28; DS=36; HC=36; A=[52,56]; S=60
    SCR=64; SV=80; XR=90; D=92; RD=96; GR=96; RING=128
    XB=0; WO=128; WOb=160; W2=192; W2b=208
    D2=80; CN=SCL+8192
    assert RING+NB*32+max(NX-4,0)*32<=256
    def Rr(sl,j):
        if sl<-4: sl=NB+(-sl-5)
        return (f"v[{RING+sl*32+j*4}:{RING+sl*32+j*4+3}]" if sl>=0 else f"a[{XB+(-sl-1)*32+j*4}:{XB+(-sl-1)*32+j*4+3}]")
    a.raw(f".globl {K}\n.p2align 8\n.type {K},@function\n{K}:")
    a(f"""
    s_cmp_ge_u32 s2, 256
    s_cbranch_scc1 {L('end2')}
    s_load_dwordx16 s[16:31], s[0:1], 0
    s_load_dwordx8 s[32:39], s[0:1], 64
    v_lshrrev_b32 v1, 6, v0
    v_lshrrev_b32 v12, 3, v0
    v_and_b32 v0, 63, v0
    v_readfirstlane_b32 s3, v1
    s_and_b32 s4, s2, 15
    s_lshr_b32 s5, s2, 4
    """)
    if stamps:
        for i in range(80,96): a(f"s_mov_b32 s{i}, 0")
        a("s_mov_b32 s96, s3")
    stamp(0)
    if st2: stamp(2)
    XD=20; W=28; WF=44; XF=60; XV=76; ACC=92; U=108
    a(f"""
    v_and_b32 v11, 31, v0
    v_lshlrev_b32 v11, 2, v11
    v_lshrrev_b32 v8, 5, v0
    v_mul_u32_u24 v8, 896, v8
    v_add_u32 v11, v11, v8
    v_and_b32 v13, 7, v0
    v_lshlrev_b32 v5, 13, v12
    v_lshl_add_u32 v5, v13, 4, v5
    s_mov_b32 s62, 1792
    s_mov_b32 s63, 0x20000
    s_mov_b32 s54, {448*8192}
    s_mov_b32 s55, 0x20000
    s_lshr_b32 s12, s2, 6
    s_and_b32 s13, s2, 63
    s_mul_i32 s14, s12, {112*8192}
    s_lshl_b32 s15, s13, 7
    s_add_u32 s14, s14, s15
    v_and_b32 v1, 3, v0
    v_lshlrev_b32 v1, 4, v1
    v_lshrrev_b32 v7, 4, v0
    v_lshl_add_u32 v1, v7, 6, v1
    v_bfe_u32 v15, v0, 3, 1
    v_lshl_add_u32 v15, v15, 9, v1
    v_bfe_u32 v8, v0, 2, 2
    v_lshl_add_u32 v1, v8, 9, v1
    v_add_u32 v2, 0x1000, v1
    s_lshl_b32 s6, s4, 24
    s_lshl_b32 s7, s5, 2
    s_add_u32 s7, s7, s3
    s_lshl_b32 s7, s7, 13
    s_add_u32 s6, s6, s7
    s_mov_b32 s99, s6
    s_mov_b32 s42, 0x10000000
    s_mov_b32 s43, 0x20000
    s_waitcnt lgkmcnt(0)
    s_mov_b32 s60, s16
    s_mov_b32 s61, s17
    s_mov_b32 s52, s22
    s_mov_b32 s53, s23
    """)
    VQ=[]
    def wait_for(tag):
        last=max(i for i,t in enumerate(VQ) if t==tag)
        a(f"s_waitcnt vmcnt({min(len(VQ)-1-last,62)})")
    done=[0]
    paced=[False]
    def room():
        if pace and paced[0]:
            a(f"s_waitcnt vmcnt({pace-1})"); done[0]=len(VQ)-(pace-1); return
        if len(VQ)-done[0]>=56:
            a("s_waitcnt vmcnt(40)"); done[0]=len(VQ)-40
    for i in range(7):
        a(f"buffer_load_dword v{XD+i}, v11, s[60:63], 0 offen offset:{i*128}"); VQ.append('x')
    def unit_loads(R,vo,srd,so,stride,tag):
        for i in range(4):
            if i==3: a(f"s_cmp_ge_u32 s3, 2\ns_cselect_b32 {so}, 0x7fff0000, {so}")
            room()
            a(f"buffer_load_dwordx4 v[{R+4*i}:{R+4*i+3}], v{vo}, {srd}, {so} offen nt"); VQ.append(f"{tag}{i}")
            if i<3: a(f"s_add_u32 {so}, {so}, {32*stride}")
    unit_loads(W,5,"s[52:55]","s14",8192,'wq')
    if warm:
        a(f"""
        s_getpc_b64 s[44:45]
        """)
        a.label(L('pc'))
        a(f"""
        s_mov_b32 s46, {L('end2')}-{L('pc')}
        s_mov_b32 s47, 0x20000
        v_lshlrev_b32 v6, 4, v0
        s_lshl_b32 s15, s3, 12
        """)
        for i in range(4):
            a(f"buffer_load_dwordx4 a[{176+4*i}:{179+4*i}], v6, s[44:47], s15 offen offset:{1024*i}"); VQ.append('w')
    a("s_mov_b32 s40, s18\ns_mov_b32 s41, s19")
    if sbar: a("s_barrier")
    def ld(sl,j,so="s14"):
        kk,h=j>>1,j&1
        fl=vf if (so=="s14" and vf is not None) else kf
        if bp:
            assert sorted(bp)==list(range(13,24))
            if j==0:
                keep=0xffffffff
                sh={}
                for i,p_ in enumerate(bp):
                    if p_!=13+i:
                        keep&=~(1<<(13+i)); sh.setdefault(p_-(13+i),0); sh[p_-(13+i)]|=1<<(13+i)
                a(f"s_and_b32 s100, {so}, {keep}")
                for d,m in sh.items():
                    a(f"s_and_b32 s101, {so}, {m}")
                    a(f"s_lshl_b32 s101, s101, {d}" if d>0 else f"s_lshr_b32 s101, s101, {-d}")
                    a("s_or_b32 s100, s100, s101")
            so="s100"
        if sp:
            lo,hi,n=sp; m=((1<<n)-1)<<lo
            if j==0: a(f"""
            s_lshr_b32 s100, {so}, {hi-lo}
            s_xor_b32 s100, s100, {so}
            s_and_b32 s100, s100, {m}
            s_lshl_b32 s101, s100, {hi-lo}
            s_or_b32 s100, s100, s101
            s_xor_b32 s100, s100, {so}
            """)
            so="s100"
        if ip:
            r,sh,mk=ip
            if j==0:
                a(f"""
                s_bfe_u32 s100, {so}, {(5<<16)|19}
                s_lshl_b32 s101, s100, {r}
                s_lshr_b32 s100, s100, {5-r}
                s_or_b32 s100, s100, s101
                s_and_b32 s100, s100, 31
                s_lshl_b32 s100, s100, 19
                s_and_b32 s101, {so}, {0xffffffff & ~(31<<19)}
                s_or_b32 s100, s100, s101
                """)
                if mk: a(f"s_lshr_b32 s101, {so}, {sh}\ns_and_b32 s101, s101, {mk}\ns_xor_b32 s100, s100, s101")
            so="s100"
        if xp:
            n=xp; lowm=(1<<19)-1; mid=((1<<(28-n-19))-1)<<19
            if j==0: a(f"""
            s_and_b32 s100, {so}, {mid}
            s_lshl_b32 s100, s100, {n}
            s_lshr_b32 s101, {so}, {28-n-19}
            s_and_b32 s101, s101, {((1<<n)-1)<<19}
            s_or_b32 s100, s100, s101
            s_and_b32 s101, {so}, {lowm}
            s_or_b32 s100, s100, s101
            """)
            so="s100"
        if perm:
            n=perm; smask=0xf<<15; imask=((1<<n)-1)<<15; keep=0xffffffff & ~(((1<<(4+n))-1)<<15)
            if j==0: a(f"""
            s_and_b32 s100, {so}, {smask}
            s_lshl_b32 s100, s100, {n}
            s_lshr_b32 s101, {so}, 4
            s_and_b32 s101, s101, {imask}
            s_or_b32 s100, s100, s101
            s_and_b32 s101, {so}, {keep}
            s_or_b32 s100, s100, s101
            """)
            so="s100"
        if swz:
            sh,mk=swz
            if j==0: a(f"s_lshr_b32 s101, {so}, {sh}\ns_and_b32 s101, s101, {mk}\ns_xor_b32 s100, s101, {so}")
            so="s100"
        a(f"buffer_load_dwordx4 {Rr(sl,j)}, v{PO[kk>>1]}, s[40:43], {so} offen offset:{(kk&1)*2048+h*256}{fl}")
    order=list(range(NP))+[-(x+1) for x in range(NX)]+list(range(NP,NB))
    FL=[(sl,j) for sl in order for j in range(8)]
    fpos=[0]
    def emit_fill(n):
        for _ in range(n):
            if fpos[0]>=len(FL): return
            sl,j=FL[fpos[0]]; fpos[0]+=1
            room()
            ld(sl,j,"s6"); VQ.append(f"f{sl}")
            if j==7: a("s_add_u32 s6, s6, 0x80000")
    emit_fill(sched[0])
    a(f"""
    s_add_u32 s76, s38, {EPO}
    s_addc_u32 s77, s39, 0
    s_load_dword s97, s[76:77], 0
    v_and_b32 v10, 15, v0
    v_lshlrev_b32 v10, 4, v10
    v_lshl_add_u32 v3, v7, 9, v10
    v_add_u32 v4, 0x1000, v3
    v_mul_u32_u24 v9, 3584, v12
    v_lshl_add_u32 v9, v13, 4, v9
    s_mov_b32 s58, {448*3584}
    s_mov_b32 s59, 0x20000
    s_and_b32 s71, s2, 3
    s_lshr_b32 s72, s2, 3
    s_mul_i32 s15, s71, {112*3584}
    s_lshl_b32 s73, s72, 7
    s_add_u32 s15, s15, s73
    s_cmp_ge_u32 s2, 224
    s_cselect_b32 s58, 0, s58
    s_bitcmp1_b32 s2, 2
    s_cselect_b32 s56, s30, s28
    s_cselect_b32 s57, s31, s29
    s_mov_b32 s48, s38
    s_mov_b32 s49, s39
    s_mov_b32 s50, {WSB}
    s_mov_b32 s51, 0x20000
    s_add_u32 s64, s3, {'s4' if rot else '0'}
    s_and_b32 s64, s64, 3
    s_lshl_b32 s7, s5, 2
    s_add_u32 s7, s7, s64
    s_lshl_b32 s7, s7, 13
    s_add_u32 s7, s7, {CNTO}
    s_add_u32 s64, s38, s7
    s_addc_u32 s65, s39, 0
    s_mov_b32 s66, 0
    s_mov_b32 s67, 0x20000
    s_lshl_b32 s68, s4, 4
    s_add_u32 s68, s68, s5
    s_and_b32 s69, s68, 127
    s_lshr_b32 s70, s68, 7
    s_lshl_b32 s68, s68, 13
    """)
    wait_for('x')
    if st2: stamp(3)
    emit_fill(sched[1])
    layernorm(a,XD,XF,5,6,8,11)
    for i in range(7): a(f"v_cvt_pk_bf16_f32 v{XD+i}, v{XF+2*i}, v{XF+2*i+1}")
    for i in range(7):
        a(f"v_lshlrev_b32 v{XF+2*i}, 16, v{XD+i}")
        a(f"v_and_b32 v{XF+2*i+1}, 0xffff0000, v{XD+i}")
    a("v_lshlrev_b32 v11, 1, v11")
    for i in range(7): a(f"ds_write_b64 v11, v[{XF+2*i}:{XF+2*i+1}] offset:{XN+i*256}")
    a(f"""
    v_lshlrev_b32 v12, 2, v12
    s_mul_i32 s7, s12, 448
    v_add_u32 v5, s7, v12
    s_mul_i32 s7, s71, 448
    v_add_u32 v6, s7, v12
    s_lshl_b32 s7, s3, 9
    v_bfe_u32 v8, v0, 4, 1
    v_lshlrev_b32 v14, 8, v8
    v_lshl_add_u32 v14, v13, 5, v14
    v_lshrrev_b32 v8, 5, v0
    v_lshl_add_u32 v14, v8, 4, v14
    v_add_u32 v14, s7, v14
    s_waitcnt lgkmcnt(0)
    """)
    for u,va in ((0,5),(1,6)):
        for b in range(2):
            for i in range(4): a(f"ds_read_b32 v{XV+u*8+b*4+i}, v{va} offset:{XN+b*1792+i*128}")
    emit_fill(sched[2])
    a("s_add_u32 s97, s97, 1\ns_waitcnt lgkmcnt(0)")
    def unit(R,xv,tag,red,mid=0):
        for i in range(4):
            if i==3: a(f"s_cmp_ge_u32 s3, 2\ns_cbranch_scc1 {L('u3'+tag)}")
            wait_for(f"{tag}{i}")
            for d in range(4):
                a(f"v_lshlrev_b32 v{U+2*d}, 16, v{R+4*i+d}")
                a(f"v_and_b32 v{U+2*d+1}, 0xffff0000, v{R+4*i+d}")
            for b in range(2):
                for e in range(8):
                    op="v_mul_f32" if i==0 else "v_fmac_f32"
                    a(f"{op} v{ACC+b*8+e}, v{xv+b*4+i}, v{U+e}")
        a.label(L('u3'+tag))
        for e in range(8): a(f"v_permlane16_swap_b32 v{ACC+e}, v{ACC+8+e}")
        for e in range(8): a(f"v_add_f32 v{ACC+e}, v{ACC+e}, v{ACC+8+e}")
        for e in range(4): a(f"v_permlane32_swap_b32 v{ACC+e}, v{ACC+4+e}")
        for e in range(4): a(f"v_add_f32 v{ACC+e}, v{ACC+e}, v{ACC+4+e}")
        for e in range(4): a(f"v_add_f32_dpp v{ACC+e}, v{ACC+e}, v{ACC+e} row_ror:8 {DPPT}")
        a(f"ds_write_b128 v14, v[{ACC}:{ACC+3}] offset:{red}")
        emit_fill(mid)
    def gather4(red):
        a("v_lshlrev_b32 v5, 3, v0")
        for w in range(4): a(f"ds_read_b64 v[{U+2*w}:{U+2*w+1}], v5 offset:{red+w*512}")
        a(f"""
        s_waitcnt lgkmcnt(0)
        v_add_f32 v{U}, v{U}, v{U+2}
        v_add_f32 v{U+1}, v{U+1}, v{U+3}
        v_add_f32 v{U+4}, v{U+4}, v{U+6}
        v_add_f32 v{U+5}, v{U+5}, v{U+7}
        """)
    if st2: stamp(4)
    unit(W,XV,'wq',RED,sched[3])
    if st2: stamp(5)
    a(f"""
    v_mov_b32 v{U+9}, s97
    v_mov_b32 v{U+11}, s97
    v_lshrrev_b32 v6, 5, v0
    v_lshlrev_b32 v6, 15, v6
    v_and_b32 v5, 31, v0
    v_lshl_add_u32 v6, v5, 4, v6
    s_lshl_b32 s7, s12, 16
    s_lshl_b32 s13, s13, 9
    s_add_u32 s7, s7, s13
    s_add_u32 s7, s7, {QOFF}
    s_waitcnt lgkmcnt(0)
    s_barrier
    s_cmp_lg_u32 s3, 0
    s_cbranch_scc1 {L('pubwait')}
    """)
    gather4(RED)
    a(f"""
    v_add_f32 v{U+8}, v{U}, v{U+4}
    v_add_f32 v{U+10}, v{U+1}, v{U+5}
    buffer_store_dwordx4 v[{U+8}:{U+11}], v6, s[48:51], s7 offen sc1
    """)
    a.label(L('pubwait'))
    if sbar: a("s_barrier")
    if st2: stamp(6)
    paced[0]=True
    unit_loads(WF,9,"s[56:59]","s15",3584,'wf')
    a(f"""
    s_lshl_b32 s12, s4, 12
    s_lshl_b32 s13, s3, 10
    s_add_u32 s12, s12, s13
    s_add_u32 s12, s12, {QOFF}
    s_add_u32 s13, s12, 0x10000
    s_add_u32 s14, s12, 0x20000
    s_add_u32 s15, s12, 0x30000
    v_lshlrev_b32 v9, 4, v0
    """)
    def qload(track=True):
        for p in range(4):
            if track: room()
            a(f"buffer_load_dwordx4 v[{W+4*p}:{W+4*p+3}], v9, s[48:51], s{12+p} offen sc1")
            if track: VQ.append('qa')
    emit_fill(pollpos-fpos[0])
    qload()
    emit_fill(999)
    unit(WF,XV+8,'wf',RED+2048)
    a(f"""
    v_and_b32 v7, 1, v0
    v_cmp_eq_u32 vcc, 1, v7
    v_mov_b32 v8, 0xffff
    v_mov_b32 v11, 0xffff0000
    v_cndmask_b32 v8, v8, v11, vcc
    v_bfe_u32 v7, v0, 1, 2
    """)
    for r in range(4):
        a(f"v_cmp_eq_u32 vcc, {r}, v7\nv_cndmask_b32 v{MASK+r}, 0, v8, vcc")
    a(f"""
    v_lshrrev_b32 v7, 2, v0
    v_xor_b32 v7, v7, v0
    v_and_b32 v7, 8, v7
    v_cmp_ne_u32 s[8:9], 0, v7
    s_mov_b32 s10, {f32(CEXP)}
    s_mov_b32 s11, 0
    s_mov_b32 s98, {S2}
    s_mov_b32 s73, 0
    s_lshl_b32 s7, s3, 8
    v_lshlrev_b32 v13, 2, v0
    v_add_u32 v13, s7, v13
    s_mov_b32 s44, 0x01010101
    s_mov_b32 s45, 0x01010101
    """)
    wait_for('qa')
    a.flush()
    a.label(L('qchk'))
    a(f"v_xor_b32 v7, s97, v{W+1}\nv_xor_b32 v8, s97, v{W+3}")
    for i in range(5,16,4):
        a(f"v_xor_b32 v11, s97, v{W+i}\nv_xor_b32 v12, s97, v{W+i+2}\nv_or3_b32 v7, v7, v11, v12")
    a(f"""
    v_or_b32 v7, v7, v8
    v_cmp_ne_u32 vcc, 0, v7
    s_cbranch_vccz {L('qok')}
    s_add_u32 s73, s73, 1
    s_cmp_ge_u32 s73, {spin_max}
    s_cbranch_scc1 {L('qok')}
    """)
    qload(False)
    a(f"s_waitcnt vmcnt(0)\ns_branch {L('qchk')}")
    a.label(L('qok'))
    a(f"""
    v_add_f32 v{W}, v{W}, v{W+4}
    v_add_f32 v{W+2}, v{W+2}, v{W+6}
    v_add_f32 v{W+8}, v{W+8}, v{W+12}
    v_add_f32 v{W+10}, v{W+10}, v{W+14}
    v_add_f32 v{W}, v{W}, v{W+8}
    v_add_f32 v{W+2}, v{W+2}, v{W+10}
    v_cvt_pk_bf16_f32 v7, v{W}, v{W+2}
    ds_write_b32 v13, v7 offset:{QL}
    v_mov_b32 v8, 0
    ds_write_b32 v8, v8 offset:{CN}
    s_waitcnt lgkmcnt(0)
    s_barrier
    ds_read_b128 v[{Q}:{Q+3}], v15 offset:{QL}
    ds_read_b128 v[{Q+4}:{Q+7}], v15 offset:{QL+256}
    v_lshrrev_b32 v15, 3, v0
    v_lshlrev_b32 v15, 3, v15
    s_lshl_b32 s7, s3, 11
    v_add_u32 v14, s7, v15
    s_waitcnt lgkmcnt(0)
    """)
    stamp(1)
    if st2:
        stamp_real=stamp
        def stamp(i):
            if i==7: stamp_real(7)
    def kbody(sl,ring=True,waits=True,tile=None):
        for j in range(8):
            kk,h=j>>1,j&1; d=DS+kk*4
            if waits: a(f"s_waitcnt vmcnt({WN})")
            c="0" if h==0 else f"v[{d}:{d+3}]"
            a(f"v_mfma_f32_16x16x32_bf16 v[{d}:{d+3}], {Rr(sl,j)}, v[{Q+h*4}:{Q+h*4+3}], {c}")
            if ring: ld(sl,j,"s6")
        for kk in range(4):
            d=DS+kk*4; s=S+kk
            a(f"v_mov_b32_dpp v{s}, v{d} quad_perm:[0,0,0,0] {DPPT}")
            for r in range(1,4):
                a(f"v_add_f32_dpp v{s}, v{d+r}, v{s} quad_perm:[{r},{r},{r},{r}] {DPPT}")
        a(f"""
        v_cvt_pk_bf16_f32 v{A[0]}, v{S}, v{S+1}
        v_cvt_pk_bf16_f32 v{A[0]+1}, v{S+2}, v{S+3}
        s_mov_b64 exec, s[44:45]
        ds_write_b64 v14, v[{A[0]}:{A[0]+1}] offset:{SCL+(tile or 0)*64}
        s_mov_b64 exec, -1
        """)
        if tile is None: a("v_add_u32 v14, 64, v14")
        if ring: a("s_add_u32 s6, s6, 0x80000\ns_add_u32 s11, s11, 1")
    qi=max(i for i,t in enumerate(VQ) if t=='qa')
    def pwait(sl):
        last=max(i for i,t in enumerate(VQ) if t==f"f{sl}")
        if last>qi: wait_for(f"f{sl}")
    if not ilv:
        for sl in range(NP):
            pwait(sl); kbody(sl,True,False); VQ.extend(['r']*8)
        for x in range(NX):
            pwait(-(x+1)); kbody(-(x+1),False,False)
    else:
        assert NB==1 and NP==1
        pwait(0); kbody(0,True,False,tile=0); VQ.extend(['r']*8)
        nr=1
        for x in range(NX):
            pwait(-(x+1)); kbody(-(x+1),False,False,tile=1+x)
            if (x+1)%ilv==0 and x+1<NX and all(max(i for i,t in enumerate(VQ) if t==f"f{-(y+1)}")<qi or True for y in range(NX)):
                kbody(0,True,True,tile=NX+nr); VQ.extend(['r']*8); nr+=1
                qi=len(VQ)
        a(f"v_add_u32 v14, {(NX+nr)*64}, v14")
        assert nr<=S2
    a(f"s_cmp_lg_u32 s3, 0\ns_cbranch_scc1 {L('ksubP')}")
    gather4(RED+2048)
    a(f"""
    v_add_f32 v{U+8}, v{U}, v{U+4}
    v_add_f32 v{U+9}, v{U+1}, v{U+5}
    v_lshrrev_b32 v7, 5, v0
    v_mul_u32_u24 v7, 7168, v7
    v_and_b32 v8, 31, v0
    v_lshl_add_u32 v7, v8, 3, v7
    s_lshl_b32 s7, s71, 1
    s_bfe_u32 s73, s2, 0x10002
    s_add_u32 s7, s7, s73
    s_mul_i32 s7, s7, 14336
    s_lshl_b32 s73, s72, 8
    s_add_u32 s7, s7, s73
    s_add_u32 s7, s7, {GU}
    s_cmp_ge_u32 s2, 224
    s_cselect_b32 s7, 0x7fff0000, s7
    v_mov_b32 v124, -1
    v_mov_b32 v125, -1
    v_mov_b32 v126, -1
    v_mov_b32 v127, -1
    v_mov_b32 v123, 0
    v_add_u32 v11, 0x1000, v9
    buffer_store_dwordx2 v[{U+8}:{U+9}], v7, s[48:51], s7 offen sc1
    """)
    for i in range(0 if noclr else 7):
        a(f"buffer_store_dwordx4 v[124:127], v{9 if i<4 else 11}, s[48:51], s68 offen offset:{(i&3)*1024} sc1")
    a(f"""
    s_add_u32 s7, s68, {CNTO}
    s_mov_b64 exec, 1
    buffer_store_dword v123, off, s[48:51], s7 sc1
    s_mov_b64 exec, -1
    s_branch {L('ksubP')}
    """)
    a.label(L('kloop'))
    a(f"s_cmp_eq_u32 s11, s98\ns_cbranch_scc1 {L('ksvc')}")
    a.label(L('kloop2'))
    for nb in range(NB):
        if nb==NP: a.label(L('ksubP'))
        kbody(nb)
    if NP==NB: a.label(L('ksubP'))
    a(f"s_cmp_lt_u32 s11, {NK}\ns_cbranch_scc1 {L('kloop')}")
    stamp(5)
    a(f"""
    s_mov_b32 s11, 0
    s_mov_b32 s98, {S3}
    v_mov_b32 v{vM}, 0xff7fffff
    v_mov_b32 v{vL}, 0
    s_lshl_b32 s75, s5, 24
    s_lshl_b32 s15, s4, 2
    s_add_u32 s15, s15, s3
    s_lshl_b32 s15, s15, 13
    s_add_u32 s15, s15, s75
    s_add_u32 s7, s3, {'s4' if rot else '0'}
    s_and_b32 s7, s7, 3
    s_lshl_b32 s7, s7, {13+UB}
    s_add_u32 s75, s75, s7
    s_add_u32 s75, s75, {KS*64*8192}
    s_mov_b32 s76, -1
    s_mul_i32 s47, s5, {64*NSH*64}
    s_add_u32 s47, s47, {SCO}
    s_lshl_b32 s7, s3, 11
    s_add_u32 s7, s7, {NSH*64}
    v_add_u32 v14, s7, v15
    """)
    for i in range(8): a(f"v_mov_b32 v{O+i}, 0")
    a.flush()
    a.label(L('vloop'))
    a(f"s_cmp_eq_u32 s11, s98\ns_cbranch_scc1 {L('vsvc')}")
    a.label(L('vloop2'))
    SS=DS+4
    for nb in range(NB):
        sc=SCR+2*nb
        a(f"""
        ds_read_b64 v[{SS}:{SS+1}], v14 offset:{SCL}
        v_add_u32 v14, 64, v14
        s_waitcnt vmcnt({8*NB if early else WN})
        """)
        if pair and nb>0:
            a(f"""
            s_add_u32 s78, s14, 0x2000
            s_cmp_ge_u32 s11, {NSV+KS-NB}
            s_cselect_b32 s14, s78, s6
            """)
        else: a(f"""
        v_readfirstlane_b32 s77, v{TK+nb}
        s_add_u32 s79, s11, {NB}
        s_lshl_b32 s78, s77, {15+UB}
        s_add_u32 s78, s78, s75
        s_cmp_ge_u32 s11, {NSV+KS-NB}
        s_cselect_b32 s14, s78, s6
        s_cselect_b32 s77, s77, 0
        s_cselect_b32 s78, {POOL}, 1
        s_cmp_ge_u32 s77, s78
        s_cselect_b32 s42, 0, s42
        s_cselect_b32 s66, 0, s66
        s_cselect_b32 s79, s79, -1
        s_min_u32 s76, s76, s79
        """)
        a(f"""
        s_waitcnt lgkmcnt(0)
        s_cmp_lt_u32 s11, {NSV}
        s_cbranch_scc1 {L(f'vs{nb}')}
        """)
        a(f"""
        v_mov_b32 v{SS}, v{sc}
        v_mov_b32 v{SS+1}, v{sc+1}
        """)
        a.label(L(f'vs{nb}'))
        a(f"""
        s_bfe_u32 s7, s14, 0x6000d
        s_mul_i32 s7, s7, {NSH*64}
        s_bfe_u32 s46, s14, 0x50013
        s_lshl_b32 s46, s46, 6
        s_add_u32 s7, s7, s46
        s_add_u32 s7, s7, s47
        s_cmp_ge_u32 s11, {NSV-NB}
        s_cselect_b32 s7, s7, 0x7fff0000
        s_cmp_eq_u32 s42, 0
        s_cselect_b32 s7, 0x7fff0000, s7
        """)
        if not (pair and nb>0): a(f"""
        v_mov_b32 v{TK+nb}, 1
        s_mov_b64 exec, 1
        buffer_atomic_add v{TK+nb}, off, s[64:67], 0 sc0
        s_mov_b64 exec, -1
        """)
        a(f"""
        buffer_load_dwordx2 v[{sc}:{sc+1}], v15, s[48:51], s7 offen sc1
        v_lshlrev_b32 v{S}, 16, v{SS}
        v_and_b32 v{S+1}, 0xffff0000, v{SS}
        v_lshlrev_b32 v{S+2}, 16, v{SS+1}
        v_and_b32 v{S+3}, 0xffff0000, v{SS+1}
        v_max3_f32 v7, v{S}, v{S+1}, v{S+2}
        v_max3_f32 v7, v7, v{S+3}, v{vM}
        v_mov_b32 v8, v7
        v_permlane16_swap_b32 v8, v7
        v_max_f32 v7, v7, v8
        v_mov_b32 v8, v7
        v_permlane32_swap_b32 v8, v7
        v_max_f32 v7, v7, v8
        v_sub_f32 v8, v{vM}, v7
        v_mul_f32 v8, s10, v8
        v_exp_f32 v8, v8
        v_mov_b32 v{vM}, v7
        v_mul_f32 v9, s10, v7
        v_mov_b32_dpp v10, v8 row_ror:8 {DPPT}
        v_mul_f32 v{vL}, v{vL}, v8
        v_cndmask_b32 v10, v8, v10, s[8:9]
        """)
        for i in range(8): a(f"v_mul_f32 v{O+i}, v{O+i}, v10")
        for kk in range(4): a(f"v_fma_f32 v{S+kk}, v{S+kk}, s10, -v9")
        for kk in range(4): a(f"v_exp_f32 v{S+kk}, v{S+kk}")
        for kk in range(4):
            Ar=A[kk&1]
            a(f"v_cvt_pk_bf16_f32 v11, v{S+kk}, v{S+kk}")
            a(f"v_add_f32 v{vL}, v{vL}, v{S+kk}")
            for r in range(4): a(f"v_and_b32 v{Ar+r}, v11, v{MASK+r}")
            for h in range(2):
                j=kk*2+h; o=O+h*4
                if j or early: a(f"s_waitcnt vmcnt({WV})")
                a(f"v_mfma_f32_16x16x32_bf16 v[{o}:{o+3}], v[{Ar}:{Ar+3}], {Rr(nb,j)}, v[{o}:{o+3}]")
                ld(nb,j)
        a(f"""
        s_add_u32 s6, s6, 0x80000
        s_add_u32 s11, s11, 1
        s_cmp_eq_u32 s11, {NSV-NB}
        s_cselect_b32 s6, s15, s6
        s_cmp_eq_u32 s11, s76
        """)
        if nb<NB-1: a(f"s_cbranch_scc1 {L('sdone')}")
        else: a(f"s_cbranch_scc0 {L('vloop')}")
    a(f"s_branch {L('sdone')}")
    a.label(L('ksvc'))
    a(f"""
    s_cmp_eq_u32 s11, {SRD}
    s_cbranch_scc1 {L('rdy')}
    s_cmp_eq_u32 s11, {SKV}
    s_cbranch_scc1 {L('kv')}
    s_cmp_eq_u32 s11, {S2}
    s_cbranch_scc1 {L('svc2b')}
    s_mov_b32 s98, {SRD}
    v_lshlrev_b32 v7, 4, v0
    s_lshl_b32 s7, s3, 11
    v_add_u32 v8, s7, v7
    ds_read_b128 v[{GR}:{GR+3}], v8 offset:{SCL}
    ds_read_b128 v[{GR+4}:{GR+7}], v8 offset:{SCL+1024}
    s_lshl_b32 s7, s4, 4
    s_add_u32 s7, s7, s5
    s_lshl_b32 s7, s7, 2
    s_add_u32 s7, s7, s3
    s_mul_i32 s7, s7, {NSH*64}
    s_add_u32 s7, s7, {SCO}
    v_cmp_gt_u32 vcc, {min(NSH*4,64)}, v0
    v_cmp_gt_u32 s[46:47], {max(NSH*4-64,0)}, v0
    s_waitcnt lgkmcnt(0)
    s_mov_b64 exec, vcc
    buffer_store_dwordx4 v[{GR}:{GR+3}], v7, s[48:51], s7 offen sc1
    """)
    if NSH>16: a(f"s_mov_b64 exec, s[46:47]\nbuffer_store_dwordx4 v[{GR+4}:{GR+7}], v7, s[48:51], s7 offen offset:1024 sc1")
    a(f"s_mov_b64 exec, -1\ns_branch {L('kloop2')}")
    a.label(L('svc2b'))
    a(f"""
    s_mov_b32 s98, {SPB}
    s_mov_b32 s52, s24
    s_mov_b32 s53, s25
    s_mov_b32 s54, {4096*896}
    s_mov_b32 s56, s32
    s_mov_b32 s57, s33
    s_mov_b32 s58, {1792*896}
    v_lshrrev_b32 v7, 4, v0
    v_and_b32 v10, 15, v0
    v_lshlrev_b32 v10, 4, v10
    v_mul_u32_u24 v11, {8*896}, v7
    v_add_u32 v11, v11, v10
    s_mul_i32 s71, s69, {32*896}
    s_lshl_b32 s72, s3, 8
    s_add_u32 s71, s71, s72
    s_add_u32 s73, s71, {4*896}
    """)
    a(f"s_cmp_eq_u32 s3, 3\ns_cbranch_scc1 {L('nopre')}")
    for kk in range(8):
        r=WO+kk*4
        a(f"buffer_load_dwordx4 a[{r}:{r+3}], v11, s[52:55], s{71 if kk<4 else 73} offen offset:{(kk&3)*896} nt")
    a(f"""
    v_mul_u32_u24 v12, {4*896}, v7
    v_add_u32 v12, v12, v10
    s_mul_i32 s7, s69, {14*896}
    s_add_u32 s7, s7, s72
    """)
    for kk in range(4):
        r=W2+kk*4
        a(f"buffer_load_dwordx4 a[{r}:{r+3}], v12, s[56:59], s7 offen offset:{kk*896} nt")
    a(f"s_cmp_lg_u32 s3, 2\ns_cbranch_scc1 {L('nopre')}\ns_waitcnt vmcnt(20)")
    for kk in range(8):
        r=WOb+kk*4
        a(f"buffer_load_dwordx4 a[{r}:{r+3}], v11, s[52:55], s{71 if kk<4 else 73} offen offset:{(kk&3)*896+256} nt")
    for kk in range(4):
        r=W2b+kk*4
        a(f"buffer_load_dwordx4 a[{r}:{r+3}], v12, s[56:59], s7 offen offset:{kk*896+256} nt")
    a.label(L('nopre'))
    a(f"""
    s_lshl_b32 s74, s69, 3
    s_mul_i32 s72, s70, 896
    s_add_u32 s74, s74, s72
    buffer_load_dwordx2 v[{XR}:{XR+1}], off, s[60:63], s74
    s_mov_b32 s73, 0
    s_branch {L('kloop2')}
    """)
    a.label(L('rdy'))
    a(f"""
    s_mov_b32 s98, {SKV}
    v_mov_b32 v7, s97
    s_lshl_b32 s7, s2, 2
    s_add_u32 s7, s7, s3
    s_lshl_b32 s7, s7, 2
    s_add_u32 s7, s7, {RDY}
    s_waitcnt vmcnt({WN})
    s_mov_b64 exec, 1
    buffer_store_dword v7, off, s[48:51], s7 sc1
    s_mov_b64 exec, -1
    """)
    if SRD!=SKV: a(f"s_branch {L('kloop2')}")
    a.label(L('kv'))
    a(f"""
    s_mov_b32 s98, -1
    s_mov_b32 s40, s20
    s_mov_b32 s41, s21
    s_add_u32 s6, s99, {NSH*0x80000}
    v_mov_b32 v{PO[0]}, v{VO[0]}
    v_mov_b32 v{PO[1]}, v{VO[1]}
    s_branch {L('kloop2')}
    """)
    a.label(L('vsvc'))
    a(f"""
    s_cmp_eq_u32 s11, {S4}
    s_cbranch_scc1 {L('svc4')}
    s_cmp_eq_u32 s11, {S5}
    s_cbranch_scc1 {L('switch')}
    s_mov_b32 s98, {S4}
    v_lshlrev_b32 v13, 4, v0
    s_mov_b32 s7, {RDY}
    """)
    def rload():
        for i in range(4): a(f"buffer_load_dwordx4 v[{RD+4*i}:{RD+4*i+3}], v13, s[48:51], s7 offen offset:{1024*i} sc1")
    rload()
    a(f"s_branch {L('vloop2')}")
    a.label(L('svc4'))
    a(f"""
    s_mov_b32 s98, {S5}
    s_mov_b32 s71, 0
    s_mov_b32 s7, {RDY}
    s_waitcnt vmcnt({WN})
    """)
    a.flush()
    a.label(L('rchk'))
    a(f"""
    v_min3_u32 v7, v{RD}, v{RD+1}, v{RD+2}
    v_max3_u32 v8, v{RD}, v{RD+1}, v{RD+2}
    """)
    for i in range(3,15,2): a(f"v_min3_u32 v7, v7, v{RD+i}, v{RD+i+1}\nv_max3_u32 v8, v8, v{RD+i}, v{RD+i+1}")
    a(f"""
    v_min_u32 v7, v7, v{RD+15}
    v_max_u32 v8, v8, v{RD+15}
    v_xor_b32 v7, s97, v7
    v_xor_b32 v8, s97, v8
    v_or_b32 v7, v7, v8
    v_cmp_ne_u32 vcc, 0, v7
    s_cbranch_vccz {L('rok')}
    s_add_u32 s71, s71, 1
    s_cmp_ge_u32 s71, {spin_max}
    s_cbranch_scc1 {L('rok')}
    s_sleep 16
    """)
    rload()
    a(f"s_waitcnt vmcnt(0)\ns_branch {L('rchk')}")
    a.label(L('rok'))
    if KS==0: a("s_mov_b32 s66, 4")
    a(f"""
    v_lshrrev_b32 v7, 4, v0
    v_lshlrev_b32 v11, 4, v7
    s_mul_i32 s71, s69, 56
    s_mul_i32 s72, s70, 7168
    s_add_u32 s71, s71, s72
    s_add_u32 s71, s71, {GU}
    """)
    for pm in range(8):
        a(f"buffer_load_dwordx4 v[{GR+4*pm}:{GR+4*pm+3}], v11, s[48:51], s71 offen sc1")
        if pm<7: a("s_add_u32 s71, s71, 14336")
    a(f"""
    s_or_b32 s7, s2, s3
    s_cmp_lg_u32 s7, 0
    s_cbranch_scc1 {L('vloop2')}
    v_mov_b32 v7, s97
    s_mov_b32 s7, {EPO}
    s_mov_b64 exec, 1
    buffer_store_dword v7, off, s[48:51], s7 sc1
    s_mov_b64 exec, -1
    s_branch {L('vloop2')}
    """)
    a.label(L('switch'))
    a(f"s_mov_b32 s98, -1\ns_waitcnt vmcnt({WN})")
    if touch:
        a("s_mov_b32 s60, s34\ns_mov_b32 s61, s35\nbuffer_load_dword a180, off, s[60:63], 0")
    if warm&2:
        a("s_getpc_b64 s[52:53]")
        a.label(L('pc2'))
        a(f"""
        s_mov_b32 s54, {L('end2')}-{L('pc2')}
        v_lshlrev_b32 v7, 4, v0
        s_lshl_b32 s7, s3, 10
        buffer_load_dwordx4 a[176:179], v7, s[52:55], s7 offen
        """)
    aW,aM,aR,aS1,aS2,aP1,aP2,aH2,aP3,aCF,aRow,xres=66,67,68,70,71,72,73,74,75,76,77,78
    def lred():
        a(f"""
        v_mov_b32 v8, v{vL}
        v_permlane16_swap_b32 v8, v{vL}
        v_add_f32 v{vL}, v{vL}, v8
        v_mov_b32 v8, v{vL}
        v_permlane32_swap_b32 v8, v{vL}
        v_add_f32 v{vL}, v{vL}, v8
        """)
    def ldswrite(st):
        a(f"""
        ds_write_b128 v{aW}, v[{O}:{O+3}] offset:{OP+st*8192}
        ds_write_b128 v{aW}, v[{O+4}:{O+7}] offset:{OP+st*8192+512}
        ds_write_b32 v{aM}, v{vM} offset:{ML+st*64}
        ds_write_b32 v{aM}, v{vL} offset:{ML+st*64+16}
        """)
    def combine(vr,vm,off,moff,sO,sM,T,C,R):
        a(f"ds_read_b128 v[{T}:{T+3}], v{vm} offset:{ML+moff}\nds_read_b128 v[{T+4}:{T+7}], v{vm} offset:{ML+moff+16}")
        for w in range(4): a(f"ds_read_b128 v[{C+4*w}:{C+4*w+3}], v{vr} offset:{OP+off+w*2048}")
        a(f"s_waitcnt lgkmcnt(4)\nv_max3_f32 v{R+4}, v{T}, v{T+1}, v{T+2}\nv_max_f32 v{R+4}, v{R+4}, v{T+3}")
        for w in range(4): a(f"v_sub_f32 v{T+w}, v{T+w}, v{R+4}")
        for w in range(4): a(f"v_mul_f32 v{T+w}, s10, v{T+w}")
        for w in range(4): a(f"v_exp_f32 v{T+w}, v{T+w}")
        a(f"v_mul_f32 v{R+5}, v{T}, v{T+4}")
        for w in range(1,4): a(f"v_fmac_f32 v{R+5}, v{T+w}, v{T+4+w}")
        a("s_waitcnt lgkmcnt(0)")
        for e in range(4): a(f"v_mul_f32 v{R+e}, v{T}, v{C+e}")
        for w in range(1,4):
            for e in range(4): a(f"v_fmac_f32 v{R+e}, v{T+w}, v{C+4*w+e}")
        for e in range(6): a(f"v_min_u32 v{R+e}, -2, v{R+e}")
        a(f"""
        buffer_store_dwordx4 v[{R}:{R+3}], v{aS1}, s[48:51], {sO} offen sc1
        s_mov_b64 exec, s[44:45]
        buffer_store_dwordx2 v[{R+4}:{R+5}], v{aS2}, s[48:51], {sM} offen sc1
        s_mov_b64 exec, -1
        """)
    lred()
    a(f"""
    v_lshrrev_b32 v7, 5, v0
    v_lshlrev_b32 v7, 10, v7
    v_and_b32 v12, 15, v0
    v_lshl_add_u32 v7, v12, 5, v7
    v_bfe_u32 v8, v0, 4, 1
    v_lshl_add_u32 v7, v8, 4, v7
    s_lshl_b32 s7, s3, 11
    v_add_u32 v{aW}, s7, v7
    v_bfe_u32 v7, v0, 3, 1
    v_lshlrev_b32 v7, 5, v7
    s_lshl_b32 s7, s3, 2
    v_add_u32 v{aM}, s7, v7
    """)
    ldswrite(0)
    a(f"""
    v_lshrrev_b32 v7, 3, v0
    v_lshlrev_b32 v{aS2}, 13, v7
    v_and_b32 v7, 7, v0
    v_lshl_add_u32 v{aS1}, v7, 4, v{aS2}
    v_lshrrev_b32 v11, 4, v0
    v_lshlrev_b32 v7, 7, v12
    v_lshl_add_u32 v{aP1}, v11, 5, v7
    v_lshlrev_b32 v7, 3, v12
    v_add_u32 v{aP2}, {H1ML}, v7
    v_lshl_add_u32 v9, v12, 1, v8
    s_lshl_b32 s7, s3, 5
    s_lshl_b32 s12, s70, 7
    s_add_u32 s7, s7, s12
    v_add_u32 v9, s7, v9
    v_lshlrev_b32 v{aH2}, 13, v9
    v_cmp_gt_u32 s[72:73], 32, v0
    v_cmp_gt_u32 vcc, 8, v12
    s_and_b64 s[54:55], s[72:73], vcc
    v_cmp_eq_u32 s[56:57], 0, v12
    s_lshl_b32 s52, s69, 4
    s_add_u32 s52, s52, {H2}
    s_add_u32 s53, s52, {32*INB}
    v_lshlrev_b32 v{aR}, 4, v0
    v_add_u32 v{aP3}, {H2}, v{aR}
    v_lshlrev_b32 v{aCF}, 5, v11
    v_lshlrev_b32 v{aRow}, 1, v11
    v_lshlrev_b32 v{xres}, 16, v{XR}
    v_and_b32 v7, 0xffff0000, v{XR}
    v_cmp_eq_u32 vcc, 1, v11
    v_cndmask_b32 v{xres}, v{xres}, v7, vcc
    v_lshlrev_b32 v7, 16, v{XR+1}
    v_cmp_eq_u32 vcc, 2, v11
    v_cndmask_b32 v{xres}, v{xres}, v7, vcc
    v_and_b32 v7, 0xffff0000, v{XR+1}
    v_cmp_eq_u32 vcc, 3, v11
    v_cndmask_b32 v{xres}, v{xres}, v7, vcc
    s_mov_b32 s60, s34
    s_mov_b32 s61, s35
    v_mov_b32 v7, 0
    v_mov_b32 v8, 1
    s_waitcnt lgkmcnt(0)
    s_mov_b64 exec, 1
    ds_add_rtn_u32 v9, v7, v8 offset:{CN}
    s_mov_b64 exec, -1
    """)
    for i in range(8): a(f"v_mov_b32 v{O+i}, 0")
    a(f"""
    v_mov_b32 v{vM}, 0xff7fffff
    v_mov_b32 v{vL}, 0
    {'s_nop 0' if KS==0 else 's_mov_b32 s66, '+str(4 if dyn else 0)}
    v_mov_b32 v14, v15
    s_and_b32 s7, s3, 1
    s_lshl_b32 s7, s7, 3
    s_lshl_b32 s58, s5, 4
    s_add_u32 s58, s58, s7
    s_lshl_b32 s58, s58, 13
    s_add_u32 s7, s4, 16
    s_lshl_b32 s12, s7, 7
    s_add_u32 s12, s12, s58
    s_lshl_b32 s13, s7, 3
    s_add_u32 s13, s13, s58
    s_add_u32 s13, s13, {H1ML}
    s_waitcnt lgkmcnt(0)
    v_readfirstlane_b32 s7, v9
    s_cmp_lg_u32 s7, 3
    s_cbranch_scc1 {L('nopub')}
    s_lshl_b32 s58, s4, 17
    s_lshl_b32 s7, s5, 7
    s_add_u32 s7, s7, s58
    s_lshl_b32 s59, s5, 3
    s_add_u32 s59, s59, s58
    s_add_u32 s59, s59, {H1ML}
    """)
    combine(aR,7,0,0,"s7","s59",A[0],DS,84)
    a(f"s_add_u32 s7, s7, {8*INB}\ns_add_u32 s59, s59, {8*INB}")
    combine(aR,7,1024,32,"s7","s59",A[0],DS,8)
    a.label(L('nopub'))
    a(f"""
    s_and_b32 s7, s3, 1
    s_lshl_b32 s58, s7, 10
    v_add_u32 v{aR}, s58, v{aR}
    s_lshl_b32 s7, s7, 5
    v_mov_b32 v69, s7
    """)
    for m in range(2):
        for q in range(4):
            g=GR+4*m+q
            a(f"v_add_f32 v{g}, v{g}, v{g+8}\nv_add_f32 v{g+16}, v{g+16}, v{g+24}\nv_add_f32 v{g}, v{g}, v{g+16}")
    for q in range(4):
        a(f"""
        v_cvt_pk_bf16_f32 v7, v{GR+q}, v{GR+4+q}
        v_and_b32 v8, 0xffff0000, v7
        v_lshlrev_b32 v7, 16, v7
        v_mul_f32 v9, {f32(-math.log2(math.e))}, v7
        v_exp_f32 v9, v9
        v_add_f32 v9, 1.0, v9
        v_rcp_f32 v9, v9
        v_mul_f32 v9, v9, v7
        v_cvt_pk_bf16_f32 v9, v9, v9
        v_lshlrev_b32 v9, 16, v9
        v_mul_f32 v9, v9, v8
        v_cvt_pk_bf16_f32 v{HC+q}, v9, v9
        """)
    a(f"""
    v_cmp_gt_u32 vcc, 48, v0
    v_cndmask_b32 v{HC+2}, 0, v{HC+2}, vcc
    v_cndmask_b32 v{HC+3}, 0, v{HC+3}, vcc
    """)
    for kk in range(4):
        Ar=A[kk&1]
        for q in range(4): a(f"v_and_b32 v{Ar+q}, v{HC+kk}, v{MASK+q}")
        for Dd,Wb in ((D,W2),(D2,W2b)):
            r=Wb+kk*4
            c="0" if kk==0 else f"v[{Dd}:{Dd+3}]"
            a(f"v_mfma_f32_16x16x32_bf16 v[{Dd}:{Dd+3}], v[{Ar}:{Ar+3}], a[{r}:{r+3}], {c}")
    a(f"s_cmp_lg_u32 s11, s76\ns_cbranch_scc1 {L('vloop2')}")
    a.label(L('sdone'))
    a(f"s_cmp_lg_u32 s98, -1\ns_cbranch_scc1 {L('switch')}")
    TAIL(a,L,locals())
    return a.text(), kd(K,256+224,102,256), LDS

def TAIL(a,L,E):
    g=lambda n: E[n]
    vL,vM,O,OP,ML,DS,A,MASK,D,D2,WO,WOb,CF=[g(n) for n in "vL vM O OP ML DS A MASK D D2 WO WOb CF".split()]
    stamp,stamps,skip_tail,spin_max=[g(n) for n in "stamp stamps skip_tail spin_max".split()]
    aR,aP1,aP2,aH2,aP3,aCF,aRow,xres=[g(n) for n in "aR aP1 aP2 aH2 aP3 aCF aRow xres".split()]
    outf=g("outf")
    stamp(2)
    g("lred")(); g("ldswrite")(1)
    a("s_mov_b32 s71, 0\ns_waitcnt lgkmcnt(0)\ns_barrier")
    stamp(3)
    if skip_tail: a(f"s_branch {L('end')}")
    b1=g("b1")
    a(f"s_cmp_eq_u32 s3, 3\ns_cbranch_scc1 {L('p1s')}\ns_cmp_eq_u32 s3, 2\ns_cbranch_scc1 {L('p1x')}")
    g("combine")(aR,69,8192,64,"s12","s13",96,DS,104)
    stamp(4)
    if b1==2: a("s_waitcnt vmcnt(0)")
    a.label(L('p1x'))
    if b1: a("s_barrier")
    a(f"s_branch {L('p1w')}")
    a.label(L('p1s'))
    if b1: a("s_barrier")
    if g("d1"): a(f"s_sleep {g('d1')}")
    PO=DS; PM=96; PR=104
    for half,nm,nxt in ((0,'p1a','p1b'),(1,'p1b','p1d')):
        o=PO+8*half; m=PM+2*half
        a.label(L(nm))
        a(f"""
        buffer_load_dwordx4 v[{o}:{o+3}], v{aP1}, s[48:51], s68 offen offset:{2048*half} sc1
        buffer_load_dwordx4 v[{o+4}:{o+7}], v{aP1}, s[48:51], s68 offen offset:{2048*half+16} sc1
        buffer_load_dwordx2 v[{m}:{m+1}], v{aP2}, s[48:51], s68 offen offset:{128*half} sc1
        """)
        if half==0:
            a(f"""
            buffer_load_dwordx4 v[{o+8}:{o+11}], v{aP1}, s[48:51], s68 offen offset:2048 sc1
            buffer_load_dwordx4 v[{o+12}:{o+15}], v{aP1}, s[48:51], s68 offen offset:2064 sc1
            buffer_load_dwordx2 v[{m+2}:{m+3}], v{aP2}, s[48:51], s68 offen offset:128 sc1
            """)
        a("s_waitcnt vmcnt(0)")
        if half==1: a.label(L('p1c'))
        a(f"""
        v_max3_u32 v12, v{o}, v{o+1}, v{o+2}
        v_max3_u32 v13, v{o+3}, v{o+4}, v{o+5}
        v_max3_u32 v12, v12, v{o+6}, v{o+7}
        v_max3_u32 v13, v13, v{m}, v{m+1}
        v_max_u32 v12, v12, v13
        v_cmp_eq_u32 vcc, -1, v12
        s_add_u32 s71, s71, 1
        s_cmp_ge_u32 s71, {spin_max}
        s_cbranch_scc1 {L('p1d')}
        """)
        if half==0:
            a(f"s_cbranch_vccnz {L('p1a')}\ns_branch {L('p1c')}")
        else:
            a(f"s_cbranch_vccz {L('p1d')}\ns_mov_b64 exec, vcc\ns_branch {L('p1b')}")
    a.label(L('p1d'))
    a("s_mov_b64 exec, -1")
    stamp(5)
    a(f"v_max_f32 v12, v{PM}, v{PM+2}")
    for m in R16: a(f"v_max_f32_dpp v12, v12, v12 {m} {DPPT}")
    a(f"""
    v_sub_f32 v10, v{PM}, v12
    v_sub_f32 v11, v{PM+2}, v12
    v_mul_f32 v10, s10, v10
    v_mul_f32 v11, s10, v11
    v_exp_f32 v10, v10
    v_exp_f32 v11, v11
    v_mul_f32 v13, v10, v{PM+1}
    v_fmac_f32 v13, v11, v{PM+3}
    """)
    for q in range(8): a(f"v_mul_f32 v{PR+q}, v{PO+q}, v10")
    for q in range(8): a(f"v_fmac_f32 v{PR+q}, v{PO+8+q}, v11")
    for m in R16:
        a(f"v_add_f32_dpp v13, v13, v13 {m} {DPPT}")
        for q in range(8): a(f"v_add_f32_dpp v{PR+q}, v{PR+q}, v{PR+q} {m} {DPPT}")
    a("v_rcp_f32 v13, v13")
    for q in range(8): a(f"v_mul_f32 v{PR+q}, v{PR+q}, v13")
    for q in range(8): a(f"v_cvt_pk_bf16_f32 v{PR+q}, v{PR+q}, v{PR+q}")
    a(f"""
    ds_write_b128 v{aCF}, v[{PR}:{PR+3}] offset:{CF}
    ds_write_b128 v{aCF}, v[{PR+4}:{PR+7}] offset:{CF+16}
    s_mov_b32 s71, 0
    s_waitcnt lgkmcnt(0)
    s_barrier
    s_cmp_ge_u32 s69, 112
    s_cbranch_scc1 {L('end')}
    """)
    if g("b3"): a("s_barrier")
    P2=112; PL=120
    if g("d2"): a(f"s_sleep {g('d2')}")
    a.label(L('p2'))
    a(f"""
    buffer_load_dwordx4 v[{PL}:{PL+3}], v{aP3}, s[48:51], s68 offen sc1
    buffer_load_dwordx4 v[{PL+4}:{PL+7}], v{aP3}, s[48:51], s68 offen offset:1024 sc1
    s_waitcnt vmcnt(0)
    v_max3_u32 v12, v{PL}, v{PL+1}, v{PL+2}
    v_max3_u32 v13, v{PL+3}, v{PL+4}, v{PL+5}
    v_max3_u32 v12, v12, v{PL+6}, v{PL+7}
    v_max_u32 v12, v12, v13
    v_cmp_eq_u32 vcc, -1, v12
    s_add_u32 s71, s71, 1
    s_cmp_ge_u32 s71, {spin_max}
    s_cbranch_scc1 {L('p2d')}
    s_cbranch_vccz {L('p2d')}
    s_mov_b64 exec, vcc
    s_branch {L('p2')}
    """)
    a.label(L('p2d'))
    a("s_mov_b64 exec, -1")
    stamp(6)
    for q in range(4): a(f"v_add_f32 v{P2+q}, v{PL+q}, v{PL+4+q}")
    a(f"""
    v_permlane16_swap_b32 v{P2}, v{P2+1}
    v_permlane16_swap_b32 v{P2+2}, v{P2+3}
    v_add_f32 v{P2}, v{P2}, v{P2+1}
    v_add_f32 v{P2+2}, v{P2+2}, v{P2+3}
    v_permlane32_swap_b32 v{P2}, v{P2+2}
    v_add_f32 v{P2}, v{P2}, v{P2+2}
    """)
    for m in R16: a(f"v_add_f32_dpp v{P2}, v{P2}, v{P2} {m} {DPPT}")
    a(f"""
    v_add_f32 v{P2}, v{P2}, v{xres}
    v_cvt_pk_bf16_f32 v{P2}, v{P2}, v{P2}
    s_mov_b64 exec, s[56:57]
    buffer_store_short v{P2}, v{aRow}, s[60:63], s74 offen{outf}
    s_branch {L('end')}
    """)
    a.label(L('p1w'))
    CR=112
    a(f"""
    s_barrier
    ds_read_b128 v[{CR}:{CR+3}], v{aCF} offset:{CF}
    ds_read_b128 v[{CR+4}:{CR+7}], v{aCF} offset:{CF+16}
    s_waitcnt lgkmcnt(0)
    """)
    for kk in range(8):
        Ar=A[kk&1]
        for q in range(4): a(f"v_and_b32 v{Ar+q}, v{CR+kk}, v{MASK+q}")
        for Dd,Wb in ((D,WO),(D2,WOb)):
            r=Wb+kk*4
            a(f"v_mfma_f32_16x16x32_bf16 v[{Dd}:{Dd+3}], v[{Ar}:{Ar+3}], a[{r}:{r+3}], v[{Dd}:{Dd+3}]")
    for q in range(4): a(f"v_min_u32 v{D+q}, -2, v{D+q}")
    a(f"""
    s_mov_b64 exec, s[72:73]
    buffer_store_dwordx4 v[{D}:{D+3}], v{aH2}, s[48:51], s52 offen sc1
    s_cmp_lg_u32 s3, 2
    s_cbranch_scc1 {L('pe')}
    s_mov_b64 exec, s[54:55]
    """)
    for q in range(4): a(f"v_min_u32 v{D2+q}, -2, v{D2+q}")
    a(f"buffer_store_dwordx4 v[{D2}:{D2+3}], v{aH2}, s[48:51], s53 offen sc1")
    a.label(L('pe'))
    if g("b3")==2: a("s_waitcnt vmcnt(0)")
    if g("b3"): a("s_barrier")
    stamp(1)
    a.label(L('end'))
    if stamps:
        a("s_waitcnt vmcnt(0)")
        stamp(7)
        a(f"""
        s_mov_b64 exec, 1
        s_mov_b32 s50, 0x1000000
        s_lshl_b32 s11, s2, 2
        s_add_u32 s11, s11, s96
        s_lshl_b32 s11, s11, 6
        s_add_u32 s11, s11, {STO}
        """)
        for i in range(4):
            for q in range(4): a(f"v_mov_b32 v{4+q}, s{80+4*i+q}")
            a(f"buffer_store_dwordx4 v[4:7], off, s[48:51], s11 offset:{16*i}")
    a.label(L('end2'))
    a("s_endpgm")

def write_main(path, **kw):
    t,kd1,lds=gen_main(**kw)
    s=HDR
    s+=f"; @launch grid=(256,1,1) block=(256,1,1) lds={lds}\n"
    s+='.amdgcn_target "amdgcn-amd-amdhsa--gfx950"\n.text\n'+t+'.section .rodata,"a"\n'+kd1
    open(path,"w").write(s)
if __name__=="__main__":
    write_main("cdna_kernels/"+NAME+".s")
```

```python
import struct, sys, math
from asmlib import Asm
from gen2 import f32, kd, layernorm, R16, DPPT, NAME, HDR
INB=8192; H1ML=4096; H2=4608; CNTO=7168
QOFF=256*INB
GU=QOFF+262144
RDY=GU+16*7168+1024
EPO=RDY+4096
SCO=3<<20
WSB=SCO+(2<<20)
STO=8<<20

def gen_main(K=NAME+"_kernel", NB=1, NX=7, NSV=23, spin_max=1<<17, stamps=False, dyn=True, skip_tail=False,
             kf=' nt', poll1='one', sched=(8,8,8,0), pollpos=48, sbar=True, exp=0, KS0=True, NPo=1, warm=0, st2=False, touch=False, PD=1, pmask=True, ps1=0, ps2=0, noclr=False, ldsz=81920+1024, vf=None, swz=0, perm=0, xp=0, ip=None, sp=None, bp=(13,14,15,16,21,18,17,23,22,19,20), pair=False, WNo=6, early=True, WVo=7, pace=None, ilv=0, outf='', rot=True, d2=0, d1=0, b3=2, b1=0, lock=0, dly=None, wf='', uf=' nt', hoist=True, patC=0, RK=0, tp=0, kfirst=0):
    a=Asm(); L=lambda s: f"L_{K[-12:]}_{s}"
    CEXP=math.log2(math.e)/16.0
    OP=0; ML=16384; XN=16640; RED=XN+3584; CF=RED+4096; QL=CF+256; SCL=QL+1024; LDS=ldsz
    NK=32-NX
    NP=max(NB//2,1) if NPo is None else NPo
    assert NK%NB==0 and NSV%NB==0
    KS=(0 if KS0 else 2*NB) if dyn else 32-NSV
    POOL=((32-NSV-KS)*64)//4//(NB if pair else 1)
    UB={1:0,2:1,4:2}[NB] if pair else 0
    NSH=32-NSV
    S2=NB if not ilv else 4; SPB=max(S2+NB,((NSH-NX+NB-1)//NB)*NB,2*NB); SKV=NK-NB
    S3,S4,S5=(NSV-3*NB, NSV-2*NB, NSV) if KS==0 else (NSV-2*NB, NSV-NB, NSV)
    SRD=SPB+2*NB
    assert S2<SPB and SRD<=SKV and S3>=0
    WN=8*NB-1 if WNo is None else WNo
    assert WN<=8*NB-1
    WV=WN if WVo is None else WVo
    assert WV<=8*NB+(0 if pair else 1)
    def delay(pt):
        if dly and dly[1]==pt:
            a(f"s_cmp_lg_u32 s2, {dly[0]}\ns_cbranch_scc1 {L('dl')}")
            for _ in range(dly[2]): a("s_sleep 127")
            a.label(L('dl'))
    def stamp(i):
        if stamps: a(f"s_memrealtime s[{80+2*i}:{81+2*i}]\ns_waitcnt lgkmcnt(0)")
    PO=[1,2]; VO=[3,4]; vM=5; vL=6
    MASK=16; Q=20; TK=20; O=28; DS=36; HC=36; A=[52,56]; S=60
    SCR=64; SV=80; XR=90; D=92; RD=96; GR=96; RING=128
    XB=0; WO=128; WOb=160; W2=192; W2b=208
    D2=80; CN=SCL+8192
    NA=8
    assert RING+NB*32+max(NX-NA,0)*32<=256
    def Rr(sl,j):
        if sl<-NA: sl=NB+(-sl-NA-1)
        return (f"v[{RING+sl*32+j*4}:{RING+sl*32+j*4+3}]" if sl>=0 else f"a[{XB+(-sl-1)*32+j*4}:{XB+(-sl-1)*32+j*4+3}]")
    a.raw(f".globl {K}\n.p2align 8\n.type {K},@function\n{K}:")
    a(f"""
    s_cmp_ge_u32 s2, 256
    s_cbranch_scc1 {L('end2')}
    s_load_dwordx16 s[16:31], s[0:1], 0
    s_load_dwordx8 s[32:39], s[0:1], 64
    v_lshrrev_b32 v1, 6, v0
    v_lshrrev_b32 v12, 3, v0
    v_and_b32 v0, 63, v0
    v_readfirstlane_b32 s3, v1
    s_and_b32 s4, s2, 15
    s_lshr_b32 s5, s2, 4
    """)
    if stamps:
        for i in range(80,96): a(f"s_mov_b32 s{i}, 0")
        a("s_mov_b32 s96, s3")
    stamp(0)
    delay('start')
    if st2: stamp(2)
    XD=20; W=28; WF=44; XF=60; XV=76; ACC=92; U=108
    XPART=f"""
    v_and_b32 v11, 31, v0
    v_lshlrev_b32 v11, 2, v11
    v_lshrrev_b32 v8, 5, v0
    v_mul_u32_u24 v8, 896, v8
    v_add_u32 v11, v11, v8
    v_and_b32 v13, 7, v0
    v_lshlrev_b32 v5, 13, v12
    v_lshl_add_u32 v5, v13, 4, v5
    s_mov_b32 s62, 1792
    s_mov_b32 s63, 0x20000
    s_mov_b32 s54, {448*8192}
    s_mov_b32 s55, 0x20000
    s_lshr_b32 s12, s2, 6
    s_and_b32 s13, s2, 63
    s_mul_i32 s14, s12, {112*8192}
    s_lshl_b32 s15, s13, 7
    s_add_u32 s14, s14, s15
    """
    KPART=f"""
    v_and_b32 v1, 3, v0
    v_lshlrev_b32 v1, 4, v1
    v_lshrrev_b32 v7, 4, v0
    v_lshl_add_u32 v1, v7, 6, v1
    v_bfe_u32 v15, v0, 3, 1
    v_lshl_add_u32 v15, v15, 9, v1
    v_bfe_u32 v8, v0, 2, 2
    v_lshl_add_u32 v1, v8, 9, v1
    v_add_u32 v2, 0x1000, v1
    s_lshl_b32 s6, s4, 24
    s_lshl_b32 s7, s5, 2
    s_add_u32 s7, s7, s3
    s_lshl_b32 s7, s7, 13
    s_add_u32 s6, s6, s7
    s_mov_b32 s99, s6
    s_mov_b32 s42, 0x10000000
    s_mov_b32 s43, 0x20000
    """
    XSRD="s_mov_b32 s60, s16\ns_mov_b32 s61, s17\ns_mov_b32 s52, s22\ns_mov_b32 s53, s23"
    if not kfirst:
        a(XPART); a(KPART); a("s_waitcnt lgkmcnt(0)"); a(XSRD)
    VQ=[]
    def wait_for(tag):
        last=max(i for i,t in enumerate(VQ) if t==tag)
        a(f"s_waitcnt vmcnt({min(len(VQ)-1-last,62)})")
    done=[0]
    paced=[False]
    def room():
        if pace and paced[0]:
            a(f"s_waitcnt vmcnt({pace-1})"); done[0]=len(VQ)-(pace-1); return
        if len(VQ)-done[0]>=56:
            a("s_waitcnt vmcnt(40)"); done[0]=len(VQ)-40
    def xloads():
        for i in range(7):
            a(f"buffer_load_dword v{XD+i}, v11, s[60:63], 0 offen offset:{i*128}"); VQ.append('x')
    if not kfirst: xloads()
    def unit_loads(R,vo,srd,so,stride,tag):
        for i in range(4):
            if i==3: a(f"s_cmp_ge_u32 s3, 2\ns_cselect_b32 {so}, 0x7fff0000, {so}")
            room()
            a(f"buffer_load_dwordx4 v[{R+4*i}:{R+4*i+3}], v{vo}, {srd}, {so} offen{uf}"); VQ.append(f"{tag}{i}")
            if i<3: a(f"s_add_u32 {so}, {so}, {32*stride}")
    if not kfirst: unit_loads(W,5,"s[52:55]","s14",8192,'wq')
    else: a(KPART)
    if warm:
        a(f"""
        s_getpc_b64 s[44:45]
        """)
        a.label(L('pc'))
        a(f"""
        s_mov_b32 s46, {L('end2')}-{L('pc')}
        s_mov_b32 s47, 0x20000
        v_lshlrev_b32 v6, 4, v0
        s_lshl_b32 s15, s3, 12
        """)
        for i in range(4):
            a(f"buffer_load_dwordx4 a[{176+4*i}:{179+4*i}], v6, s[44:47], s15 offen offset:{1024*i}"); VQ.append('w')
    if not kfirst: a("s_mov_b32 s40, s18\ns_mov_b32 s41, s19")
    if patC: a("v_lshlrev_b32 v1, 4, v0\nv_add_u32 v2, 0x1000, v1")
    if sbar and not kfirst: a("s_barrier")
    def ld(sl,j,so="s14",mode=None):
        kk,h=j>>1,j&1
        if mode=='load':
            fl=vf if (so=="s14" and vf is not None) else kf
            a(f"buffer_load_dwordx4 {Rr(sl,j)}, v{PO[kk>>1]}, s[40:43], s100 offen offset:{((j&3)*1024 if patC else (kk&1)*2048+h*256)}{fl}")
            return
        fl=vf if (so=="s14" and vf is not None) else kf
        if bp:
            assert sorted(bp)==list(range(13,13+len(bp)))
            if j==0:
                keep=0xffffffff
                sh={}
                for i,p_ in enumerate(bp):
                    if p_!=13+i:
                        keep&=~(1<<(13+i)); sh.setdefault(p_-(13+i),0); sh[p_-(13+i)]|=1<<(13+i)
                a(f"s_and_b32 s100, {so}, {keep}")
                for d,m in sh.items():
                    a(f"s_and_b32 s101, {so}, {m}")
                    a(f"s_lshl_b32 s101, s101, {d}" if d>0 else f"s_lshr_b32 s101, s101, {-d}")
                    a("s_or_b32 s100, s100, s101")
            so="s100"
        if sp:
            lo,hi,n=sp; m=((1<<n)-1)<<lo
            if j==0: a(f"""
            s_lshr_b32 s100, {so}, {hi-lo}
            s_xor_b32 s100, s100, {so}
            s_and_b32 s100, s100, {m}
            s_lshl_b32 s101, s100, {hi-lo}
            s_or_b32 s100, s100, s101
            s_xor_b32 s100, s100, {so}
            """)
            so="s100"
        if ip:
            r,sh,mk=ip
            if j==0:
                a(f"""
                s_bfe_u32 s100, {so}, {(5<<16)|19}
                s_lshl_b32 s101, s100, {r}
                s_lshr_b32 s100, s100, {5-r}
                s_or_b32 s100, s100, s101
                s_and_b32 s100, s100, 31
                s_lshl_b32 s100, s100, 19
                s_and_b32 s101, {so}, {0xffffffff & ~(31<<19)}
                s_or_b32 s100, s100, s101
                """)
                if mk: a(f"s_lshr_b32 s101, {so}, {sh}\ns_and_b32 s101, s101, {mk}\ns_xor_b32 s100, s100, s101")
            so="s100"
        if xp:
            n=xp; lowm=(1<<19)-1; mid=((1<<(28-n-19))-1)<<19
            if j==0: a(f"""
            s_and_b32 s100, {so}, {mid}
            s_lshl_b32 s100, s100, {n}
            s_lshr_b32 s101, {so}, {28-n-19}
            s_and_b32 s101, s101, {((1<<n)-1)<<19}
            s_or_b32 s100, s100, s101
            s_and_b32 s101, {so}, {lowm}
            s_or_b32 s100, s100, s101
            """)
            so="s100"
        if perm:
            n=perm; smask=0xf<<15; imask=((1<<n)-1)<<15; keep=0xffffffff & ~(((1<<(4+n))-1)<<15)
            if j==0: a(f"""
            s_and_b32 s100, {so}, {smask}
            s_lshl_b32 s100, s100, {n}
            s_lshr_b32 s101, {so}, 4
            s_and_b32 s101, s101, {imask}
            s_or_b32 s100, s100, s101
            s_and_b32 s101, {so}, {keep}
            s_or_b32 s100, s100, s101
            """)
            so="s100"
        if swz:
            sh,mk=swz
            if j==0: a(f"s_lshr_b32 s101, {so}, {sh}\ns_and_b32 s101, s101, {mk}\ns_xor_b32 s100, s101, {so}")
            so="s100"
        if mode=='addr': return
        a(f"buffer_load_dwordx4 {Rr(sl,j)}, v{PO[kk>>1]}, s[40:43], {so} offen offset:{((j&3)*1024 if patC else (kk&1)*2048+h*256)}{fl}")
    order=list(range(NP))+[-(x+1) for x in range(NX)]+list(range(NP,NB))
    FL=[(sl,j) for sl in order for j in range(8)]
    fpos=[0]
    def emit_fill(n):
        for _ in range(n):
            if fpos[0]>=len(FL): return
            sl,j=FL[fpos[0]]; fpos[0]+=1
            room()
            ld(sl,j,"s6"); VQ.append(f"f{sl}")
            if j==7: a("s_add_u32 s6, s6, 0x80000")
    if kfirst:
        ld(0,0,"s6",'addr')
        a("s_waitcnt lgkmcnt(0)\ns_mov_b32 s40, s18\ns_mov_b32 s41, s19")
        for j in range(kfirst):
            ld(0,j,"s6",'load'); VQ.append("f0"); fpos[0]+=1
        if kfirst==8: a("s_add_u32 s6, s6, 0x80000")
        a(XPART); a(XSRD); xloads(); unit_loads(W,5,"s[52:55]","s14",8192,'wq')
        emit_fill(sched[0]-kfirst)
    else: emit_fill(sched[0])
    a(f"""
    s_add_u32 s76, s38, {EPO}
    s_addc_u32 s77, s39, 0
    s_load_dword s97, s[76:77], 0
    v_and_b32 v10, 15, v0
    v_lshlrev_b32 v10, 4, v10
    v_lshl_add_u32 v3, v7, 9, v10
    v_add_u32 v4, 0x1000, v3
    v_mul_u32_u24 v9, 3584, v12
    v_lshl_add_u32 v9, v13, 4, v9
    s_mov_b32 s58, {448*3584}
    s_mov_b32 s59, 0x20000
    s_and_b32 s71, s2, 3
    s_lshr_b32 s72, s2, 3
    s_mul_i32 s15, s71, {112*3584}
    s_lshl_b32 s73, s72, 7
    s_add_u32 s15, s15, s73
    s_cmp_ge_u32 s2, 224
    s_cselect_b32 s58, 0, s58
    s_bitcmp1_b32 s2, 2
    s_cselect_b32 s56, s30, s28
    s_cselect_b32 s57, s31, s29
    s_mov_b32 s48, s38
    s_mov_b32 s49, s39
    s_mov_b32 s50, {WSB}
    s_mov_b32 s51, 0x20000
    s_add_u32 s64, s3, {'s4' if rot else '0'}
    s_and_b32 s64, s64, 3
    s_lshl_b32 s7, s5, 2
    s_add_u32 s7, s7, s64
    s_lshl_b32 s7, s7, 13
    s_add_u32 s7, s7, {CNTO}
    s_add_u32 s64, s38, s7
    s_addc_u32 s65, s39, 0
    s_mov_b32 s66, 0
    s_mov_b32 s67, 0x20000
    s_lshl_b32 s68, s4, 4
    s_add_u32 s68, s68, s5
    s_and_b32 s69, s68, 127
    s_lshr_b32 s70, s68, 7
    s_lshl_b32 s68, s68, 13
    """)
    wait_for('x')
    if st2: stamp(3)
    emit_fill(sched[1])
    layernorm(a,XD,XF,5,6,8,11)
    for i in range(7): a(f"v_cvt_pk_bf16_f32 v{XD+i}, v{XF+2*i}, v{XF+2*i+1}")
    for i in range(7):
        a(f"v_lshlrev_b32 v{XF+2*i}, 16, v{XD+i}")
        a(f"v_and_b32 v{XF+2*i+1}, 0xffff0000, v{XD+i}")
    a("v_lshlrev_b32 v11, 1, v11")
    for i in range(7): a(f"ds_write_b64 v11, v[{XF+2*i}:{XF+2*i+1}] offset:{XN+i*256}")
    a(f"""
    v_lshlrev_b32 v12, 2, v12
    s_mul_i32 s7, s12, 448
    v_add_u32 v5, s7, v12
    s_mul_i32 s7, s71, 448
    v_add_u32 v6, s7, v12
    s_lshl_b32 s7, s3, 9
    v_bfe_u32 v8, v0, 4, 1
    v_lshlrev_b32 v14, 8, v8
    v_lshl_add_u32 v14, v13, 5, v14
    v_lshrrev_b32 v8, 5, v0
    v_lshl_add_u32 v14, v8, 4, v14
    v_add_u32 v14, s7, v14
    s_waitcnt lgkmcnt(0)
    """)
    for u,va in ((0,5),(1,6)):
        for b in range(2):
            for i in range(4): a(f"ds_read_b32 v{XV+u*8+b*4+i}, v{va} offset:{XN+b*1792+i*128}")
    emit_fill(sched[2])
    a("s_add_u32 s97, s97, 1\ns_waitcnt lgkmcnt(0)")
    def unit(R,xv,tag,red,mid=0):
        for i in range(4):
            if i==3: a(f"s_cmp_ge_u32 s3, 2\ns_cbranch_scc1 {L('u3'+tag)}")
            wait_for(f"{tag}{i}")
            for d in range(4):
                a(f"v_lshlrev_b32 v{U+2*d}, 16, v{R+4*i+d}")
                a(f"v_and_b32 v{U+2*d+1}, 0xffff0000, v{R+4*i+d}")
            for b in range(2):
                for e in range(8):
                    op="v_mul_f32" if i==0 else "v_fmac_f32"
                    a(f"{op} v{ACC+b*8+e}, v{xv+b*4+i}, v{U+e}")
        a.label(L('u3'+tag))
        for e in range(8): a(f"v_permlane16_swap_b32 v{ACC+e}, v{ACC+8+e}")
        for e in range(8): a(f"v_add_f32 v{ACC+e}, v{ACC+e}, v{ACC+8+e}")
        for e in range(4): a(f"v_permlane32_swap_b32 v{ACC+e}, v{ACC+4+e}")
        for e in range(4): a(f"v_add_f32 v{ACC+e}, v{ACC+e}, v{ACC+4+e}")
        for e in range(4): a(f"v_add_f32_dpp v{ACC+e}, v{ACC+e}, v{ACC+e} row_ror:8 {DPPT}")
        a(f"ds_write_b128 v14, v[{ACC}:{ACC+3}] offset:{red}")
        emit_fill(mid)
    def gather4(red):
        a("v_lshlrev_b32 v5, 3, v0")
        for w in range(4): a(f"ds_read_b64 v[{U+2*w}:{U+2*w+1}], v5 offset:{red+w*512}")
        a(f"""
        s_waitcnt lgkmcnt(0)
        v_add_f32 v{U}, v{U}, v{U+2}
        v_add_f32 v{U+1}, v{U+1}, v{U+3}
        v_add_f32 v{U+4}, v{U+4}, v{U+6}
        v_add_f32 v{U+5}, v{U+5}, v{U+7}
        """)
    if st2: stamp(4)
    unit(W,XV,'wq',RED,sched[3])
    if st2: stamp(5)
    a(f"""
    v_mov_b32 v{U+9}, s97
    v_mov_b32 v{U+11}, s97
    v_lshrrev_b32 v6, 5, v0
    v_lshlrev_b32 v6, 15, v6
    v_and_b32 v5, 31, v0
    v_lshl_add_u32 v6, v5, 4, v6
    s_lshl_b32 s7, s12, 16
    s_lshl_b32 s13, s13, 9
    s_add_u32 s7, s7, s13
    s_add_u32 s7, s7, {QOFF}
    s_waitcnt lgkmcnt(0)
    s_barrier
    s_cmp_lg_u32 s3, 0
    s_cbranch_scc1 {L('pubwait')}
    """)
    gather4(RED)
    a(f"""
    v_add_f32 v{U+8}, v{U}, v{U+4}
    v_add_f32 v{U+10}, v{U+1}, v{U+5}
    buffer_store_dwordx4 v[{U+8}:{U+11}], v6, s[48:51], s7 offen sc1
    """)
    a.label(L('pubwait'))
    if sbar: a("s_barrier")
    if st2: stamp(6)
    paced[0]=True
    if tp:
        a(f"""
        s_mov_b32 s44, s20
        s_mov_b32 s45, s21
        s_mov_b32 s46, 0x10000000
        s_mov_b32 s47, 0x20000
        v_and_b32 v5, 7, v0
        v_lshlrev_b32 v5, 21, v5
        s_lshl_b32 s7, s4, 24
        s_lshl_b32 s12, s5, 24
        s_mov_b64 exec, 0xff
        buffer_load_dword a255, v5, s[40:43], s7 offen nt
        buffer_load_dword a254, v5, s[44:47], s7 offen nt
        buffer_load_dword a253, v5, s[44:47], s12 offen nt
        s_mov_b64 exec, -1
        """)
        VQ.extend(['tp']*3)
    unit_loads(WF,9,"s[56:59]","s15",3584,'wf')
    a(f"""
    s_lshl_b32 s12, s4, 12
    s_lshl_b32 s13, s3, 10
    s_add_u32 s12, s12, s13
    s_add_u32 s12, s12, {QOFF}
    s_add_u32 s13, s12, 0x10000
    s_add_u32 s14, s12, 0x20000
    s_add_u32 s15, s12, 0x30000
    v_lshlrev_b32 v9, 4, v0
    """)
    def qload(track=True):
        for p in range(4):
            if track: room()
            a(f"buffer_load_dwordx4 v[{W+4*p}:{W+4*p+3}], v9, s[48:51], s{12+p} offen sc1")
            if track: VQ.append('qa')
    emit_fill(pollpos-fpos[0])
    qload()
    emit_fill(999)
    unit(WF,XV+8,'wf',RED+2048)
    a(f"""
    v_and_b32 v7, 1, v0
    v_cmp_eq_u32 vcc, 1, v7
    v_mov_b32 v8, 0xffff
    v_mov_b32 v11, 0xffff0000
    v_cndmask_b32 v8, v8, v11, vcc
    v_bfe_u32 v7, v0, 1, 2
    """)
    for r in range(4):
        a(f"v_cmp_eq_u32 vcc, {r}, v7\nv_cndmask_b32 v{MASK+r}, 0, v8, vcc")
    a(f"""
    v_lshrrev_b32 v7, 2, v0
    v_xor_b32 v7, v7, v0
    v_and_b32 v7, 8, v7
    v_cmp_ne_u32 s[8:9], 0, v7
    s_mov_b32 s10, {f32(CEXP)}
    s_mov_b32 s11, 0
    s_mov_b32 s98, {S2}
    s_mov_b32 s73, 0
    s_lshl_b32 s7, s3, 8
    v_lshlrev_b32 v13, 2, v0
    v_add_u32 v13, s7, v13
    s_mov_b32 s44, 0x01010101
    s_mov_b32 s45, 0x01010101
    """)
    wait_for('qa')
    a.flush()
    a.label(L('qchk'))
    a(f"v_xor_b32 v7, s97, v{W+1}\nv_xor_b32 v8, s97, v{W+3}")
    for i in range(5,16,4):
        a(f"v_xor_b32 v11, s97, v{W+i}\nv_xor_b32 v12, s97, v{W+i+2}\nv_or3_b32 v7, v7, v11, v12")
    a(f"""
    v_or_b32 v7, v7, v8
    v_cmp_ne_u32 vcc, 0, v7
    s_cbranch_vccz {L('qok')}
    s_add_u32 s73, s73, 1
    s_cmp_ge_u32 s73, {spin_max}
    s_cbranch_scc1 {L('qok')}
    """)
    qload(False)
    a(f"s_waitcnt vmcnt(0)\ns_branch {L('qchk')}")
    a.label(L('qok'))
    a(f"""
    v_add_f32 v{W}, v{W}, v{W+4}
    v_add_f32 v{W+2}, v{W+2}, v{W+6}
    v_add_f32 v{W+8}, v{W+8}, v{W+12}
    v_add_f32 v{W+10}, v{W+10}, v{W+14}
    v_add_f32 v{W}, v{W}, v{W+8}
    v_add_f32 v{W+2}, v{W+2}, v{W+10}
    v_cvt_pk_bf16_f32 v7, v{W}, v{W+2}
    ds_write_b32 v13, v7 offset:{QL}
    v_mov_b32 v8, 0
    ds_write_b32 v8, v8 offset:{CN}
    s_waitcnt lgkmcnt(0)
    s_barrier
    ds_read_b128 v[{Q}:{Q+3}], v15 offset:{QL}
    ds_read_b128 v[{Q+4}:{Q+7}], v15 offset:{QL+256}
    v_lshrrev_b32 v15, 3, v0
    v_lshlrev_b32 v15, 3, v15
    s_lshl_b32 s7, s3, 11
    v_add_u32 v14, s7, v15
    s_waitcnt lgkmcnt(0)
    """)
    stamp(1)
    if st2:
        stamp_real=stamp
        def stamp(i):
            if i==7: stamp_real(7)
    def kbody(sl,ring=True,waits=True,tile=None):
        if ring and hoist: ld(sl,0,"s6",'addr')
        for j in range(8):
            kk,h=j>>1,j&1; d=DS+kk*4
            if waits: a(f"s_waitcnt vmcnt({WN})")
            c="0" if h==0 else f"v[{d}:{d+3}]"
            a(f"v_mfma_f32_16x16x32_bf16 v[{d}:{d+3}], {Rr(sl,j)}, v[{Q+h*4}:{Q+h*4+3}], {c}")
            if ring: ld(sl,j,"s6",'load' if hoist else None)
        for kk in range(4):
            d=DS+kk*4; s=S+kk
            a(f"v_mov_b32_dpp v{s}, v{d} quad_perm:[0,0,0,0] {DPPT}")
            for r in range(1,4):
                a(f"v_add_f32_dpp v{s}, v{d+r}, v{s} quad_perm:[{r},{r},{r},{r}] {DPPT}")
        a(f"""
        v_cvt_pk_bf16_f32 v{A[0]}, v{S}, v{S+1}
        v_cvt_pk_bf16_f32 v{A[0]+1}, v{S+2}, v{S+3}
        s_mov_b64 exec, s[44:45]
        ds_write_b64 v14, v[{A[0]}:{A[0]+1}] offset:{SCL+(tile or 0)*64}
        s_mov_b64 exec, -1
        """)
        if tile is None: a("v_add_u32 v14, 64, v14")
        if ring: a("s_add_u32 s6, s6, 0x80000\ns_add_u32 s11, s11, 1")
    qi=max(i for i,t in enumerate(VQ) if t=='qa')
    def pwait(sl):
        last=max(i for i,t in enumerate(VQ) if t==f"f{sl}")
        if last>qi: wait_for(f"f{sl}")
    if not ilv:
        for sl in range(NP):
            pwait(sl); kbody(sl,True,False); VQ.extend(['r']*8)
        for x in range(NX):
            pwait(-(x+1)); kbody(-(x+1),False,False)
    else:
        assert NB==1 and NP==1
        pwait(0); kbody(0,True,False,tile=0); VQ.extend(['r']*8)
        nr=1
        for x in range(NX):
            pwait(-(x+1)); kbody(-(x+1),False,False,tile=1+x)
            if (x+1)%ilv==0 and x+1<NX and all(max(i for i,t in enumerate(VQ) if t==f"f{-(y+1)}")<qi or True for y in range(NX)):
                kbody(0,True,True,tile=NX+nr); VQ.extend(['r']*8); nr+=1
                qi=len(VQ)
        a(f"v_add_u32 v14, {(NX+nr)*64}, v14")
        assert nr<=S2
    a(f"s_cmp_lg_u32 s3, 0\ns_cbranch_scc1 {L('ksubP')}")
    gather4(RED+2048)
    a(f"""
    v_add_f32 v{U+8}, v{U}, v{U+4}
    v_add_f32 v{U+9}, v{U+1}, v{U+5}
    v_lshrrev_b32 v7, 5, v0
    v_mul_u32_u24 v7, 7168, v7
    v_and_b32 v8, 31, v0
    v_lshl_add_u32 v7, v8, 3, v7
    s_lshl_b32 s7, s71, 1
    s_bfe_u32 s73, s2, 0x10002
    s_add_u32 s7, s7, s73
    s_mul_i32 s7, s7, 14336
    s_lshl_b32 s73, s72, 8
    s_add_u32 s7, s7, s73
    s_add_u32 s7, s7, {GU}
    s_cmp_ge_u32 s2, 224
    s_cselect_b32 s7, 0x7fff0000, s7
    v_mov_b32 v124, -1
    v_mov_b32 v125, -1
    v_mov_b32 v126, -1
    v_mov_b32 v127, -1
    v_mov_b32 v123, 0
    v_add_u32 v11, 0x1000, v9
    buffer_store_dwordx2 v[{U+8}:{U+9}], v7, s[48:51], s7 offen sc1
    """)
    for i in range(0 if noclr else 7):
        a(f"buffer_store_dwordx4 v[124:127], v{9 if i<4 else 11}, s[48:51], s68 offen offset:{(i&3)*1024} sc1")
    a(f"""
    s_add_u32 s7, s68, {CNTO}
    s_mov_b64 exec, 1
    buffer_store_dword v123, off, s[48:51], s7 sc1
    s_mov_b64 exec, -1
    s_branch {L('ksubP')}
    """)
    a.label(L('kloop'))
    a(f"s_cmp_eq_u32 s11, s98\ns_cbranch_scc1 {L('ksvc')}")
    a.label(L('kloop2'))
    if lock&1:
        if lock>>4: a(f"s_and_b32 s7, s11, {(lock>>4)}\ns_cbranch_scc1 {L('klk')}")
        a("s_barrier")
        a.label(L('klk'))
    for nb in range(NB):
        if nb==NP: a.label(L('ksubP'))
        kbody(nb)
    if NP==NB: a.label(L('ksubP'))
    a(f"s_cmp_lt_u32 s11, {NK}\ns_cbranch_scc1 {L('kloop')}")
    stamp(5)
    a(f"""
    s_mov_b32 s11, 0
    s_mov_b32 s98, {S3}
    v_mov_b32 v{vM}, 0xff7fffff
    v_mov_b32 v{vL}, 0
    s_lshl_b32 s75, s5, 24
    s_lshl_b32 s15, s4, 2
    s_add_u32 s15, s15, s3
    s_lshl_b32 s15, s15, 13
    s_add_u32 s15, s15, s75
    s_add_u32 s7, s3, {'s4' if rot else '0'}
    s_and_b32 s7, s7, 3
    s_lshl_b32 s7, s7, {13+UB}
    s_add_u32 s75, s75, s7
    s_add_u32 s75, s75, {KS*64*8192}
    s_mov_b32 s76, -1
    s_mul_i32 s47, s5, {64*NSH*64}
    s_add_u32 s47, s47, {SCO}
    s_lshl_b32 s7, s3, 11
    s_add_u32 s7, s7, {NSH*64}
    v_add_u32 v14, s7, v15
    """)
    for i in range(8): a(f"v_mov_b32 v{O+i}, 0")
    a.flush()
    a.label(L('vloop'))
    a(f"s_cmp_eq_u32 s11, s98\ns_cbranch_scc1 {L('vsvc')}")
    a.label(L('vloop2'))
    if lock&2:
        a(f"s_cmp_ge_u32 s11, {NSV}\ns_cbranch_scc1 {L('vlk')}")
        if lock>>4: a(f"s_and_b32 s7, s11, {(lock>>4)}\ns_cbranch_scc1 {L('vlk')}")
        a("s_barrier")
        a.label(L('vlk'))
    SS=DS+4
    for nb in range(NB):
        sc=SCR+2*nb
        a(f"""
        ds_read_b64 v[{SS}:{SS+1}], v14 offset:{SCL}
        v_add_u32 v14, 64, v14
        s_waitcnt vmcnt({8*NB if early else WN})
        """)
        if pair and nb>0:
            a(f"""
            s_add_u32 s78, s14, 0x2000
            s_cmp_ge_u32 s11, {NSV+KS-NB}
            s_cselect_b32 s14, s78, s6
            """)
        else: a(f"""
        v_readfirstlane_b32 s77, v{TK+nb}
        s_add_u32 s79, s11, {NB}
        s_lshl_b32 s78, s77, {15+UB}
        s_add_u32 s78, s78, s75
        s_cmp_ge_u32 s11, {NSV+KS-NB}
        s_cselect_b32 s14, s78, s6
        s_cselect_b32 s77, s77, 0
        s_cselect_b32 s78, {POOL}, 1
        s_cmp_ge_u32 s77, s78
        s_cselect_b32 s42, 0, s42
        s_cselect_b32 s66, 0, s66
        s_cselect_b32 s79, s79, -1
        s_min_u32 s76, s76, s79
        """)
        a(f"""
        s_waitcnt lgkmcnt(0)
        s_cmp_lt_u32 s11, {NSV}
        s_cbranch_scc1 {L(f'vs{nb}')}
        """)
        a(f"""
        v_mov_b32 v{SS}, v{sc}
        v_mov_b32 v{SS+1}, v{sc+1}
        """)
        a.label(L(f'vs{nb}'))
        a(f"""
        s_bfe_u32 s7, s14, 0x6000d
        s_mul_i32 s7, s7, {NSH*64}
        s_bfe_u32 s46, s14, 0x50013
        s_lshl_b32 s46, s46, 6
        s_add_u32 s7, s7, s46
        s_add_u32 s7, s7, s47
        s_cmp_ge_u32 s11, {NSV-NB}
        s_cselect_b32 s7, s7, 0x7fff0000
        s_cmp_eq_u32 s42, 0
        s_cselect_b32 s7, 0x7fff0000, s7
        """)
        if not (pair and nb>0): a(f"""
        v_mov_b32 v{TK+nb}, 1
        s_mov_b64 exec, 1
        buffer_atomic_add v{TK+nb}, off, s[64:67], 0 sc0
        s_mov_b64 exec, -1
        """)
        if hoist: ld(nb,0,"s14",'addr')
        a(f"""
        buffer_load_dwordx2 v[{sc}:{sc+1}], v15, s[48:51], s7 offen sc1
        v_lshlrev_b32 v{S}, 16, v{SS}
        v_and_b32 v{S+1}, 0xffff0000, v{SS}
        v_lshlrev_b32 v{S+2}, 16, v{SS+1}
        v_and_b32 v{S+3}, 0xffff0000, v{SS+1}
        v_max3_f32 v7, v{S}, v{S+1}, v{S+2}
        v_max3_f32 v7, v7, v{S+3}, v{vM}
        v_mov_b32 v8, v7
        v_permlane16_swap_b32 v8, v7
        v_max_f32 v7, v7, v8
        v_mov_b32 v8, v7
        v_permlane32_swap_b32 v8, v7
        v_max_f32 v7, v7, v8
        v_sub_f32 v8, v{vM}, v7
        v_mul_f32 v8, s10, v8
        v_exp_f32 v8, v8
        v_mov_b32 v{vM}, v7
        v_mul_f32 v9, s10, v7
        v_mov_b32_dpp v10, v8 row_ror:8 {DPPT}
        v_mul_f32 v{vL}, v{vL}, v8
        v_cndmask_b32 v10, v8, v10, s[8:9]
        """)
        for i in range(8): a(f"v_mul_f32 v{O+i}, v{O+i}, v10")
        for kk in range(4): a(f"v_fma_f32 v{S+kk}, v{S+kk}, s10, -v9")
        for kk in range(4): a(f"v_exp_f32 v{S+kk}, v{S+kk}")
        for kk in range(4):
            Ar=A[kk&1]
            a(f"v_cvt_pk_bf16_f32 v11, v{S+kk}, v{S+kk}")
            a(f"v_add_f32 v{vL}, v{vL}, v{S+kk}")
            for r in range(4): a(f"v_and_b32 v{Ar+r}, v11, v{MASK+r}")
            for h in range(2):
                j=kk*2+h; o=O+h*4
                if j or early: a(f"s_waitcnt vmcnt({WV})")
                a(f"v_mfma_f32_16x16x32_bf16 v[{o}:{o+3}], v[{Ar}:{Ar+3}], {Rr(nb,j)}, v[{o}:{o+3}]")
                ld(nb,j,"s14",'load' if hoist else None)
        a(f"""
        s_add_u32 s6, s6, 0x80000
        s_add_u32 s11, s11, 1
        s_cmp_eq_u32 s11, {NSV-NB}
        s_cselect_b32 s6, s15, s6
        s_cmp_eq_u32 s11, s76
        """)
        if nb<NB-1: a(f"s_cbranch_scc1 {L('sdone')}")
        else: a(f"s_cbranch_scc0 {L('vloop')}")
    a(f"s_branch {L('sdone')}")
    a.label(L('ksvc'))
    a(f"""
    s_cmp_eq_u32 s11, {SRD}
    s_cbranch_scc1 {L('rdy')}
    s_cmp_eq_u32 s11, {SKV}
    s_cbranch_scc1 {L('kv')}
    s_cmp_eq_u32 s11, {S2}
    s_cbranch_scc1 {L('svc2b')}
    s_mov_b32 s98, {SRD}
    v_lshlrev_b32 v7, 4, v0
    s_lshl_b32 s7, s3, 11
    v_add_u32 v8, s7, v7
    ds_read_b128 v[{GR}:{GR+3}], v8 offset:{SCL}
    ds_read_b128 v[{GR+4}:{GR+7}], v8 offset:{SCL+1024}
    s_lshl_b32 s7, s4, 4
    s_add_u32 s7, s7, s5
    s_lshl_b32 s7, s7, 2
    s_add_u32 s7, s7, s3
    s_mul_i32 s7, s7, {NSH*64}
    s_add_u32 s7, s7, {SCO}
    v_cmp_gt_u32 vcc, {min(NSH*4,64)}, v0
    v_cmp_gt_u32 s[46:47], {max(NSH*4-64,0)}, v0
    s_waitcnt lgkmcnt(0)
    s_mov_b64 exec, vcc
    buffer_store_dwordx4 v[{GR}:{GR+3}], v7, s[48:51], s7 offen sc1
    """)
    if NSH>16: a(f"s_mov_b64 exec, s[46:47]\nbuffer_store_dwordx4 v[{GR+4}:{GR+7}], v7, s[48:51], s7 offen offset:1024 sc1")
    a(f"s_mov_b64 exec, -1\ns_branch {L('kloop2')}")
    a.label(L('svc2b'))
    a(f"""
    s_mov_b32 s98, {SPB}
    s_mov_b32 s52, s24
    s_mov_b32 s53, s25
    s_mov_b32 s54, {4096*896}
    s_mov_b32 s56, s32
    s_mov_b32 s57, s33
    s_mov_b32 s58, {1792*896}
    v_lshrrev_b32 v7, 4, v0
    v_and_b32 v10, 15, v0
    v_lshlrev_b32 v10, 4, v10
    v_mul_u32_u24 v11, {8*896}, v7
    v_add_u32 v11, v11, v10
    s_mul_i32 s71, s69, {32*896}
    s_lshl_b32 s72, s3, 8
    s_add_u32 s71, s71, s72
    s_add_u32 s73, s71, {4*896}
    """)
    a(f"s_cmp_eq_u32 s3, 3\ns_cbranch_scc1 {L('nopre')}")
    for kk in range(8):
        r=WO+kk*4
        a(f"buffer_load_dwordx4 a[{r}:{r+3}], v11, s[52:55], s{71 if kk<4 else 73} offen offset:{(kk&3)*896}{wf}")
    a(f"""
    v_mul_u32_u24 v12, {4*896}, v7
    v_add_u32 v12, v12, v10
    s_mul_i32 s7, s69, {14*896}
    s_add_u32 s7, s7, s72
    """)
    for kk in range(4):
        r=W2+kk*4
        a(f"buffer_load_dwordx4 a[{r}:{r+3}], v12, s[56:59], s7 offen offset:{kk*896}{wf}")
    a(f"s_cmp_lg_u32 s3, 2\ns_cbranch_scc1 {L('nopre')}\ns_waitcnt vmcnt(20)")
    for kk in range(8):
        r=WOb+kk*4
        a(f"buffer_load_dwordx4 a[{r}:{r+3}], v11, s[52:55], s{71 if kk<4 else 73} offen offset:{(kk&3)*896+256}{wf}")
    for kk in range(4):
        r=W2b+kk*4
        a(f"buffer_load_dwordx4 a[{r}:{r+3}], v12, s[56:59], s7 offen offset:{kk*896+256}{wf}")
    a.label(L('nopre'))
    a(f"""
    s_lshl_b32 s74, s69, 3
    s_mul_i32 s72, s70, 896
    s_add_u32 s74, s74, s72
    v_and_b32 v11, {(1<<RK)-1}, v0
    v_lshl_add_u32 v11, v11, 2, v7
    v_lshlrev_b32 v{XR+1}, 1, v11
    buffer_load_ushort v{XR}, v{XR+1}, s[60:63], s74 offen
    s_mov_b32 s73, 0
    s_branch {L('kloop2')}
    """)
    a.label(L('rdy'))
    delay('rdy')
    a(f"""
    s_mov_b32 s98, {SKV}
    v_mov_b32 v7, s97
    s_lshl_b32 s7, s2, 2
    s_add_u32 s7, s7, s3
    s_lshl_b32 s7, s7, 2
    s_add_u32 s7, s7, {RDY}
    s_waitcnt vmcnt({WN})
    s_mov_b64 exec, 1
    buffer_store_dword v7, off, s[48:51], s7 sc1
    s_mov_b64 exec, -1
    """)
    if SRD!=SKV: a(f"s_branch {L('kloop2')}")
    a.label(L('kv'))
    a(f"""
    s_mov_b32 s98, -1
    s_mov_b32 s40, s20
    s_mov_b32 s41, s21
    s_add_u32 s6, s99, {NSH*0x80000}
    v_mov_b32 v{PO[0]}, v{PO[0] if patC else VO[0]}
    v_mov_b32 v{PO[1]}, v{PO[1] if patC else VO[1]}
    s_branch {L('kloop2')}
    """)
    a.label(L('vsvc'))
    a(f"""
    s_cmp_eq_u32 s11, {S4}
    s_cbranch_scc1 {L('svc4')}
    s_cmp_eq_u32 s11, {S5}
    s_cbranch_scc1 {L('switch')}
    s_mov_b32 s98, {S4}
    v_lshlrev_b32 v13, 4, v0
    s_mov_b32 s7, {RDY}
    """)
    def rload():
        for i in range(4): a(f"buffer_load_dwordx4 v[{RD+4*i}:{RD+4*i+3}], v13, s[48:51], s7 offen offset:{1024*i} sc1")
    rload()
    a(f"s_branch {L('vloop2')}")
    a.label(L('svc4'))
    a(f"""
    s_mov_b32 s98, {S5}
    s_mov_b32 s71, 0
    s_mov_b32 s7, {RDY}
    s_waitcnt vmcnt({WN})
    """)
    a.flush()
    a.label(L('rchk'))
    a(f"""
    v_min3_u32 v7, v{RD}, v{RD+1}, v{RD+2}
    v_max3_u32 v8, v{RD}, v{RD+1}, v{RD+2}
    """)
    for i in range(3,15,2): a(f"v_min3_u32 v7, v7, v{RD+i}, v{RD+i+1}\nv_max3_u32 v8, v8, v{RD+i}, v{RD+i+1}")
    a(f"""
    v_min_u32 v7, v7, v{RD+15}
    v_max_u32 v8, v8, v{RD+15}
    v_xor_b32 v7, s97, v7
    v_xor_b32 v8, s97, v8
    v_or_b32 v7, v7, v8
    v_cmp_ne_u32 vcc, 0, v7
    s_cbranch_vccz {L('rok')}
    s_add_u32 s71, s71, 1
    s_cmp_ge_u32 s71, {spin_max}
    s_cbranch_scc1 {L('rok')}
    s_sleep 16
    """)
    rload()
    a(f"s_waitcnt vmcnt(0)\ns_branch {L('rchk')}")
    a.label(L('rok'))
    if KS==0: a("s_mov_b32 s66, 4")
    a(f"""
    v_lshrrev_b32 v7, 4, v0
    v_lshlrev_b32 v11, 4, v7
    s_mul_i32 s71, s69, 56
    s_mul_i32 s72, s70, 7168
    s_add_u32 s71, s71, s72
    s_add_u32 s71, s71, {GU}
    """)
    for pm in range(8):
        a(f"buffer_load_dwordx4 v[{GR+4*pm}:{GR+4*pm+3}], v11, s[48:51], s71 offen sc1")
        if pm<7: a("s_add_u32 s71, s71, 14336")
    a(f"""
    s_or_b32 s7, s2, s3
    s_cmp_lg_u32 s7, 0
    s_cbranch_scc1 {L('vloop2')}
    v_mov_b32 v7, s97
    s_mov_b32 s7, {EPO}
    s_mov_b64 exec, 1
    buffer_store_dword v7, off, s[48:51], s7 sc1
    s_mov_b64 exec, -1
    s_branch {L('vloop2')}
    """)
    a.label(L('switch'))
    delay('switch')
    a(f"s_mov_b32 s98, -1\ns_waitcnt vmcnt({WN})")
    if touch:
        a("s_mov_b32 s60, s34\ns_mov_b32 s61, s35\nbuffer_load_dword a180, off, s[60:63], 0")
    if warm&2:
        a("s_getpc_b64 s[52:53]")
        a.label(L('pc2'))
        a(f"""
        s_mov_b32 s54, {L('end2')}-{L('pc2')}
        v_lshlrev_b32 v7, 4, v0
        s_lshl_b32 s7, s3, 10
        buffer_load_dwordx4 a[176:179], v7, s[52:55], s7 offen
        """)
    aW,aM,aR,aS1,aS2,aP1,aP2,aH2,aP3,aCF,aRow,xres=66,67,68,70,71,72,73,74,75,76,77,78
    def lred():
        a(f"""
        v_mov_b32 v8, v{vL}
        v_permlane16_swap_b32 v8, v{vL}
        v_add_f32 v{vL}, v{vL}, v8
        v_mov_b32 v8, v{vL}
        v_permlane32_swap_b32 v8, v{vL}
        v_add_f32 v{vL}, v{vL}, v8
        """)
    def ldswrite(st):
        a(f"""
        ds_write_b128 v{aW}, v[{O}:{O+3}] offset:{OP+st*8192}
        ds_write_b128 v{aW}, v[{O+4}:{O+7}] offset:{OP+st*8192+512}
        ds_write_b32 v{aM}, v{vM} offset:{ML+st*64}
        ds_write_b32 v{aM}, v{vL} offset:{ML+st*64+16}
        """)
    def combine(vr,vm,off,moff,sO,sM,T,C,R):
        a(f"ds_read_b128 v[{T}:{T+3}], v{vm} offset:{ML+moff}\nds_read_b128 v[{T+4}:{T+7}], v{vm} offset:{ML+moff+16}")
        for w in range(4): a(f"ds_read_b128 v[{C+4*w}:{C+4*w+3}], v{vr} offset:{OP+off+w*2048}")
        a(f"s_waitcnt lgkmcnt(4)\nv_max3_f32 v{R+4}, v{T}, v{T+1}, v{T+2}\nv_max_f32 v{R+4}, v{R+4}, v{T+3}")
        for w in range(4): a(f"v_sub_f32 v{T+w}, v{T+w}, v{R+4}")
        for w in range(4): a(f"v_mul_f32 v{T+w}, s10, v{T+w}")
        for w in range(4): a(f"v_exp_f32 v{T+w}, v{T+w}")
        a(f"v_mul_f32 v{R+5}, v{T}, v{T+4}")
        for w in range(1,4): a(f"v_fmac_f32 v{R+5}, v{T+w}, v{T+4+w}")
        a("s_waitcnt lgkmcnt(0)")
        for e in range(4): a(f"v_mul_f32 v{R+e}, v{T}, v{C+e}")
        for w in range(1,4):
            for e in range(4): a(f"v_fmac_f32 v{R+e}, v{T+w}, v{C+4*w+e}")
        for e in range(6): a(f"v_min_u32 v{R+e}, -2, v{R+e}")
        a(f"""
        buffer_store_dwordx4 v[{R}:{R+3}], v{aS1}, s[48:51], {sO} offen sc1
        s_mov_b64 exec, s[44:45]
        buffer_store_dwordx2 v[{R+4}:{R+5}], v{aS2}, s[48:51], {sM} offen sc1
        s_mov_b64 exec, -1
        """)
    lred()
    a(f"""
    v_lshrrev_b32 v7, 5, v0
    v_lshlrev_b32 v7, 10, v7
    v_and_b32 v12, 15, v0
    v_lshl_add_u32 v7, v12, 5, v7
    v_bfe_u32 v8, v0, 4, 1
    v_lshl_add_u32 v7, v8, 4, v7
    s_lshl_b32 s7, s3, 11
    v_add_u32 v{aW}, s7, v7
    v_bfe_u32 v7, v0, 3, 1
    v_lshlrev_b32 v7, 5, v7
    s_lshl_b32 s7, s3, 2
    v_add_u32 v{aM}, s7, v7
    """)
    ldswrite(0)
    a(f"""
    v_lshrrev_b32 v7, 3, v0
    v_lshlrev_b32 v{aS2}, 13, v7
    v_and_b32 v7, 7, v0
    v_lshl_add_u32 v{aS1}, v7, 4, v{aS2}
    v_lshrrev_b32 v11, 4, v0
    v_lshlrev_b32 v7, 7, v12
    v_lshl_add_u32 v{aP1}, v11, 5, v7
    v_lshlrev_b32 v7, 3, v12
    v_add_u32 v{aP2}, {H1ML}, v7
    v_lshl_add_u32 v9, v12, 1, v8
    s_lshl_b32 s7, s3, 5
    s_lshl_b32 s12, s70, 7
    s_add_u32 s7, s7, s12
    s_lshr_b32 s12, s69, {7-RK}
    s_add_u32 s7, s7, s12
    v_and_b32 v7, {(1<<RK)-1}, v9
    v_sub_u32 v9, v9, v7
    v_add_u32 v9, s7, v9
    v_lshlrev_b32 v9, 13, v9
    v_lshl_add_u32 v{aH2}, v7, 4, v9
    v_cmp_gt_u32 s[72:73], 32, v0
    v_cmp_gt_u32 vcc, 8, v12
    s_and_b64 s[54:55], s[72:73], vcc
    v_cmp_gt_u32 s[56:57], {1<<RK}, v12
    s_and_b32 s52, s69, {(128>>RK)-1}
    s_lshl_b32 s52, s52, {4+RK}
    s_add_u32 s52, s52, {H2}
    s_add_u32 s53, s52, {32*INB}
    v_lshlrev_b32 v{aR}, 4, v0
    v_add_u32 v{aP3}, {H2}, v{aR}
    v_lshlrev_b32 v{aCF}, 5, v11
    v_mov_b32 v{aRow}, v{XR+1}
    v_lshlrev_b32 v{xres}, 16, v{XR}
    s_mov_b32 s60, s34
    s_mov_b32 s61, s35
    v_mov_b32 v7, 0
    v_mov_b32 v8, 1
    s_waitcnt lgkmcnt(0)
    s_mov_b64 exec, 1
    ds_add_rtn_u32 v9, v7, v8 offset:{CN}
    s_mov_b64 exec, -1
    """)
    for i in range(8): a(f"v_mov_b32 v{O+i}, 0")
    a(f"""
    v_mov_b32 v{vM}, 0xff7fffff
    v_mov_b32 v{vL}, 0
    {'s_nop 0' if KS==0 else 's_mov_b32 s66, '+str(4 if dyn else 0)}
    v_mov_b32 v14, v15
    s_and_b32 s7, s3, 1
    s_lshl_b32 s7, s7, 3
    s_lshl_b32 s58, s5, 4
    s_add_u32 s58, s58, s7
    s_lshl_b32 s58, s58, 13
    s_add_u32 s7, s4, 16
    s_lshl_b32 s12, s7, 7
    s_add_u32 s12, s12, s58
    s_lshl_b32 s13, s7, 3
    s_add_u32 s13, s13, s58
    s_add_u32 s13, s13, {H1ML}
    s_waitcnt lgkmcnt(0)
    v_readfirstlane_b32 s7, v9
    s_cmp_lg_u32 s7, 3
    s_cbranch_scc1 {L('nopub')}
    s_lshl_b32 s58, s4, 17
    s_lshl_b32 s7, s5, 7
    s_add_u32 s7, s7, s58
    s_lshl_b32 s59, s5, 3
    s_add_u32 s59, s59, s58
    s_add_u32 s59, s59, {H1ML}
    """)
    combine(aR,7,0,0,"s7","s59",A[0],DS,84)
    a(f"s_add_u32 s7, s7, {8*INB}\ns_add_u32 s59, s59, {8*INB}")
    combine(aR,7,1024,32,"s7","s59",A[0],DS,8)
    a.label(L('nopub'))
    a(f"""
    s_and_b32 s7, s3, 1
    s_lshl_b32 s58, s7, 10
    v_add_u32 v{aR}, s58, v{aR}
    s_lshl_b32 s7, s7, 5
    v_mov_b32 v69, s7
    """)
    for m in range(2):
        for q in range(4):
            g=GR+4*m+q
            a(f"v_add_f32 v{g}, v{g}, v{g+8}\nv_add_f32 v{g+16}, v{g+16}, v{g+24}\nv_add_f32 v{g}, v{g}, v{g+16}")
    for q in range(4):
        a(f"""
        v_cvt_pk_bf16_f32 v7, v{GR+q}, v{GR+4+q}
        v_and_b32 v8, 0xffff0000, v7
        v_lshlrev_b32 v7, 16, v7
        v_mul_f32 v9, {f32(-math.log2(math.e))}, v7
        v_exp_f32 v9, v9
        v_add_f32 v9, 1.0, v9
        v_rcp_f32 v9, v9
        v_mul_f32 v9, v9, v7
        v_cvt_pk_bf16_f32 v9, v9, v9
        v_lshlrev_b32 v9, 16, v9
        v_mul_f32 v9, v9, v8
        v_cvt_pk_bf16_f32 v{HC+q}, v9, v9
        """)
    a(f"""
    v_cmp_gt_u32 vcc, 48, v0
    v_cndmask_b32 v{HC+2}, 0, v{HC+2}, vcc
    v_cndmask_b32 v{HC+3}, 0, v{HC+3}, vcc
    """)
    for kk in range(4):
        Ar=A[kk&1]
        for q in range(4): a(f"v_and_b32 v{Ar+q}, v{HC+kk}, v{MASK+q}")
        for Dd,Wb in ((D,W2),(D2,W2b)):
            r=Wb+kk*4
            c="0" if kk==0 else f"v[{Dd}:{Dd+3}]"
            a(f"v_mfma_f32_16x16x32_bf16 v[{Dd}:{Dd+3}], v[{Ar}:{Ar+3}], a[{r}:{r+3}], {c}")
    a(f"s_cmp_lg_u32 s11, s76\ns_cbranch_scc1 {L('vloop2')}")
    a.label(L('sdone'))
    a(f"s_cmp_lg_u32 s98, -1\ns_cbranch_scc1 {L('switch')}")
    TAIL(a,L,locals())
    return a.text(), kd(K,512,102,256), LDS

def TAIL(a,L,E):
    g=lambda n: E[n]
    vL,vM,O,OP,ML,DS,A,MASK,D,D2,WO,WOb,CF=[g(n) for n in "vL vM O OP ML DS A MASK D D2 WO WOb CF".split()]
    stamp,stamps,skip_tail,spin_max=[g(n) for n in "stamp stamps skip_tail spin_max".split()]
    aR,aP1,aP2,aH2,aP3,aCF,aRow,xres=[g(n) for n in "aR aP1 aP2 aH2 aP3 aCF aRow xres".split()]
    outf=g("outf")
    stamp(2)
    g("lred")(); g("ldswrite")(1)
    a("s_mov_b32 s71, 0\ns_waitcnt lgkmcnt(0)\ns_barrier")
    stamp(3)
    if skip_tail: a(f"s_branch {L('end')}")
    b1=g("b1")
    a(f"s_cmp_eq_u32 s3, 3\ns_cbranch_scc1 {L('p1s')}\ns_cmp_eq_u32 s3, 2\ns_cbranch_scc1 {L('p1x')}")
    g("combine")(aR,69,8192,64,"s12","s13",96,DS,104)
    stamp(4)
    if b1==2: a("s_waitcnt vmcnt(0)")
    a.label(L('p1x'))
    if b1: a("s_barrier")
    a(f"s_branch {L('p1w')}")
    a.label(L('p1s'))
    if b1: a("s_barrier")
    if g("d1"): a(f"s_sleep {g('d1')}")
    PO=DS; PM=96; PR=104
    for half,nm,nxt in ((0,'p1a','p1b'),(1,'p1b','p1d')):
        o=PO+8*half; m=PM+2*half
        a.label(L(nm))
        a(f"""
        buffer_load_dwordx4 v[{o}:{o+3}], v{aP1}, s[48:51], s68 offen offset:{2048*half} sc1
        buffer_load_dwordx4 v[{o+4}:{o+7}], v{aP1}, s[48:51], s68 offen offset:{2048*half+16} sc1
        buffer_load_dwordx2 v[{m}:{m+1}], v{aP2}, s[48:51], s68 offen offset:{128*half} sc1
        """)
        if half==0:
            a(f"""
            buffer_load_dwordx4 v[{o+8}:{o+11}], v{aP1}, s[48:51], s68 offen offset:2048 sc1
            buffer_load_dwordx4 v[{o+12}:{o+15}], v{aP1}, s[48:51], s68 offen offset:2064 sc1
            buffer_load_dwordx2 v[{m+2}:{m+3}], v{aP2}, s[48:51], s68 offen offset:128 sc1
            """)
        a("s_waitcnt vmcnt(0)")
        if half==1: a.label(L('p1c'))
        a(f"""
        v_max3_u32 v12, v{o}, v{o+1}, v{o+2}
        v_max3_u32 v13, v{o+3}, v{o+4}, v{o+5}
        v_max3_u32 v12, v12, v{o+6}, v{o+7}
        v_max3_u32 v13, v13, v{m}, v{m+1}
        v_max_u32 v12, v12, v13
        v_cmp_eq_u32 vcc, -1, v12
        s_add_u32 s71, s71, 1
        s_cmp_ge_u32 s71, {spin_max}
        s_cbranch_scc1 {L('p1d')}
        """)
        if half==0:
            a(f"s_cbranch_vccnz {L('p1a')}\ns_branch {L('p1c')}")
        else:
            a(f"s_cbranch_vccz {L('p1d')}\ns_mov_b64 exec, vcc\ns_branch {L('p1b')}")
    a.label(L('p1d'))
    a("s_mov_b64 exec, -1")
    stamp(5)
    a(f"v_max_f32 v12, v{PM}, v{PM+2}")
    for m in R16: a(f"v_max_f32_dpp v12, v12, v12 {m} {DPPT}")
    a(f"""
    v_sub_f32 v10, v{PM}, v12
    v_sub_f32 v11, v{PM+2}, v12
    v_mul_f32 v10, s10, v10
    v_mul_f32 v11, s10, v11
    v_exp_f32 v10, v10
    v_exp_f32 v11, v11
    v_mul_f32 v13, v10, v{PM+1}
    v_fmac_f32 v13, v11, v{PM+3}
    """)
    for q in range(8): a(f"v_mul_f32 v{PR+q}, v{PO+q}, v10")
    for q in range(8): a(f"v_fmac_f32 v{PR+q}, v{PO+8+q}, v11")
    for m in R16:
        a(f"v_add_f32_dpp v13, v13, v13 {m} {DPPT}")
        for q in range(8): a(f"v_add_f32_dpp v{PR+q}, v{PR+q}, v{PR+q} {m} {DPPT}")
    a("v_rcp_f32 v13, v13")
    for q in range(8): a(f"v_mul_f32 v{PR+q}, v{PR+q}, v13")
    for q in range(8): a(f"v_cvt_pk_bf16_f32 v{PR+q}, v{PR+q}, v{PR+q}")
    a(f"""
    ds_write_b128 v{aCF}, v[{PR}:{PR+3}] offset:{CF}
    ds_write_b128 v{aCF}, v[{PR+4}:{PR+7}] offset:{CF+16}
    s_mov_b32 s71, 0
    s_waitcnt lgkmcnt(0)
    s_barrier
    s_cmp_ge_u32 s69, 112
    s_cbranch_scc1 {L('end')}
    s_and_b32 s7, s69, {(1<<g("RK"))-1}
    s_cbranch_scc1 {L('end')}
    s_add_u32 s12, s68, {INB}
    s_add_u32 s13, s68, {2*INB}
    s_add_u32 s14, s68, {3*INB}
    """)
    RK=g("RK"); NL=2<<RK
    if g("b3"): a("s_barrier")
    P2=112; PL=128
    if g("d2"): a(f"s_sleep {g('d2')}")
    a.label(L('p2'))
    for i in range(NL):
        so=["s68","s12","s13","s14"][i>>1]
        a(f"buffer_load_dwordx4 v[{PL+4*i}:{PL+4*i+3}], v{aP3}, s[48:51], {so} offen offset:{1024*(i&1)} sc1")
    a(f"s_waitcnt vmcnt(0)\nv_max_u32 v12, v{PL}, v{PL+1}")
    for i in range(2,4*NL,2): a(f"v_max3_u32 v12, v12, v{PL+i}, v{PL+i+1}")
    a(f"""
    v_cmp_eq_u32 vcc, -1, v12
    s_add_u32 s71, s71, 1
    s_cmp_ge_u32 s71, {spin_max}
    s_cbranch_scc1 {L('p2d')}
    s_cbranch_vccz {L('p2d')}
    s_mov_b64 exec, vcc
    s_branch {L('p2')}
    """)
    a.label(L('p2d'))
    a("s_mov_b64 exec, -1")
    stamp(6)
    for q in range(4): a(f"v_add_f32 v{P2+q}, v{PL+q}, v{PL+4+q}")
    for i in range(2,NL):
        for q in range(4): a(f"v_add_f32 v{P2+q}, v{P2+q}, v{PL+4*i+q}")
    a(f"""
    v_permlane16_swap_b32 v{P2}, v{P2+1}
    v_permlane16_swap_b32 v{P2+2}, v{P2+3}
    v_add_f32 v{P2}, v{P2}, v{P2+1}
    v_add_f32 v{P2+2}, v{P2+2}, v{P2+3}
    v_permlane32_swap_b32 v{P2}, v{P2+2}
    v_add_f32 v{P2}, v{P2}, v{P2+2}
    """)
    for m in ("quad_perm:[1,0,3,2]","quad_perm:[2,3,0,1]","row_ror:4","row_ror:8")[RK:]: a(f"v_add_f32_dpp v{P2}, v{P2}, v{P2} {m} {DPPT}")
    a(f"""
    v_add_f32 v{P2}, v{P2}, v{xres}
    v_cvt_pk_bf16_f32 v{P2}, v{P2}, v{P2}
    s_mov_b64 exec, s[56:57]
    buffer_store_short v{P2}, v{aRow}, s[60:63], s74 offen{outf}
    s_branch {L('end')}
    """)
    a.label(L('p1w'))
    CR=112
    a(f"""
    s_barrier
    ds_read_b128 v[{CR}:{CR+3}], v{aCF} offset:{CF}
    ds_read_b128 v[{CR+4}:{CR+7}], v{aCF} offset:{CF+16}
    s_waitcnt lgkmcnt(0)
    """)
    for kk in range(8):
        Ar=A[kk&1]
        for q in range(4): a(f"v_and_b32 v{Ar+q}, v{CR+kk}, v{MASK+q}")
        for Dd,Wb in ((D,WO),(D2,WOb)):
            r=Wb+kk*4
            a(f"v_mfma_f32_16x16x32_bf16 v[{Dd}:{Dd+3}], v[{Ar}:{Ar+3}], a[{r}:{r+3}], v[{Dd}:{Dd+3}]")
    for q in range(4): a(f"v_min_u32 v{D+q}, -2, v{D+q}")
    a(f"""
    s_mov_b64 exec, s[72:73]
    buffer_store_dwordx4 v[{D}:{D+3}], v{aH2}, s[48:51], s52 offen sc1
    s_cmp_lg_u32 s3, 2
    s_cbranch_scc1 {L('pe')}
    s_mov_b64 exec, s[54:55]
    """)
    for q in range(4): a(f"v_min_u32 v{D2+q}, -2, v{D2+q}")
    a(f"buffer_store_dwordx4 v[{D2}:{D2+3}], v{aH2}, s[48:51], s53 offen sc1")
    a.label(L('pe'))
    if g("b3")==2: a("s_waitcnt vmcnt(0)")
    if g("b3"): a("s_barrier")
    stamp(1)
    a.label(L('end'))
    if stamps:
        a("s_waitcnt vmcnt(0)")
        stamp(7)
        a(f"""
        s_mov_b64 exec, 1
        s_mov_b32 s50, 0x1000000
        s_lshl_b32 s11, s2, 2
        s_add_u32 s11, s11, s96
        s_lshl_b32 s11, s11, 6
        s_add_u32 s11, s11, {STO}
        """)
        for i in range(4):
            for q in range(4): a(f"v_mov_b32 v{4+q}, s{80+4*i+q}")
            a(f"buffer_store_dwordx4 v[4:7], off, s[48:51], s11 offset:{16*i}")
    a.label(L('end2'))
    a("s_endpgm")

DOC = """;
; ---------------------------------------------------------------------------------------------
;           handed over through d_ws as {value,tag} granules (tag = epoch word found in d_ws + 1), while the
;           the clears / partials before their first use.  All hand-offs use sc1 stores and sc1 loads.
; ---------------------------------------------------------------------------------------------
"""
def write_main(path, **kw):
    t,kd1,lds=gen_main(**kw)
    s=HDR
    s+=f"; @launch grid=(256,1,1) block=(256,1,1) lds={lds}\n"+DOC
    s+='.amdgcn_target "amdgcn-amd-amdhsa--gfx950"\n.text\n'+t+'.section .rodata,"a"\n'+kd1
    open(path,"w").write(s)
if __name__=="__main__":
    write_main("cdna_kernels/"+NAME+".s")
```

```python
import struct, sys, math
from asmlib import Asm
from gen2 import f32, kd, layernorm, R16, DPPT, NAME, HDR
INB=8192; H1ML=4096; H2=4608; CNTO=7168
QOFF=256*INB
GU=QOFF+262144
RDY=GU+16*7168+1024
EPO=RDY+4096
SCO=3<<20
WSB=SCO+(2<<20)
STO=8<<20

def gen_main(K=NAME+"_kernel", NB=1, NX=7, NSV=23, spin_max=1<<17, stamps=False, dyn=True, skip_tail=False,
             kf=' nt', poll1='one', sched=(8,8,8,0), pollpos=48, sbar=True, exp=0, KS0=True, NPo=1, warm=0, st2=False, touch=False, PD=1, pmask=True, ps1=0, ps2=0, noclr=False, ldsz=81920+1024, vf=None, swz=0, perm=0, xp=0, ip=None, sp=None, bp=(13,14,15,16,21,18,17,23,22,19,20), pair=False, WNo=6, early=True, WVo=7, pace=None, ilv=0, outf='', rot=True, d2=0, d1=0, b3=2, b1=0, lock=0, dly=None, wf=' nt', uf=' nt', hoist=True, patC=0, RK=0, tp=0, kfirst=0, late=1, tl=0):
    a=Asm(); L=lambda s: f"L_{K[-12:]}_{s}"
    CEXP=math.log2(math.e)/16.0
    OP=0; ML=16384; XN=16640; RED=XN+3584; CF=RED+4096; QL=CF+256; SCL=QL+1024; LDS=ldsz
    NK=32-NX
    NP=max(NB//2,1) if NPo is None else NPo
    assert NK%NB==0 and NSV%NB==0
    KS=(0 if KS0 else 2*NB) if dyn else 32-NSV
    POOL=((32-NSV-KS)*64)//4//(NB if pair else 1)
    UB={1:0,2:1,4:2}[NB] if pair else 0
    NSH=32-NSV
    S2=NB if not ilv else 4; SPB=max(S2+NB,((NSH-NX+NB-1)//NB)*NB,2*NB); SKV=NK-NB
    S3,S4,S5=(NSV-3*NB, NSV-2*NB, NSV) if KS==0 else (NSV-2*NB, NSV-NB, NSV)
    SRD=SPB+2*NB
    assert S2<SPB and SRD<=SKV and S3>=0
    WN=8*NB-1 if WNo is None else WNo
    assert WN<=8*NB-1
    WV=WN if WVo is None else WVo
    assert WV<=8*NB+(0 if pair else 1)
    def delay(pt):
        if dly and dly[1]==pt:
            a(f"s_cmp_lg_u32 s2, {dly[0]}\ns_cbranch_scc1 {L('dl')}")
            for _ in range(dly[2]): a("s_sleep 127")
            a.label(L('dl'))
    def stamp(i):
        if stamps: a(f"s_memrealtime s[{80+2*i}:{81+2*i}]\ns_waitcnt lgkmcnt(0)")
    PO=[1,2]; VO=[3,4]; vM=5; vL=6
    MASK=16; Q=20; TK=20; O=28; DS=36; HC=84; A=[52,56]; S=60
    aWO,aW2=24,25
    SCR=64; SV=80; XR=90; D=92; RD=96; GR=96; RING=128
    XB=0; WO=128; WOb=160; W2=192; W2b=208
    D2=80; CN=SCL+8192
    NA=8
    assert RING+NB*32+max(NX-NA,0)*32<=256
    def Rr(sl,j):
        if sl<-NA: sl=NB+(-sl-NA-1)
        return (f"v[{RING+sl*32+j*4}:{RING+sl*32+j*4+3}]" if sl>=0 else f"a[{XB+(-sl-1)*32+j*4}:{XB+(-sl-1)*32+j*4+3}]")
    a.raw(f".globl {K}\n.p2align 8\n.type {K},@function\n{K}:")
    a(f"""
    s_cmp_ge_u32 s2, 256
    s_cbranch_scc1 {L('end2')}
    s_load_dwordx16 s[16:31], s[0:1], 0
    s_load_dwordx8 s[32:39], s[0:1], 64
    v_lshrrev_b32 v1, 6, v0
    v_lshrrev_b32 v12, 3, v0
    v_and_b32 v0, 63, v0
    v_readfirstlane_b32 s3, v1
    s_and_b32 s4, s2, 15
    s_lshr_b32 s5, s2, 4
    """)
    if stamps:
        for i in range(80,96): a(f"s_mov_b32 s{i}, 0")
        a("s_mov_b32 s96, s3")
    stamp(0)
    delay('start')
    if st2: stamp(2)
    XD=20; W=28; WF=44; XF=60; XV=76; ACC=92; U=108
    XPART=f"""
    v_and_b32 v11, 31, v0
    v_lshlrev_b32 v11, 2, v11
    v_lshrrev_b32 v8, 5, v0
    v_mul_u32_u24 v8, 896, v8
    v_add_u32 v11, v11, v8
    v_and_b32 v13, 7, v0
    v_lshlrev_b32 v5, 13, v12
    v_lshl_add_u32 v5, v13, 4, v5
    s_mov_b32 s62, 1792
    s_mov_b32 s63, 0x20000
    s_mov_b32 s54, {448*8192}
    s_mov_b32 s55, 0x20000
    s_lshr_b32 s12, s2, 6
    s_and_b32 s13, s2, 63
    s_mul_i32 s14, s12, {112*8192}
    s_lshl_b32 s15, s13, 7
    s_add_u32 s14, s14, s15
    """
    KPART=f"""
    v_and_b32 v1, 3, v0
    v_lshlrev_b32 v1, 4, v1
    v_lshrrev_b32 v7, 4, v0
    v_lshl_add_u32 v1, v7, 6, v1
    v_bfe_u32 v15, v0, 3, 1
    v_lshl_add_u32 v15, v15, 9, v1
    v_bfe_u32 v8, v0, 2, 2
    v_lshl_add_u32 v1, v8, 9, v1
    v_add_u32 v2, 0x1000, v1
    s_lshl_b32 s6, s4, 24
    s_lshl_b32 s7, s5, 2
    s_add_u32 s7, s7, s3
    s_lshl_b32 s7, s7, 13
    s_add_u32 s6, s6, s7
    s_mov_b32 s99, s6
    s_mov_b32 s42, 0x10000000
    s_mov_b32 s43, 0x20000
    """
    XSRD="s_mov_b32 s60, s16\ns_mov_b32 s61, s17\ns_mov_b32 s52, s22\ns_mov_b32 s53, s23"
    if not kfirst:
        a(XPART); a(KPART); a("s_waitcnt lgkmcnt(0)"); a(XSRD)
    VQ=[]
    def wait_for(tag):
        last=max(i for i,t in enumerate(VQ) if t==tag)
        a(f"s_waitcnt vmcnt({min(len(VQ)-1-last,62)})")
    done=[0]
    paced=[False]
    def room():
        if pace and paced[0]:
            a(f"s_waitcnt vmcnt({pace-1})"); done[0]=len(VQ)-(pace-1); return
        if len(VQ)-done[0]>=56:
            a("s_waitcnt vmcnt(40)"); done[0]=len(VQ)-40
    def xloads():
        for i in range(7):
            a(f"buffer_load_dword v{XD+i}, v11, s[60:63], 0 offen offset:{i*128}"); VQ.append('x')
    if not kfirst: xloads()
    def unit_loads(R,vo,srd,so,stride,tag):
        for i in range(4):
            if i==3: a(f"s_cmp_ge_u32 s3, 2\ns_cselect_b32 {so}, 0x7fff0000, {so}")
            room()
            a(f"buffer_load_dwordx4 v[{R+4*i}:{R+4*i+3}], v{vo}, {srd}, {so} offen{uf}"); VQ.append(f"{tag}{i}")
            if i<3: a(f"s_add_u32 {so}, {so}, {32*stride}")
    if not kfirst: unit_loads(W,5,"s[52:55]","s14",8192,'wq')
    else: a(KPART)
    if warm:
        a(f"""
        s_getpc_b64 s[44:45]
        """)
        a.label(L('pc'))
        a(f"""
        s_mov_b32 s46, {L('end2')}-{L('pc')}
        s_mov_b32 s47, 0x20000
        v_lshlrev_b32 v6, 4, v0
        s_lshl_b32 s15, s3, 12
        """)
        for i in range(4):
            a(f"buffer_load_dwordx4 a[{176+4*i}:{179+4*i}], v6, s[44:47], s15 offen offset:{1024*i}"); VQ.append('w')
    if not kfirst: a("s_mov_b32 s40, s18\ns_mov_b32 s41, s19")
    if patC: a("v_lshlrev_b32 v1, 4, v0\nv_add_u32 v2, 0x1000, v1")
    if sbar and not kfirst: a("s_barrier")
    def ld(sl,j,so="s14",mode=None):
        kk,h=j>>1,j&1
        if mode=='load':
            fl=vf if (so=="s14" and vf is not None) else kf
            a(f"buffer_load_dwordx4 {Rr(sl,j)}, v{PO[kk>>1]}, s[40:43], s100 offen offset:{((j&3)*1024 if patC else (kk&1)*2048+h*256)}{fl}")
            return
        fl=vf if (so=="s14" and vf is not None) else kf
        if bp:
            assert sorted(bp)==list(range(13,13+len(bp)))
            if j==0:
                keep=0xffffffff
                sh={}
                for i,p_ in enumerate(bp):
                    if p_!=13+i:
                        keep&=~(1<<(13+i)); sh.setdefault(p_-(13+i),0); sh[p_-(13+i)]|=1<<(13+i)
                a(f"s_and_b32 s100, {so}, {keep}")
                for d,m in sh.items():
                    a(f"s_and_b32 s101, {so}, {m}")
                    a(f"s_lshl_b32 s101, s101, {d}" if d>0 else f"s_lshr_b32 s101, s101, {-d}")
                    a("s_or_b32 s100, s100, s101")
            so="s100"
        if sp:
            lo,hi,n=sp; m=((1<<n)-1)<<lo
            if j==0: a(f"""
            s_lshr_b32 s100, {so}, {hi-lo}
            s_xor_b32 s100, s100, {so}
            s_and_b32 s100, s100, {m}
            s_lshl_b32 s101, s100, {hi-lo}
            s_or_b32 s100, s100, s101
            s_xor_b32 s100, s100, {so}
            """)
            so="s100"
        if ip:
            r,sh,mk=ip
            if j==0:
                a(f"""
                s_bfe_u32 s100, {so}, {(5<<16)|19}
                s_lshl_b32 s101, s100, {r}
                s_lshr_b32 s100, s100, {5-r}
                s_or_b32 s100, s100, s101
                s_and_b32 s100, s100, 31
                s_lshl_b32 s100, s100, 19
                s_and_b32 s101, {so}, {0xffffffff & ~(31<<19)}
                s_or_b32 s100, s100, s101
                """)
                if mk: a(f"s_lshr_b32 s101, {so}, {sh}\ns_and_b32 s101, s101, {mk}\ns_xor_b32 s100, s100, s101")
            so="s100"
        if xp:
            n=xp; lowm=(1<<19)-1; mid=((1<<(28-n-19))-1)<<19
            if j==0: a(f"""
            s_and_b32 s100, {so}, {mid}
            s_lshl_b32 s100, s100, {n}
            s_lshr_b32 s101, {so}, {28-n-19}
            s_and_b32 s101, s101, {((1<<n)-1)<<19}
            s_or_b32 s100, s100, s101
            s_and_b32 s101, {so}, {lowm}
            s_or_b32 s100, s100, s101
            """)
            so="s100"
        if perm:
            n=perm; smask=0xf<<15; imask=((1<<n)-1)<<15; keep=0xffffffff & ~(((1<<(4+n))-1)<<15)
            if j==0: a(f"""
            s_and_b32 s100, {so}, {smask}
            s_lshl_b32 s100, s100, {n}
            s_lshr_b32 s101, {so}, 4
            s_and_b32 s101, s101, {imask}
            s_or_b32 s100, s100, s101
            s_and_b32 s101, {so}, {keep}
            s_or_b32 s100, s100, s101
            """)
            so="s100"
        if swz:
            sh,mk=swz
            if j==0: a(f"s_lshr_b32 s101, {so}, {sh}\ns_and_b32 s101, s101, {mk}\ns_xor_b32 s100, s101, {so}")
            so="s100"
        if mode=='addr': return
        a(f"buffer_load_dwordx4 {Rr(sl,j)}, v{PO[kk>>1]}, s[40:43], {so} offen offset:{((j&3)*1024 if patC else (kk&1)*2048+h*256)}{fl}")
    order=list(range(NP))+[-(x+1) for x in range(NX)]+list(range(NP,NB))
    FL=[(sl,j) for sl in order for j in range(8)]
    fpos=[0]
    def emit_fill(n):
        for _ in range(n):
            if fpos[0]>=len(FL): return
            sl,j=FL[fpos[0]]; fpos[0]+=1
            room()
            ld(sl,j,"s6"); VQ.append(f"f{sl}")
            if j==7: a("s_add_u32 s6, s6, 0x80000")
    if kfirst:
        ld(0,0,"s6",'addr')
        a("s_waitcnt lgkmcnt(0)\ns_mov_b32 s40, s18\ns_mov_b32 s41, s19")
        for j in range(kfirst):
            ld(0,j,"s6",'load'); VQ.append("f0"); fpos[0]+=1
        if kfirst==8: a("s_add_u32 s6, s6, 0x80000")
        a(XPART); a(XSRD); xloads(); unit_loads(W,5,"s[52:55]","s14",8192,'wq')
        emit_fill(sched[0]-kfirst)
    else: emit_fill(sched[0])
    a(f"""
    s_add_u32 s76, s38, {EPO}
    s_addc_u32 s77, s39, 0
    s_load_dword s97, s[76:77], 0
    v_and_b32 v10, 15, v0
    v_lshlrev_b32 v10, 4, v10
    v_lshl_add_u32 v3, v7, 9, v10
    v_add_u32 v4, 0x1000, v3
    v_mul_u32_u24 v9, 3584, v12
    v_lshl_add_u32 v9, v13, 4, v9
    s_mov_b32 s58, {448*3584}
    s_mov_b32 s59, 0x20000
    s_and_b32 s71, s2, 3
    s_lshr_b32 s72, s2, 3
    s_mul_i32 s15, s71, {112*3584}
    s_lshl_b32 s73, s72, 7
    s_add_u32 s15, s15, s73
    s_cmp_ge_u32 s2, 224
    s_cselect_b32 s58, 0, s58
    s_bitcmp1_b32 s2, 2
    s_cselect_b32 s56, s30, s28
    s_cselect_b32 s57, s31, s29
    s_mov_b32 s48, s38
    s_mov_b32 s49, s39
    s_mov_b32 s50, {WSB}
    s_mov_b32 s51, 0x20000
    s_add_u32 s64, s3, {'s4' if rot else '0'}
    s_and_b32 s64, s64, 3
    s_lshl_b32 s7, s5, 2
    s_add_u32 s7, s7, s64
    s_lshl_b32 s7, s7, 13
    s_add_u32 s7, s7, {CNTO}
    s_add_u32 s64, s38, s7
    s_addc_u32 s65, s39, 0
    s_mov_b32 s66, 0
    s_mov_b32 s67, 0x20000
    s_lshl_b32 s68, s4, 4
    s_add_u32 s68, s68, s5
    s_and_b32 s69, s68, 127
    s_lshr_b32 s70, s68, 7
    s_lshl_b32 s68, s68, 13
    """)
    wait_for('x')
    if st2: stamp(3)
    emit_fill(sched[1])
    layernorm(a,XD,XF,5,6,8,11)
    for i in range(7): a(f"v_cvt_pk_bf16_f32 v{XD+i}, v{XF+2*i}, v{XF+2*i+1}")
    for i in range(7):
        a(f"v_lshlrev_b32 v{XF+2*i}, 16, v{XD+i}")
        a(f"v_and_b32 v{XF+2*i+1}, 0xffff0000, v{XD+i}")
    a("v_lshlrev_b32 v11, 1, v11")
    for i in range(7): a(f"ds_write_b64 v11, v[{XF+2*i}:{XF+2*i+1}] offset:{XN+i*256}")
    a(f"""
    v_lshlrev_b32 v12, 2, v12
    s_mul_i32 s7, s12, 448
    v_add_u32 v5, s7, v12
    s_mul_i32 s7, s71, 448
    v_add_u32 v6, s7, v12
    s_lshl_b32 s7, s3, 9
    v_bfe_u32 v8, v0, 4, 1
    v_lshlrev_b32 v14, 8, v8
    v_lshl_add_u32 v14, v13, 5, v14
    v_lshrrev_b32 v8, 5, v0
    v_lshl_add_u32 v14, v8, 4, v14
    v_add_u32 v14, s7, v14
    s_waitcnt lgkmcnt(0)
    """)
    for u,va in ((0,5),(1,6)):
        for b in range(2):
            for i in range(4): a(f"ds_read_b32 v{XV+u*8+b*4+i}, v{va} offset:{XN+b*1792+i*128}")
    emit_fill(sched[2])
    a("s_add_u32 s97, s97, 1\ns_waitcnt lgkmcnt(0)")
    def unit(R,xv,tag,red,mid=0):
        for i in range(4):
            if i==3: a(f"s_cmp_ge_u32 s3, 2\ns_cbranch_scc1 {L('u3'+tag)}")
            wait_for(f"{tag}{i}")
            for d in range(4):
                a(f"v_lshlrev_b32 v{U+2*d}, 16, v{R+4*i+d}")
                a(f"v_and_b32 v{U+2*d+1}, 0xffff0000, v{R+4*i+d}")
            for b in range(2):
                for e in range(8):
                    op="v_mul_f32" if i==0 else "v_fmac_f32"
                    a(f"{op} v{ACC+b*8+e}, v{xv+b*4+i}, v{U+e}")
        a.label(L('u3'+tag))
        for e in range(8): a(f"v_permlane16_swap_b32 v{ACC+e}, v{ACC+8+e}")
        for e in range(8): a(f"v_add_f32 v{ACC+e}, v{ACC+e}, v{ACC+8+e}")
        for e in range(4): a(f"v_permlane32_swap_b32 v{ACC+e}, v{ACC+4+e}")
        for e in range(4): a(f"v_add_f32 v{ACC+e}, v{ACC+e}, v{ACC+4+e}")
        for e in range(4): a(f"v_add_f32_dpp v{ACC+e}, v{ACC+e}, v{ACC+e} row_ror:8 {DPPT}")
        a(f"ds_write_b128 v14, v[{ACC}:{ACC+3}] offset:{red}")
        emit_fill(mid)
    def gather4(red):
        a("v_lshlrev_b32 v5, 3, v0")
        for w in range(4): a(f"ds_read_b64 v[{U+2*w}:{U+2*w+1}], v5 offset:{red+w*512}")
        a(f"""
        s_waitcnt lgkmcnt(0)
        v_add_f32 v{U}, v{U}, v{U+2}
        v_add_f32 v{U+1}, v{U+1}, v{U+3}
        v_add_f32 v{U+4}, v{U+4}, v{U+6}
        v_add_f32 v{U+5}, v{U+5}, v{U+7}
        """)
    if st2: stamp(4)
    unit(W,XV,'wq',RED,sched[3])
    if st2: stamp(5)
    a(f"""
    v_mov_b32 v{U+9}, s97
    v_mov_b32 v{U+11}, s97
    v_lshrrev_b32 v6, 5, v0
    v_lshlrev_b32 v6, 15, v6
    v_and_b32 v5, 31, v0
    v_lshl_add_u32 v6, v5, 4, v6
    s_lshl_b32 s7, s12, 16
    s_lshl_b32 s13, s13, 9
    s_add_u32 s7, s7, s13
    s_add_u32 s7, s7, {QOFF}
    s_waitcnt lgkmcnt(0)
    s_barrier
    s_cmp_lg_u32 s3, 0
    s_cbranch_scc1 {L('pubwait')}
    """)
    gather4(RED)
    a(f"""
    v_add_f32 v{U+8}, v{U}, v{U+4}
    v_add_f32 v{U+10}, v{U+1}, v{U+5}
    buffer_store_dwordx4 v[{U+8}:{U+11}], v6, s[48:51], s7 offen sc1
    """)
    a.label(L('pubwait'))
    if sbar: a("s_barrier")
    if st2: stamp(6)
    paced[0]=True
    if tp:
        a(f"""
        s_mov_b32 s44, s20
        s_mov_b32 s45, s21
        s_mov_b32 s46, 0x10000000
        s_mov_b32 s47, 0x20000
        v_and_b32 v5, 7, v0
        v_lshlrev_b32 v5, 21, v5
        s_lshl_b32 s7, s4, 24
        s_lshl_b32 s12, s5, 24
        s_mov_b64 exec, 0xff
        buffer_load_dword a255, v5, s[40:43], s7 offen nt
        buffer_load_dword a254, v5, s[44:47], s7 offen nt
        buffer_load_dword a253, v5, s[44:47], s12 offen nt
        s_mov_b64 exec, -1
        """)
        VQ.extend(['tp']*3)
    unit_loads(WF,9,"s[56:59]","s15",3584,'wf')
    a(f"""
    s_lshl_b32 s12, s4, 12
    s_lshl_b32 s13, s3, 10
    s_add_u32 s12, s12, s13
    s_add_u32 s12, s12, {QOFF}
    s_add_u32 s13, s12, 0x10000
    s_add_u32 s14, s12, 0x20000
    s_add_u32 s15, s12, 0x30000
    v_lshlrev_b32 v9, 4, v0
    """)
    def qload(track=True):
        for p in range(4):
            if track: room()
            a(f"buffer_load_dwordx4 v[{W+4*p}:{W+4*p+3}], v9, s[48:51], s{12+p} offen sc1")
            if track: VQ.append('qa')
    emit_fill(pollpos-fpos[0])
    qload()
    emit_fill(999)
    unit(WF,XV+8,'wf',RED+2048)
    a(f"""
    v_and_b32 v7, 1, v0
    v_cmp_eq_u32 vcc, 1, v7
    v_mov_b32 v8, 0xffff
    v_mov_b32 v11, 0xffff0000
    v_cndmask_b32 v8, v8, v11, vcc
    v_bfe_u32 v7, v0, 1, 2
    """)
    for r in range(4):
        a(f"v_cmp_eq_u32 vcc, {r}, v7\nv_cndmask_b32 v{MASK+r}, 0, v8, vcc")
    a(f"""
    v_lshrrev_b32 v7, 2, v0
    v_xor_b32 v7, v7, v0
    v_and_b32 v7, 8, v7
    v_cmp_ne_u32 s[8:9], 0, v7
    s_mov_b32 s10, {f32(CEXP)}
    s_mov_b32 s11, 0
    s_mov_b32 s98, {S2}
    s_mov_b32 s73, 0
    s_lshl_b32 s7, s3, 8
    v_lshlrev_b32 v13, 2, v0
    v_add_u32 v13, s7, v13
    s_mov_b32 s44, 0x01010101
    s_mov_b32 s45, 0x01010101
    """)
    wait_for('qa')
    a.flush()
    a.label(L('qchk'))
    a(f"v_xor_b32 v7, s97, v{W+1}\nv_xor_b32 v8, s97, v{W+3}")
    for i in range(5,16,4):
        a(f"v_xor_b32 v11, s97, v{W+i}\nv_xor_b32 v12, s97, v{W+i+2}\nv_or3_b32 v7, v7, v11, v12")
    a(f"""
    v_or_b32 v7, v7, v8
    v_cmp_ne_u32 vcc, 0, v7
    s_cbranch_vccz {L('qok')}
    s_add_u32 s73, s73, 1
    s_cmp_ge_u32 s73, {spin_max}
    s_cbranch_scc1 {L('qok')}
    """)
    qload(False)
    a(f"s_waitcnt vmcnt(0)\ns_branch {L('qchk')}")
    a.label(L('qok'))
    a(f"""
    v_add_f32 v{W}, v{W}, v{W+4}
    v_add_f32 v{W+2}, v{W+2}, v{W+6}
    v_add_f32 v{W+8}, v{W+8}, v{W+12}
    v_add_f32 v{W+10}, v{W+10}, v{W+14}
    v_add_f32 v{W}, v{W}, v{W+8}
    v_add_f32 v{W+2}, v{W+2}, v{W+10}
    v_cvt_pk_bf16_f32 v7, v{W}, v{W+2}
    ds_write_b32 v13, v7 offset:{QL}
    v_mov_b32 v8, 0
    ds_write_b32 v8, v8 offset:{CN}
    s_waitcnt lgkmcnt(0)
    s_barrier
    ds_read_b128 v[{Q}:{Q+3}], v15 offset:{QL}
    ds_read_b128 v[{Q+4}:{Q+7}], v15 offset:{QL+256}
    v_lshrrev_b32 v15, 3, v0
    v_lshlrev_b32 v15, 3, v15
    s_lshl_b32 s7, s3, 11
    v_add_u32 v14, s7, v15
    s_waitcnt lgkmcnt(0)
    """)
    stamp(1)
    if st2:
        stamp_real=stamp
        def stamp(i):
            if i==7: stamp_real(7)
    def kbody(sl,ring=True,waits=True,tile=None):
        if ring and hoist: ld(sl,0,"s6",'addr')
        for j in range(8):
            kk,h=j>>1,j&1; d=DS+kk*4
            if waits: a(f"s_waitcnt vmcnt({WN})")
            c="0" if h==0 else f"v[{d}:{d+3}]"
            a(f"v_mfma_f32_16x16x32_bf16 v[{d}:{d+3}], {Rr(sl,j)}, v[{Q+h*4}:{Q+h*4+3}], {c}")
            if ring: ld(sl,j,"s6",'load' if hoist else None)
        for kk in range(4):
            d=DS+kk*4; s=S+kk
            a(f"v_mov_b32_dpp v{s}, v{d} quad_perm:[0,0,0,0] {DPPT}")
            for r in range(1,4):
                a(f"v_add_f32_dpp v{s}, v{d+r}, v{s} quad_perm:[{r},{r},{r},{r}] {DPPT}")
        a(f"""
        v_cvt_pk_bf16_f32 v{A[0]}, v{S}, v{S+1}
        v_cvt_pk_bf16_f32 v{A[0]+1}, v{S+2}, v{S+3}
        s_mov_b64 exec, s[44:45]
        ds_write_b64 v14, v[{A[0]}:{A[0]+1}] offset:{SCL+(tile or 0)*64}
        s_mov_b64 exec, -1
        """)
        if tile is None: a("v_add_u32 v14, 64, v14")
        if ring: a("s_add_u32 s6, s6, 0x80000\ns_add_u32 s11, s11, 1")
    qi=max(i for i,t in enumerate(VQ) if t=='qa')
    def pwait(sl):
        last=max(i for i,t in enumerate(VQ) if t==f"f{sl}")
        if last>qi: wait_for(f"f{sl}")
    if not ilv:
        for sl in range(NP):
            pwait(sl); kbody(sl,True,False); VQ.extend(['r']*8)
        for x in range(NX):
            pwait(-(x+1)); kbody(-(x+1),False,False)
    else:
        assert NB==1 and NP==1
        pwait(0); kbody(0,True,False,tile=0); VQ.extend(['r']*8)
        nr=1
        for x in range(NX):
            pwait(-(x+1)); kbody(-(x+1),False,False,tile=1+x)
            if (x+1)%ilv==0 and x+1<NX and all(max(i for i,t in enumerate(VQ) if t==f"f{-(y+1)}")<qi or True for y in range(NX)):
                kbody(0,True,True,tile=NX+nr); VQ.extend(['r']*8); nr+=1
                qi=len(VQ)
        a(f"v_add_u32 v14, {(NX+nr)*64}, v14")
        assert nr<=S2
    a(f"s_cmp_lg_u32 s3, 0\ns_cbranch_scc1 {L('ksubP')}")
    gather4(RED+2048)
    a(f"""
    v_add_f32 v{U+8}, v{U}, v{U+4}
    v_add_f32 v{U+9}, v{U+1}, v{U+5}
    v_lshrrev_b32 v7, 5, v0
    v_mul_u32_u24 v7, 7168, v7
    v_and_b32 v8, 31, v0
    v_lshl_add_u32 v7, v8, 3, v7
    s_lshl_b32 s7, s71, 1
    s_bfe_u32 s73, s2, 0x10002
    s_add_u32 s7, s7, s73
    s_mul_i32 s7, s7, 14336
    s_lshl_b32 s73, s72, 8
    s_add_u32 s7, s7, s73
    s_add_u32 s7, s7, {GU}
    s_cmp_ge_u32 s2, 224
    s_cselect_b32 s7, 0x7fff0000, s7
    v_mov_b32 v124, -1
    v_mov_b32 v125, -1
    v_mov_b32 v126, -1
    v_mov_b32 v127, -1
    v_mov_b32 v123, 0
    v_add_u32 v11, 0x1000, v9
    buffer_store_dwordx2 v[{U+8}:{U+9}], v7, s[48:51], s7 offen sc1
    """)
    for i in range(0 if noclr else 7):
        a(f"buffer_store_dwordx4 v[124:127], v{9 if i<4 else 11}, s[48:51], s68 offen offset:{(i&3)*1024} sc1")
    a(f"""
    s_add_u32 s7, s68, {CNTO}
    s_mov_b64 exec, 1
    buffer_store_dword v123, off, s[48:51], s7 sc1
    s_mov_b64 exec, -1
    s_branch {L('ksubP')}
    """)
    a.label(L('kloop'))
    a(f"s_cmp_eq_u32 s11, s98\ns_cbranch_scc1 {L('ksvc')}")
    a.label(L('kloop2'))
    if lock&1:
        if lock>>4: a(f"s_and_b32 s7, s11, {(lock>>4)}\ns_cbranch_scc1 {L('klk')}")
        a("s_barrier")
        a.label(L('klk'))
    for nb in range(NB):
        if nb==NP: a.label(L('ksubP'))
        kbody(nb)
    if NP==NB: a.label(L('ksubP'))
    a(f"s_cmp_lt_u32 s11, {NK}\ns_cbranch_scc1 {L('kloop')}")
    stamp(5)
    a(f"""
    s_mov_b32 s11, 0
    s_mov_b32 s98, {S3}
    v_mov_b32 v{vM}, 0xff7fffff
    v_mov_b32 v{vL}, 0
    s_lshl_b32 s75, s5, 24
    s_lshl_b32 s15, s4, 2
    s_add_u32 s15, s15, s3
    s_lshl_b32 s15, s15, 13
    s_add_u32 s15, s15, s75
    s_add_u32 s7, s3, {'s4' if rot else '0'}
    s_and_b32 s7, s7, 3
    s_lshl_b32 s7, s7, {13+UB+tl}
    s_add_u32 s75, s75, s7
    s_add_u32 s75, s75, {KS*64*8192}
    s_mov_b32 s76, -1
    s_mul_i32 s47, s5, {64*NSH*64}
    s_add_u32 s47, s47, {SCO}
    s_lshl_b32 s7, s3, 11
    s_add_u32 s7, s7, {NSH*64}
    v_add_u32 v14, s7, v15
    """)
    for i in range(8): a(f"v_mov_b32 v{O+i}, 0")
    a(f"""
    s_mov_b32 s26, {4096*896}
    s_mov_b32 s27, 0x20000
    s_mov_b32 s60, s34
    s_mov_b32 s61, s35
    s_mov_b32 s34, {1792*896}
    s_mov_b32 s35, 0x20000
    v_lshrrev_b32 v7, 4, v0
    v_and_b32 v10, 15, v0
    v_lshlrev_b32 v10, 4, v10
    v_mul_u32_u24 v11, {8*896}, v7
    v_add_u32 v{aWO}, v11, v10
    v_mul_u32_u24 v11, {4*896}, v7
    v_add_u32 v{aW2}, v11, v10
    s_mul_i32 s28, s69, {32*896}
    s_lshl_b32 s7, s3, 8
    s_add_u32 s28, s28, s7
    s_add_u32 s29, s28, {4*896}
    s_mul_i32 s30, s69, {14*896}
    s_add_u32 s30, s30, s7
    s_cmp_eq_u32 s3, 3
    s_cselect_b32 s26, 0, s26
    s_cselect_b32 s34, 0, s34
    s_cmp_eq_u32 s3, 2
    s_cselect_b32 s31, 0, 0x7fff0000
    """)
    a.flush()
    a.label(L('vloop'))
    a(f"s_cmp_eq_u32 s11, s98\ns_cbranch_scc1 {L('vsvc')}")
    a.label(L('vloop2'))
    if lock&2:
        a(f"s_cmp_ge_u32 s11, {NSV}\ns_cbranch_scc1 {L('vlk')}")
        if lock>>4: a(f"s_and_b32 s7, s11, {(lock>>4)}\ns_cbranch_scc1 {L('vlk')}")
        a("s_barrier")
        a.label(L('vlk'))
    SS=DS+4
    assert NB==1 and early
    def vmath(nb,last):
        a(f"""
        v_lshlrev_b32 v{S}, 16, v{SS}
        v_and_b32 v{S+1}, 0xffff0000, v{SS}
        v_lshlrev_b32 v{S+2}, 16, v{SS+1}
        v_and_b32 v{S+3}, 0xffff0000, v{SS+1}
        v_max3_f32 v7, v{S}, v{S+1}, v{S+2}
        v_max3_f32 v7, v7, v{S+3}, v{vM}
        v_mov_b32 v8, v7
        v_permlane16_swap_b32 v8, v7
        v_max_f32 v7, v7, v8
        v_mov_b32 v8, v7
        v_permlane32_swap_b32 v8, v7
        v_max_f32 v7, v7, v8
        v_sub_f32 v8, v{vM}, v7
        v_mul_f32 v8, s10, v8
        v_exp_f32 v8, v8
        v_mov_b32 v{vM}, v7
        v_mul_f32 v9, s10, v7
        v_mov_b32_dpp v10, v8 row_ror:8 {DPPT}
        v_mul_f32 v{vL}, v{vL}, v8
        v_cndmask_b32 v10, v8, v10, s[8:9]
        """)
        for i in range(8): a(f"v_mul_f32 v{O+i}, v{O+i}, v10")
        for kk in range(4): a(f"v_fma_f32 v{S+kk}, v{S+kk}, s10, -v9")
        for kk in range(4): a(f"v_exp_f32 v{S+kk}, v{S+kk}")
        for kk in range(4):
            Ar=A[kk&1]
            a(f"v_cvt_pk_bf16_f32 v11, v{S+kk}, v{S+kk}")
            a(f"v_add_f32 v{vL}, v{vL}, v{S+kk}")
            for r in range(4): a(f"v_and_b32 v{Ar+r}, v11, v{MASK+r}")
            for h in range(2):
                j=kk*2+h; o=O+h*4
                a(f"s_waitcnt vmcnt({WV if not last else 24+7-j})")
                a(f"v_mfma_f32_16x16x32_bf16 v[{o}:{o+3}], v[{Ar}:{Ar+3}], {Rr(nb,j)}, v[{o}:{o+3}]")
                if not last: ld(nb,j,"s14",'load' if hoist else None)
    for nb in range(NB):
        sc=SCR+2*nb
        a(f"""
        ds_read_b64 v[{SS}:{SS+1}], v14 offset:{SCL}
        v_add_u32 v14, 64, v14
        s_waitcnt vmcnt({8*NB if early else WN})
        """)
        if pair and nb>0:
            a(f"""
            s_add_u32 s78, s14, 0x2000
            s_cmp_ge_u32 s11, {NSV+KS-NB}
            s_cselect_b32 s14, s78, s6
            """)
        else: a(f"""
        v_readfirstlane_b32 s77, v{TK+nb}
        s_add_u32 s79, s11, {NB}
        {f's_lshr_b32 s78, s77, {tl}' if tl else ''}
        s_lshl_b32 s78, {'s78' if tl else 's77'}, {15+UB+tl}
        s_add_u32 s78, s78, s75
        {f's_and_b32 s7, s77, {(1<<tl)-1}' if tl else ''}
        {f's_lshl_b32 s7, s7, 13' if tl else ''}
        {f's_add_u32 s78, s78, s7' if tl else ''}
        s_cmp_ge_u32 s11, {NSV+KS-NB}
        s_cselect_b32 s14, s78, s6
        s_cselect_b32 s77, s77, 0
        s_cselect_b32 s78, {POOL}, 1
        s_cmp_ge_u32 s77, s78
        s_cselect_b32 s42, 0, s42
        s_cselect_b32 s66, 0, s66
        s_cselect_b32 s79, s79, -1
        s_min_u32 s76, s76, s79
        """)
        a(f"""
        s_waitcnt lgkmcnt(0)
        s_cmp_lt_u32 s11, {NSV}
        s_cbranch_scc1 {L(f'vs{nb}')}
        """)
        a(f"""
        v_mov_b32 v{SS}, v{sc}
        v_mov_b32 v{SS+1}, v{sc+1}
        """)
        a.label(L(f'vs{nb}'))
        a(f"s_cmp_eq_u32 s42, 0\ns_cbranch_scc1 {L('vlast')}")
        a(f"""
        s_bfe_u32 s7, s14, 0x6000d
        s_mul_i32 s7, s7, {NSH*64}
        s_bfe_u32 s46, s14, 0x50013
        s_lshl_b32 s46, s46, 6
        s_add_u32 s7, s7, s46
        s_add_u32 s7, s7, s47
        s_cmp_ge_u32 s11, {NSV-NB}
        s_cselect_b32 s7, s7, 0x7fff0000
        s_cmp_eq_u32 s42, 0
        s_cselect_b32 s7, 0x7fff0000, s7
        """)
        if not (pair and nb>0): a(f"""
        v_mov_b32 v{TK+nb}, 1
        s_mov_b64 exec, 1
        buffer_atomic_add v{TK+nb}, off, s[64:67], 0 sc0
        s_mov_b64 exec, -1
        """)
        if hoist: ld(nb,0,"s14",'addr')
        a(f"buffer_load_dwordx2 v[{sc}:{sc+1}], v15, s[48:51], s7 offen sc1")
        vmath(nb,False)
        a(f"""
        s_add_u32 s6, s6, 0x80000
        s_add_u32 s11, s11, 1
        s_cmp_eq_u32 s11, {NSV-NB}
        s_cselect_b32 s6, s15, s6
        s_cmp_eq_u32 s11, s76
        """)
        if nb<NB-1: a(f"s_cbranch_scc1 {L('sdone')}")
        else: a(f"s_cbranch_scc0 {L('vloop')}")
    a(f"s_branch {L('sdone')}")
    a.label(L('vlast'))
    for kk in range(4):
        r=W2+kk*4
        a(f"buffer_load_dwordx4 a[{r}:{r+3}], v{aW2}, s[32:35], s30 offen offset:{kk*896}{wf}")
    for kk in range(8):
        r=WO+kk*4
        a(f"buffer_load_dwordx4 a[{r}:{r+3}], v{aWO}, s[24:27], s{28 if kk<4 else 29} offen offset:{(kk&3)*896}{wf}")
    a("s_add_u32 s28, s28, s31\ns_add_u32 s29, s29, s31\ns_add_u32 s30, s30, s31\ns_mov_b32 exec_lo, 0x00ff00ff\ns_mov_b32 exec_hi, 0x00ff00ff")
    for kk in range(4):
        r=W2b+kk*4
        a(f"buffer_load_dwordx4 a[{r}:{r+3}], v{aW2}, s[32:35], s30 offen offset:{kk*896+256}{wf}")
    for kk in range(8):
        r=WOb+kk*4
        a(f"buffer_load_dwordx4 a[{r}:{r+3}], v{aWO}, s[24:27], s{28 if kk<4 else 29} offen offset:{(kk&3)*896+256}{wf}")
    a("s_mov_b64 exec, -1")
    vmath(0,True)
    a(f"s_add_u32 s11, s11, 1\ns_branch {L('sdone')}")
    a.label(L('ksvc'))
    a(f"""
    s_cmp_eq_u32 s11, {SRD}
    s_cbranch_scc1 {L('rdy')}
    s_cmp_eq_u32 s11, {SKV}
    s_cbranch_scc1 {L('kv')}
    s_cmp_eq_u32 s11, {S2}
    s_cbranch_scc1 {L('svc2b')}
    s_mov_b32 s98, {SRD}
    v_lshlrev_b32 v7, 4, v0
    s_lshl_b32 s7, s3, 11
    v_add_u32 v8, s7, v7
    ds_read_b128 v[{GR}:{GR+3}], v8 offset:{SCL}
    ds_read_b128 v[{GR+4}:{GR+7}], v8 offset:{SCL+1024}
    s_lshl_b32 s7, s4, 4
    s_add_u32 s7, s7, s5
    s_lshl_b32 s7, s7, 2
    s_add_u32 s7, s7, s3
    s_mul_i32 s7, s7, {NSH*64}
    s_add_u32 s7, s7, {SCO}
    v_cmp_gt_u32 vcc, {min(NSH*4,64)}, v0
    v_cmp_gt_u32 s[46:47], {max(NSH*4-64,0)}, v0
    s_waitcnt lgkmcnt(0)
    s_mov_b64 exec, vcc
    buffer_store_dwordx4 v[{GR}:{GR+3}], v7, s[48:51], s7 offen sc1
    """)
    if NSH>16: a(f"s_mov_b64 exec, s[46:47]\nbuffer_store_dwordx4 v[{GR+4}:{GR+7}], v7, s[48:51], s7 offen offset:1024 sc1")
    a(f"s_mov_b64 exec, -1\ns_branch {L('kloop2')}")
    a.label(L('svc2b'))
    a(f"""
    s_mov_b32 s98, {SPB}
    v_lshrrev_b32 v7, 4, v0
    s_lshl_b32 s74, s69, 3
    s_mul_i32 s72, s70, 896
    s_add_u32 s74, s74, s72
    v_and_b32 v11, {(1<<RK)-1}, v0
    v_lshl_add_u32 v11, v11, 2, v7
    v_lshlrev_b32 v{XR+1}, 1, v11
    buffer_load_ushort v{XR}, v{XR+1}, s[60:63], s74 offen
    s_mov_b32 s73, 0
    s_branch {L('kloop2')}
    """)
    a.label(L('rdy'))
    delay('rdy')
    a(f"""
    s_mov_b32 s98, {SKV}
    v_mov_b32 v7, s97
    s_lshl_b32 s7, s2, 2
    s_add_u32 s7, s7, s3
    s_lshl_b32 s7, s7, 2
    s_add_u32 s7, s7, {RDY}
    s_waitcnt vmcnt({WN})
    s_mov_b64 exec, 1
    buffer_store_dword v7, off, s[48:51], s7 sc1
    s_mov_b64 exec, -1
    """)
    if SRD!=SKV: a(f"s_branch {L('kloop2')}")
    a.label(L('kv'))
    a(f"""
    s_mov_b32 s98, -1
    s_mov_b32 s40, s20
    s_mov_b32 s41, s21
    s_add_u32 s6, s99, {NSH*0x80000}
    v_mov_b32 v{PO[0]}, v{PO[0] if patC else VO[0]}
    v_mov_b32 v{PO[1]}, v{PO[1] if patC else VO[1]}
    s_branch {L('kloop2')}
    """)
    a.label(L('vsvc'))
    a(f"""
    s_cmp_eq_u32 s11, {S4}
    s_cbranch_scc1 {L('svc4')}
    s_cmp_eq_u32 s11, {S5}
    s_cbranch_scc1 {L('switch')}
    s_mov_b32 s98, {S4}
    v_lshlrev_b32 v13, 4, v0
    s_mov_b32 s7, {RDY}
    """)
    def rload():
        for i in range(4): a(f"buffer_load_dwordx4 v[{RD+4*i}:{RD+4*i+3}], v13, s[48:51], s7 offen offset:{1024*i} sc1")
    rload()
    a(f"s_branch {L('vloop2')}")
    a.label(L('svc4'))
    a(f"""
    s_mov_b32 s98, {S5}
    s_mov_b32 s71, 0
    s_mov_b32 s7, {RDY}
    s_waitcnt vmcnt({WN})
    """)
    a.flush()
    a.label(L('rchk'))
    a(f"""
    v_min3_u32 v7, v{RD}, v{RD+1}, v{RD+2}
    v_max3_u32 v8, v{RD}, v{RD+1}, v{RD+2}
    """)
    for i in range(3,15,2): a(f"v_min3_u32 v7, v7, v{RD+i}, v{RD+i+1}\nv_max3_u32 v8, v8, v{RD+i}, v{RD+i+1}")
    a(f"""
    v_min_u32 v7, v7, v{RD+15}
    v_max_u32 v8, v8, v{RD+15}
    v_xor_b32 v7, s97, v7
    v_xor_b32 v8, s97, v8
    v_or_b32 v7, v7, v8
    v_cmp_ne_u32 vcc, 0, v7
    s_cbranch_vccz {L('rok')}
    s_add_u32 s71, s71, 1
    s_cmp_ge_u32 s71, {spin_max}
    s_cbranch_scc1 {L('rok')}
    s_sleep 16
    """)
    rload()
    a(f"s_waitcnt vmcnt(0)\ns_branch {L('rchk')}")
    a.label(L('rok'))
    if KS==0: a("s_mov_b32 s66, 4")
    a(f"""
    v_lshrrev_b32 v7, 4, v0
    v_lshlrev_b32 v11, 4, v7
    s_mul_i32 s71, s69, 56
    s_mul_i32 s72, s70, 7168
    s_add_u32 s71, s71, s72
    s_add_u32 s71, s71, {GU}
    """)
    for pm in range(8):
        a(f"buffer_load_dwordx4 v[{GR+4*pm}:{GR+4*pm+3}], v11, s[48:51], s71 offen sc1")
        if pm<7: a("s_add_u32 s71, s71, 14336")
    a(f"""
    s_or_b32 s7, s2, s3
    s_cmp_lg_u32 s7, 0
    s_cbranch_scc1 {L('vloop2')}
    v_mov_b32 v7, s97
    s_mov_b32 s7, {EPO}
    s_mov_b64 exec, 1
    buffer_store_dword v7, off, s[48:51], s7 sc1
    s_mov_b64 exec, -1
    s_branch {L('vloop2')}
    """)
    a.label(L('switch'))
    delay('switch')
    a(f"s_mov_b32 s98, -1\ns_waitcnt vmcnt({WN})")
    if touch:
        a("s_mov_b32 s60, s34\ns_mov_b32 s61, s35\nbuffer_load_dword a180, off, s[60:63], 0")
    if warm&2:
        a("s_getpc_b64 s[52:53]")
        a.label(L('pc2'))
        a(f"""
        s_mov_b32 s54, {L('end2')}-{L('pc2')}
        v_lshlrev_b32 v7, 4, v0
        s_lshl_b32 s7, s3, 10
        buffer_load_dwordx4 a[176:179], v7, s[52:55], s7 offen
        """)
    aW,aM,aR,aS1,aS2,aP1,aP2,aH2,aP3,aCF,aRow,xres=66,67,68,70,71,72,73,74,75,76,77,78
    def lred():
        a(f"""
        v_mov_b32 v8, v{vL}
        v_permlane16_swap_b32 v8, v{vL}
        v_add_f32 v{vL}, v{vL}, v8
        v_mov_b32 v8, v{vL}
        v_permlane32_swap_b32 v8, v{vL}
        v_add_f32 v{vL}, v{vL}, v8
        """)
    def ldswrite(st):
        a(f"""
        ds_write_b128 v{aW}, v[{O}:{O+3}] offset:{OP+st*8192}
        ds_write_b128 v{aW}, v[{O+4}:{O+7}] offset:{OP+st*8192+512}
        ds_write_b32 v{aM}, v{vM} offset:{ML+st*64}
        ds_write_b32 v{aM}, v{vL} offset:{ML+st*64+16}
        """)
    def combine(vr,vm,off,moff,sO,sM,T,C,R):
        a(f"ds_read_b128 v[{T}:{T+3}], v{vm} offset:{ML+moff}\nds_read_b128 v[{T+4}:{T+7}], v{vm} offset:{ML+moff+16}")
        for w in range(4): a(f"ds_read_b128 v[{C+4*w}:{C+4*w+3}], v{vr} offset:{OP+off+w*2048}")
        a(f"s_waitcnt lgkmcnt(4)\nv_max3_f32 v{R+4}, v{T}, v{T+1}, v{T+2}\nv_max_f32 v{R+4}, v{R+4}, v{T+3}")
        for w in range(4): a(f"v_sub_f32 v{T+w}, v{T+w}, v{R+4}")
        for w in range(4): a(f"v_mul_f32 v{T+w}, s10, v{T+w}")
        for w in range(4): a(f"v_exp_f32 v{T+w}, v{T+w}")
        a(f"v_mul_f32 v{R+5}, v{T}, v{T+4}")
        for w in range(1,4): a(f"v_fmac_f32 v{R+5}, v{T+w}, v{T+4+w}")
        a("s_waitcnt lgkmcnt(0)")
        for e in range(4): a(f"v_mul_f32 v{R+e}, v{T}, v{C+e}")
        for w in range(1,4):
            for e in range(4): a(f"v_fmac_f32 v{R+e}, v{T+w}, v{C+4*w+e}")
        for e in range(6): a(f"v_min_u32 v{R+e}, -2, v{R+e}")
        a(f"""
        buffer_store_dwordx4 v[{R}:{R+3}], v{aS1}, s[48:51], {sO} offen sc1
        s_mov_b64 exec, s[44:45]
        buffer_store_dwordx2 v[{R+4}:{R+5}], v{aS2}, s[48:51], {sM} offen sc1
        s_mov_b64 exec, -1
        """)
    lred()
    a(f"""
    v_lshrrev_b32 v7, 5, v0
    v_lshlrev_b32 v7, 10, v7
    v_and_b32 v12, 15, v0
    v_lshl_add_u32 v7, v12, 5, v7
    v_bfe_u32 v8, v0, 4, 1
    v_lshl_add_u32 v7, v8, 4, v7
    s_lshl_b32 s7, s3, 11
    v_add_u32 v{aW}, s7, v7
    v_bfe_u32 v7, v0, 3, 1
    v_lshlrev_b32 v7, 5, v7
    s_lshl_b32 s7, s3, 2
    v_add_u32 v{aM}, s7, v7
    """)
    ldswrite(0)
    a(f"""
    v_lshrrev_b32 v7, 3, v0
    v_lshlrev_b32 v{aS2}, 13, v7
    v_and_b32 v7, 7, v0
    v_lshl_add_u32 v{aS1}, v7, 4, v{aS2}
    v_lshrrev_b32 v11, 4, v0
    v_lshlrev_b32 v7, 7, v12
    v_lshl_add_u32 v{aP1}, v11, 5, v7
    v_lshlrev_b32 v7, 3, v12
    v_add_u32 v{aP2}, {H1ML}, v7
    v_lshl_add_u32 v9, v12, 1, v8
    s_lshl_b32 s7, s3, 5
    s_lshl_b32 s12, s70, 7
    s_add_u32 s7, s7, s12
    s_lshr_b32 s12, s69, {7-RK}
    s_add_u32 s7, s7, s12
    v_and_b32 v7, {(1<<RK)-1}, v9
    v_sub_u32 v9, v9, v7
    v_add_u32 v9, s7, v9
    v_lshlrev_b32 v9, 13, v9
    v_lshl_add_u32 v{aH2}, v7, 4, v9
    v_cmp_gt_u32 s[72:73], 32, v0
    v_cmp_gt_u32 vcc, 8, v12
    s_and_b64 s[54:55], s[72:73], vcc
    v_cmp_gt_u32 s[56:57], {1<<RK}, v12
    s_and_b32 s52, s69, {(128>>RK)-1}
    s_lshl_b32 s52, s52, {4+RK}
    s_add_u32 s52, s52, {H2}
    s_add_u32 s53, s52, {32*INB}
    v_lshlrev_b32 v{aR}, 4, v0
    v_add_u32 v{aP3}, {H2}, v{aR}
    v_lshlrev_b32 v{aCF}, 5, v11
    v_mov_b32 v{aRow}, v{XR+1}
    v_lshlrev_b32 v{xres}, 16, v{XR}
    v_mov_b32 v7, 0
    v_mov_b32 v8, 1
    s_waitcnt lgkmcnt(0)
    s_mov_b64 exec, 1
    ds_add_rtn_u32 v9, v7, v8 offset:{CN}
    s_mov_b64 exec, -1
    """)
    for i in range(8): a(f"v_mov_b32 v{O+i}, 0")
    a(f"""
    v_mov_b32 v{vM}, 0xff7fffff
    v_mov_b32 v{vL}, 0
    {'s_nop 0' if KS==0 else 's_mov_b32 s66, '+str(4 if dyn else 0)}
    v_mov_b32 v14, v15
    s_and_b32 s7, s3, 1
    s_lshl_b32 s7, s7, 3
    s_lshl_b32 s58, s5, 4
    s_add_u32 s58, s58, s7
    s_lshl_b32 s58, s58, 13
    s_add_u32 s7, s4, 16
    s_lshl_b32 s12, s7, 7
    s_add_u32 s12, s12, s58
    s_lshl_b32 s13, s7, 3
    s_add_u32 s13, s13, s58
    s_add_u32 s13, s13, {H1ML}
    s_waitcnt lgkmcnt(0)
    v_readfirstlane_b32 s7, v9
    s_cmp_lg_u32 s7, 3
    s_cbranch_scc1 {L('nopub')}
    s_lshl_b32 s58, s4, 17
    s_lshl_b32 s7, s5, 7
    s_add_u32 s7, s7, s58
    s_lshl_b32 s59, s5, 3
    s_add_u32 s59, s59, s58
    s_add_u32 s59, s59, {H1ML}
    """)
    combine(aR,7,0,0,"s7","s59",A[0],DS,84)
    a(f"s_add_u32 s7, s7, {8*INB}\ns_add_u32 s59, s59, {8*INB}")
    combine(aR,7,1024,32,"s7","s59",A[0],DS,8)
    a.label(L('nopub'))
    a(f"""
    s_and_b32 s7, s3, 1
    s_lshl_b32 s58, s7, 10
    v_add_u32 v{aR}, s58, v{aR}
    s_lshl_b32 s7, s7, 5
    v_mov_b32 v69, s7
    """)
    for m in range(2):
        for q in range(4):
            g=GR+4*m+q
            a(f"v_add_f32 v{g}, v{g}, v{g+8}\nv_add_f32 v{g+16}, v{g+16}, v{g+24}\nv_add_f32 v{g}, v{g}, v{g+16}")
    for q in range(4):
        a(f"""
        v_cvt_pk_bf16_f32 v7, v{GR+q}, v{GR+4+q}
        v_and_b32 v8, 0xffff0000, v7
        v_lshlrev_b32 v7, 16, v7
        v_mul_f32 v9, {f32(-math.log2(math.e))}, v7
        v_exp_f32 v9, v9
        v_add_f32 v9, 1.0, v9
        v_rcp_f32 v9, v9
        v_mul_f32 v9, v9, v7
        v_cvt_pk_bf16_f32 v9, v9, v9
        v_lshlrev_b32 v9, 16, v9
        v_mul_f32 v9, v9, v8
        v_cvt_pk_bf16_f32 v{HC+q}, v9, v9
        """)
    a(f"""
    v_cmp_gt_u32 vcc, 48, v0
    v_cndmask_b32 v{HC+2}, 0, v{HC+2}, vcc
    v_cndmask_b32 v{HC+3}, 0, v{HC+3}, vcc
    """)
    a(f"s_cmp_lg_u32 s11, s76\ns_cbranch_scc1 {L('vloop2')}")
    a.label(L('sdone'))
    a(f"s_cmp_lg_u32 s98, -1\ns_cbranch_scc1 {L('switch')}")
    TAIL(a,L,locals())
    return a.text(), kd(K,512,102,256), LDS

def TAIL(a,L,E):
    g=lambda n: E[n]
    vL,vM,O,OP,ML,DS,A,MASK,D,D2,WO,WOb,CF=[g(n) for n in "vL vM O OP ML DS A MASK D D2 WO WOb CF".split()]
    stamp,stamps,skip_tail,spin_max=[g(n) for n in "stamp stamps skip_tail spin_max".split()]
    aR,aP1,aP2,aH2,aP3,aCF,aRow,xres=[g(n) for n in "aR aP1 aP2 aH2 aP3 aCF aRow xres".split()]
    outf=g("outf")
    stamp(2)
    g("lred")(); g("ldswrite")(1)
    a("s_mov_b32 s71, 0\ns_waitcnt lgkmcnt(0)\ns_barrier")
    stamp(3)
    if skip_tail: a(f"s_branch {L('end')}")
    b1=g("b1")
    a(f"s_cmp_eq_u32 s3, 3\ns_cbranch_scc1 {L('p1s')}\ns_cmp_eq_u32 s3, 2\ns_cbranch_scc1 {L('p1y')}")
    g("combine")(aR,69,8192,64,"s12","s13",96,DS,104)
    stamp(4)
    if b1==2: a("s_waitcnt vmcnt(0)")
    a.label(L('p1x'))
    a(f"s_branch {L('p1w')}")
    a.label(L('p1s'))
    if g("d1"): a(f"s_sleep {g('d1')}")
    PO=DS; PM=96; PR=104
    for half,nm,nxt in ((0,'p1a','p1b'),(1,'p1b','p1d')):
        o=PO+8*half; m=PM+2*half
        a.label(L(nm))
        a(f"""
        buffer_load_dwordx4 v[{o}:{o+3}], v{aP1}, s[48:51], s68 offen offset:{2048*half} sc1
        buffer_load_dwordx4 v[{o+4}:{o+7}], v{aP1}, s[48:51], s68 offen offset:{2048*half+16} sc1
        buffer_load_dwordx2 v[{m}:{m+1}], v{aP2}, s[48:51], s68 offen offset:{128*half} sc1
        """)
        if half==0:
            a(f"""
            buffer_load_dwordx4 v[{o+8}:{o+11}], v{aP1}, s[48:51], s68 offen offset:2048 sc1
            buffer_load_dwordx4 v[{o+12}:{o+15}], v{aP1}, s[48:51], s68 offen offset:2064 sc1
            buffer_load_dwordx2 v[{m+2}:{m+3}], v{aP2}, s[48:51], s68 offen offset:128 sc1
            """)
        a("s_waitcnt vmcnt(0)")
        if half==1: a.label(L('p1c'))
        a(f"""
        v_max3_u32 v12, v{o}, v{o+1}, v{o+2}
        v_max3_u32 v13, v{o+3}, v{o+4}, v{o+5}
        v_max3_u32 v12, v12, v{o+6}, v{o+7}
        v_max3_u32 v13, v13, v{m}, v{m+1}
        v_max_u32 v12, v12, v13
        v_cmp_eq_u32 vcc, -1, v12
        s_add_u32 s71, s71, 1
        s_cmp_ge_u32 s71, {spin_max}
        s_cbranch_scc1 {L('p1d')}
        """)
        if half==0:
            a(f"s_cbranch_vccnz {L('p1a')}\ns_branch {L('p1c')}")
        else:
            a(f"s_cbranch_vccz {L('p1d')}\ns_mov_b64 exec, vcc\ns_branch {L('p1b')}")
    a.label(L('p1d'))
    a("s_mov_b64 exec, -1")
    stamp(5)
    a(f"v_max_f32 v12, v{PM}, v{PM+2}")
    for m in R16: a(f"v_max_f32_dpp v12, v12, v12 {m} {DPPT}")
    a(f"""
    v_sub_f32 v10, v{PM}, v12
    v_sub_f32 v11, v{PM+2}, v12
    v_mul_f32 v10, s10, v10
    v_mul_f32 v11, s10, v11
    v_exp_f32 v10, v10
    v_exp_f32 v11, v11
    v_mul_f32 v13, v10, v{PM+1}
    v_fmac_f32 v13, v11, v{PM+3}
    """)
    for q in range(8): a(f"v_mul_f32 v{PR+q}, v{PO+q}, v10")
    for q in range(8): a(f"v_fmac_f32 v{PR+q}, v{PO+8+q}, v11")
    for m in R16:
        a(f"v_add_f32_dpp v13, v13, v13 {m} {DPPT}")
        for q in range(8): a(f"v_add_f32_dpp v{PR+q}, v{PR+q}, v{PR+q} {m} {DPPT}")
    a("v_rcp_f32 v13, v13")
    for q in range(8): a(f"v_mul_f32 v{PR+q}, v{PR+q}, v13")
    for q in range(8): a(f"v_cvt_pk_bf16_f32 v{PR+q}, v{PR+q}, v{PR+q}")
    a(f"""
    ds_write_b128 v{aCF}, v[{PR}:{PR+3}] offset:{CF}
    ds_write_b128 v{aCF}, v[{PR+4}:{PR+7}] offset:{CF+16}
    s_mov_b32 s71, 0
    s_waitcnt lgkmcnt(0)
    s_barrier
    s_cmp_ge_u32 s69, 112
    s_cbranch_scc1 {L('end')}
    s_and_b32 s7, s69, {(1<<g("RK"))-1}
    s_cbranch_scc1 {L('end')}
    s_add_u32 s12, s68, {INB}
    s_add_u32 s13, s68, {2*INB}
    s_add_u32 s14, s68, {3*INB}
    """)
    RK=g("RK"); NL=2<<RK
    if g("b3"): a("s_barrier")
    P2=112; PL=128
    if g("d2"): a(f"s_sleep {g('d2')}")
    a.label(L('p2'))
    for i in range(NL):
        so=["s68","s12","s13","s14"][i>>1]
        a(f"buffer_load_dwordx4 v[{PL+4*i}:{PL+4*i+3}], v{aP3}, s[48:51], {so} offen offset:{1024*(i&1)} sc1")
    a(f"s_waitcnt vmcnt(0)\nv_max_u32 v12, v{PL}, v{PL+1}")
    for i in range(2,4*NL,2): a(f"v_max3_u32 v12, v12, v{PL+i}, v{PL+i+1}")
    a(f"""
    v_cmp_eq_u32 vcc, -1, v12
    s_add_u32 s71, s71, 1
    s_cmp_ge_u32 s71, {spin_max}
    s_cbranch_scc1 {L('p2d')}
    s_cbranch_vccz {L('p2d')}
    s_mov_b64 exec, vcc
    s_branch {L('p2')}
    """)
    a.label(L('p2d'))
    a("s_mov_b64 exec, -1")
    stamp(6)
    for q in range(4): a(f"v_add_f32 v{P2+q}, v{PL+q}, v{PL+4+q}")
    for i in range(2,NL):
        for q in range(4): a(f"v_add_f32 v{P2+q}, v{P2+q}, v{PL+4*i+q}")
    a(f"""
    v_permlane16_swap_b32 v{P2}, v{P2+1}
    v_permlane16_swap_b32 v{P2+2}, v{P2+3}
    v_add_f32 v{P2}, v{P2}, v{P2+1}
    v_add_f32 v{P2+2}, v{P2+2}, v{P2+3}
    v_permlane32_swap_b32 v{P2}, v{P2+2}
    v_add_f32 v{P2}, v{P2}, v{P2+2}
    """)
    for m in ("quad_perm:[1,0,3,2]","quad_perm:[2,3,0,1]","row_ror:4","row_ror:8")[RK:]: a(f"v_add_f32_dpp v{P2}, v{P2}, v{P2} {m} {DPPT}")
    a(f"""
    v_add_f32 v{P2}, v{P2}, v{xres}
    v_cvt_pk_bf16_f32 v{P2}, v{P2}, v{P2}
    s_mov_b64 exec, s[56:57]
    buffer_store_short v{P2}, v{aRow}, s[60:63], s74 offen{outf}
    s_branch {L('end')}
    """)
    a.label(L('p1y'))
    a("s_waitcnt vmcnt(0)")
    a.label(L('p1w'))
    CR=112
    aWO,aW2,W2,W2b,HC,wf=[g(n) for n in "aWO aW2 W2 W2b HC wf".split()]
    a("s_waitcnt vmcnt(2)")
    for kk in range(4):
        Ar=A[kk&1]
        for q in range(4): a(f"v_and_b32 v{Ar+q}, v{HC+kk}, v{MASK+q}")
        for Dd,Wb in ((D,W2),(D2,W2b)):
            r=Wb+kk*4
            c="0" if kk==0 else f"v[{Dd}:{Dd+3}]"
            a(f"v_mfma_f32_16x16x32_bf16 v[{Dd}:{Dd+3}], v[{Ar}:{Ar+3}], a[{r}:{r+3}], {c}")
    a(f"""
    s_barrier
    ds_read_b128 v[{CR}:{CR+3}], v{aCF} offset:{CF}
    ds_read_b128 v[{CR+4}:{CR+7}], v{aCF} offset:{CF+16}
    s_waitcnt lgkmcnt(0)
    """)
    for kk in range(8):
        Ar=A[kk&1]
        for q in range(4): a(f"v_and_b32 v{Ar+q}, v{CR+kk}, v{MASK+q}")
        for Dd,Wb in ((D,WO),(D2,WOb)):
            r=Wb+kk*4
            a(f"v_mfma_f32_16x16x32_bf16 v[{Dd}:{Dd+3}], v[{Ar}:{Ar+3}], a[{r}:{r+3}], v[{Dd}:{Dd+3}]")
    for q in range(4): a(f"v_min_u32 v{D+q}, -2, v{D+q}")
    a(f"""
    s_mov_b64 exec, s[72:73]
    buffer_store_dwordx4 v[{D}:{D+3}], v{aH2}, s[48:51], s52 offen sc1
    s_cmp_lg_u32 s3, 2
    s_cbranch_scc1 {L('pe')}
    s_mov_b64 exec, s[54:55]
    """)
    for q in range(4): a(f"v_min_u32 v{D2+q}, -2, v{D2+q}")
    a(f"buffer_store_dwordx4 v[{D2}:{D2+3}], v{aH2}, s[48:51], s53 offen sc1")
    a.label(L('pe'))
    if g("b3")==2: a("s_waitcnt vmcnt(0)")
    if g("b3"): a("s_barrier")
    stamp(1)
    a.label(L('end'))
    if stamps:
        a("s_waitcnt vmcnt(0)")
        stamp(7)
        a(f"""
        s_mov_b64 exec, 1
        s_mov_b32 s50, 0x1000000
        s_lshl_b32 s11, s2, 2
        s_add_u32 s11, s11, s96
        s_lshl_b32 s11, s11, 6
        s_add_u32 s11, s11, {STO}
        """)
        for i in range(4):
            for q in range(4): a(f"v_mov_b32 v{4+q}, s{80+4*i+q}")
            a(f"buffer_store_dwordx4 v[4:7], off, s[48:51], s11 offset:{16*i}")
    a.label(L('end2'))
    a("s_endpgm")

DOC = """;
; ---------------------------------------------------------------------------------------------
;           handed over through d_ws as {value,tag} granules (tag = epoch word found in d_ws + 1), while the
;           the clears / partials before their first use.  All hand-offs use sc1 stores and sc1 loads.
; ---------------------------------------------------------------------------------------------
"""
def write_main(path, **kw):
    t,kd1,lds=gen_main(**kw)
    s=HDR
    s+=f"; @launch grid=(256,1,1) block=(256,1,1) lds={lds}\n"+DOC
    s+='.amdgcn_target "amdgcn-amd-amdhsa--gfx950"\n.text\n'+t+'.section .rodata,"a"\n'+kd1
    open(path,"w").write(s)
if __name__=="__main__":
    write_main("cdna_kernels/"+NAME+".s")
```
